```python
import torch

def _softmax(x, axis=-1):
    return torch.softmax(x, dim=axis)
def _gelu(x):
    return torch.nn.functional.gelu(x, approximate="tanh")
def _silu(x):
    return torch.nn.functional.silu(x)
def _sigmoid(x):
    return torch.sigmoid(x)
def _layernorm(x, axis=-1, eps=1e-5):
    m = x.mean(dim=axis, keepdim=True)
    v = x.var(dim=axis, keepdim=True, unbiased=False)
    return (x - m) / torch.sqrt(v + eps)
def _scatter_add(tgt, idx, src, axis=0):
    return tgt.clone().index_add_(axis, idx, src)
def _segment_sum(src, seg, n):
    out = torch.zeros((n,) + src.shape[1:], dtype=src.dtype)
    return out.index_add_(0, seg, src)
def _pad(x, pw):
    flat = tuple(v for pair in reversed(pw) for v in pair)
    return torch.nn.functional.pad(x, flat)

kernel_name = 'gated_mix__ssm_conv_s5__dense_activation_squared_relu__prompt'

def setup_inputs():

    _w = (lambda a: (lambda t: t.to(torch.bfloat16) if t.is_floating_point() else t)(torch.as_tensor(a)))
    def _A_setup():
        B, S, D = 1, 2048, 640
        P = D
        Lambda_re = -0.5 * (lambda _x: torch.exp(torch.as_tensor(_x)))((lambda *s: torch.randn(*s, dtype=torch.bfloat16) * 0.4)(P))
        Lambda_im = (lambda *s: torch.randn(*s, dtype=torch.bfloat16) * 0.8)(P) * 1.0
        B_re = (lambda *s: torch.randn(*s, dtype=torch.bfloat16) * 0.8)(P, D) * (D ** -0.5)
        B_im = (lambda *s: torch.randn(*s, dtype=torch.bfloat16) * 0.8)(P, D) * (D ** -0.5)
        C_re = (lambda *s: torch.randn(*s, dtype=torch.bfloat16) * 0.4)(D, P) * (P ** -0.5)
        C_im = (lambda *s: torch.randn(*s, dtype=torch.bfloat16) * 0.8)(D, P) * (P ** -0.5)
        log_dt = (lambda *s: torch.randn(*s, dtype=torch.bfloat16) * 0.4)(P) * 0.3 - 2.0
        Dskip = (lambda *s: torch.randn(*s, dtype=torch.bfloat16) * 0.2)(D)
        return {
            "x": _w((lambda *s: torch.randn(*s, dtype=torch.bfloat16) * 0.05)(B, S, D)),
            "Lambda_re": _w(Lambda_re),
            "Lambda_im": _w(Lambda_im),
            "B_re": _w(B_re),
            "B_im": _w(B_im),
            "C_re": _w(C_re),
            "C_im": _w(C_im),
            "log_dt": _w(log_dt),
            "Dskip": _w(Dskip),
        }
    _A_in = _A_setup()

    def _B_setup():
        B, S, D, F = 1, 2048, 640, 1536
        return {
            "x": _w((lambda *s: torch.randn(*s, dtype=torch.bfloat16) * 0.05)(B, S, D)),
            "w1": _w((lambda *s: torch.randn(*s, dtype=torch.bfloat16) * 0.05)(D, F)),
            "b1": _w((lambda *s: torch.randn(*s, dtype=torch.bfloat16) * 0.05)(F)),
            "w2": _w((lambda *s: torch.randn(*s, dtype=torch.bfloat16) * 0.05)(F, D)),
            "b2": _w((lambda *s: torch.randn(*s, dtype=torch.bfloat16) * 0.05)(D)),
        }
    _B_in = _B_setup()

    return {
        "A_x": _A_in["x"],
        "A_Lambda_re": _A_in["Lambda_re"],
        "A_Lambda_im": _A_in["Lambda_im"],
        "A_B_re": _A_in["B_re"],
        "A_B_im": _A_in["B_im"],
        "A_C_re": _A_in["C_re"],
        "A_C_im": _A_in["C_im"],
        "A_log_dt": _A_in["log_dt"],
        "A_Dskip": _A_in["Dskip"],
        "B_x": _B_in["x"],
        "B_w1": _B_in["w1"],
        "B_b1": _B_in["b1"],
        "B_w2": _B_in["w2"],
        "B_b2": _B_in["b2"],
        "gate_w": _w((lambda *s: torch.randn(*s, dtype=torch.bfloat16) * 0.05)(640) * 16.0),
    }

def reference(A_x, A_Lambda_re, A_Lambda_im, A_B_re, A_B_im, A_C_re, A_C_im, A_log_dt, A_Dskip, B_x, B_w1, B_b1, B_w2, B_b2, gate_w):
    def _A_ref(x, Lambda_re, Lambda_im, B_re, B_im, C_re, C_im, log_dt, Dskip):
        Bsz, L, H = x.shape
        Lam = Lambda_re + 1j * Lambda_im
        Bmat = B_re + 1j * B_im
        Cmat = C_re + 1j * C_im
        dt = torch.exp(log_dt)
        Lam_bar = torch.exp(dt * Lam)
        B_bar = ((Lam_bar - 1.0) / Lam)[:, None] * Bmat
        Bu = torch.einsum("bld,pd->blp", x + 0j, B_bar)
        h = torch.zeros_like(Bu[:, 0, :])
        hs = []
        for t in range(L):
            h = Lam_bar[None, :] * h + Bu[:, t, :]
            hs.append(h)
        hseq = torch.stack(hs, 1)
        y = 2.0 * torch.einsum("blp,dp->bld", hseq, Cmat).real + x * Dskip[None, None, :]
        return y

    def _B_ref(x, w1, b1, w2, b2):
        h = torch.einsum("bsd,df->bsf", x, w1) + b1
        zero = torch.zeros_like(h)
        r = torch.where(h > zero, h, zero)
        h = r * r
        out = torch.einsum("bsf,fd->bsd", h, w2) + b2
        return out

    x = A_x
    g = _sigmoid((x * gate_w).sum(-1, keepdims=True))
    a = _A_ref(x, A_Lambda_re, A_Lambda_im, A_B_re, A_B_im, A_C_re, A_C_im, A_log_dt, A_Dskip)
    b = _B_ref(x, B_w1, B_b1, B_w2, B_b2)
    return g * a + (1 - g) * b
```

```python
class Regs:
    def __init__(self, kind, start, limit):
        self.kind = kind
        self.next = start
        self.limit = limit
        self.names = {}
        self.high = start

    def alloc(self, name, n=1, align=1):
        if n >= 2 and align < 2:
            align = 2
        base = (self.next + align - 1) // align * align
        assert base + n <= self.limit, f"out of {self.kind} regs at {name}: {base}+{n} > {self.limit}"
        self.names[name] = (base, n)
        self.next = base + n
        self.high = max(self.high, self.next)
        return base

    def mark(self):
        return self.next

    def reset(self, mark):
        self.next = mark


def v(i, n=1):
    return f"v{i}" if n == 1 else f"v[{i}:{i + n - 1}]"


def s(i, n=1):
    return f"s{i}" if n == 1 else f"s[{i}:{i + n - 1}]"


class Stream:
    def __init__(self):
        self.lines = []
        self.vm_issued = 0
        self.lg_issued = 0

    def e(self, text):
        self.lines.append("    " + text)

    def label(self, name):
        self.lines.append(name + ":")

    def c(self, text):
        self.lines.append("    ; " + text)

    def vm(self, text):
        self.e(text)
        self.vm_issued += 1
        return self.vm_issued

    def lg(self, text):
        self.e(text)
        self.lg_issued += 1
        return self.lg_issued

    def wait(self, vm=None, lg=None):
        parts = []
        if vm is not None:
            n = 0 if vm == "all" else self.vm_issued - vm
            assert n >= 0
            parts.append(f"vmcnt({min(n, 63)})")
        if lg is not None:
            n = 0 if lg == "all" else self.lg_issued - lg
            assert n >= 0
            parts.append(f"lgkmcnt({min(n, 15)})")
        if parts:
            self.e("s_waitcnt " + " ".join(parts))

    def nop(self, states):
        while states > 0:
            k = min(states, 16)
            self.e(f"s_nop {k - 1}")
            states -= k

    def text(self):
        return "\n".join(self.lines) + "\n"
```

```python
import sys
from asmlib import Regs, Stream, v, s

NAME = "gated_mix__ssm_conv_s5__dense_activation_squared_relu__prompt"
OPT = dict(stamps=False, D=4, spin=1 << 14)
for a in sys.argv[2:]:
    k, val = a.split("=")
    OPT[k] = int(val)
STAMPS = bool(OPT["stamps"])
D = OPT["D"]

WS_EPOCH = 0
WS_FP = 0x8000
WS_FM = 0x10000
WS_FS = 0x18000
WS_T = 0x20000
WS_W2P = 0x100000
WS_H = 0x800000
WS_ST = 0x2000000
RTS = 352 * 256
NSS = 88 * 5120
SL = 39040
O_X, O_BRE, O_BIM, O_GATE, O_W1 = 0, 16384, 21504, 26624, 26752
XR = 3 * SL
TS = XR
EX1 = TS + 4 * 7680
EX2 = EX1 + 3072
GS = EX2 + 3072
GB = GS + 512
SY = GB + 512
LDS_BYTES = SY + 64
PARTW = 64 * 336
assert LDS_BYTES <= 163840 and 4 * PARTW <= XR

DPP = "quad_perm:[1,0,3,2] row_mask:0xf bank_mask:0xf"
LOG2E = "0x3fb8aa3b"
NLOG2E = "0xbfb8aa3b"

P_X, P_LRE, P_LIM, P_BRE, P_BIM, P_CRE, P_CIM, P_LDT = 4, 6, 8, 10, 12, 14, 16, 18
P_DSK, P_BX, P_W1, P_B1, P_W2, P_B2, P_GATE, P_OUT = 20, 22, 24, 26, 28, 30, 32, 34
P_DBG, P_WS = 36, 38
R_WS = 40
S_RB, S_CS, S_HH, S_NS, S_W, S_NONCE, S_T0, S_T1, S_T2, S_T3 = 44, 45, 46, 47, 48, 49, 50, 51, 52, 53
S_SPIN = 3
S_FREE = 54
V_LANE = 1
V_L16 = 2
V_EP = 3


def srd(st, base, ptr, size):
    st.e(f"s_mov_b32 {s(base)}, {s(ptr)}")
    st.e(f"s_mov_b32 {s(base + 1)}, {s(ptr + 1)}")
    st.e(f"s_mov_b32 {s(base + 2)}, {size:#x}")
    st.e(f"s_mov_b32 {s(base + 3)}, 0x20000")


class Stamper:
    def __init__(self, st, sr, role):
        self.st, self.role, self.n = st, role, 0
        self.max = 14 if role == "G" else 12
        self.base = (sr.alloc("stamps", 2 * self.max, 2) if STAMPS else None)
        self.names = []

    def __call__(self, name):
        if not STAMPS:
            return
        assert self.n < self.max
        self.st.e(f"s_memtime {s(self.base + 2 * self.n, 2)}")
        self.names.append(name)
        self.n += 1

    def flush(self, vt):
        if not STAMPS:
            return
        st = self.st
        st.e(f"s_memrealtime {s(S_T0, 2)}")
        st.e("s_waitcnt lgkmcnt(0)")
        st.e(f"v_mov_b32 {v(vt)}, 0")
        for i in range(self.n):
            st.e(f"v_writelane_b32 {v(vt)}, {s(self.base + 2 * i)}, {i}")
        st.e(f"v_writelane_b32 {v(vt)}, {s(S_T0)}, 15")
        st.e(f"s_getreg_b32 {s(S_T0)}, hwreg(HW_REG_XCC_ID)")
        st.e(f"v_writelane_b32 {v(vt)}, {s(S_T0)}, 14")
        st.e(f"s_lshl_b32 {s(S_T0)}, s2, 3")
        st.e(f"s_add_u32 {s(S_T0)}, {s(S_T0)}, {s(S_W)}")
        if self.role == "S":
            st.e(f"s_add_u32 {s(S_T0)}, {s(S_T0)}, 4")
        st.e(f"s_lshl_b32 {s(S_T0)}, {s(S_T0)}, 6")
        st.e(f"s_add_u32 {s(S_T0)}, {s(S_T0)}, {WS_ST:#x}")
        st.e(f"v_lshlrev_b32 {v(vt + 1)}, 2, {v(V_LANE)}")
        st.e("s_mov_b64 exec, 0xffff")
        st.e(f"buffer_store_dword {v(vt)}, {v(vt + 1)}, {s(R_WS, 4)}, {s(S_T0)} offen")
        st.e("s_mov_b64 exec, -1")


_lbl = [0]


def newlabel(p):
    _lbl[0] += 1
    return f"L_{p}_{_lbl[0]}"


def nonce_from_epoch(st):
    st.e(f"v_readfirstlane_b32 {s(S_NONCE)}, {v(V_EP)}")
    st.e("s_nop 3")
    st.e(f"s_mul_i32 {s(S_NONCE)}, {s(S_NONCE)}, 0x9e3779b1")
    st.e(f"s_add_u32 {s(S_NONCE)}, {s(S_NONCE)}, 0x7f4a7c15")


def flag_check(st, vdata, reload_text, landed=True):
    top, done = newlabel("chk"), newlabel("ok")
    st.e(f"s_mov_b32 {s(S_SPIN)}, {OPT['spin']}")
    st.label(top)
    st.e(f"v_cmp_ne_u32 vcc, {s(S_NONCE)}, {v(vdata)}")
    st.e(f"s_sub_u32 {s(S_SPIN)}, {s(S_SPIN)}, 1")
    st.e(f"s_cbranch_scc1 {done}")
    st.e("s_nop 2")
    st.e(f"s_cbranch_vccz {done}")
    st.e("s_sleep 2")
    st.e(reload_text)
    st.e("s_waitcnt vmcnt(0)")
    st.e(f"s_branch {top}")
    st.label(done)


def lds_flag_wait(st, vaddr, off, vtmp):
    top, done = newlabel("lw"), newlabel("lok")
    st.e(f"s_mov_b32 {s(S_SPIN)}, {OPT['spin'] * 8}")
    st.label(top)
    st.e(f"ds_read_b128 {v(vtmp, 4)}, {v(vaddr)} offset:{off}")
    st.e(f"s_sub_u32 {s(S_SPIN)}, {s(S_SPIN)}, 1")
    st.e(f"s_cbranch_scc1 {done}")
    st.e("s_waitcnt lgkmcnt(0)")
    st.e(f"v_and_b32 {v(vtmp)}, {v(vtmp)}, {v(vtmp + 1)}")
    st.e(f"v_and_b32 {v(vtmp + 2)}, {v(vtmp + 2)}, {v(vtmp + 3)}")
    st.e(f"v_and_b32 {v(vtmp)}, {v(vtmp)}, {v(vtmp + 2)}")
    st.e(f"v_cmp_ne_u32 vcc, -1, {v(vtmp)}")
    st.e("s_nop 4")
    st.e(f"s_cbranch_vccnz {top}")
    st.label(done)
    st.e("s_waitcnt lgkmcnt(0)")


def pack_flag_addr(st, vd, vt):
    st.e(f"s_mul_i32 {s(S_T0)}, {s(S_NS)}, 5")
    st.e(f"s_lshr_b32 {s(S_T1)}, {s(S_T0)}, 2")
    st.e(f"s_mul_i32 {s(S_T2)}, {s(S_W)}, 120")
    st.e(f"s_add_u32 {s(S_T1)}, {s(S_T1)}, {s(S_T2)}")
    st.e(f"v_lshrrev_b32 {v(vt)}, 1, {v(V_LANE)}")
    st.e(f"v_mul_u32_u24 {v(vt)}, 10, {v(vt)}")
    st.e(f"v_and_b32 {v(vt + 1)}, 1, {v(V_LANE)}")
    st.e(f"v_add3_u32 {v(vd)}, {v(vt)}, {v(vt + 1)}, {s(S_T1)}")
    st.e(f"s_mul_i32 {s(S_T2)}, {s(S_W)}, 10")
    st.e(f"s_lshr_b32 {s(S_T2)}, {s(S_T2)}, 2")
    st.e(f"s_mul_i32 {s(S_T0)}, {s(S_T0)}, 10")
    st.e(f"s_add_u32 {s(S_T0)}, {s(S_T0)}, {s(S_T2)}")
    st.e(f"s_add_u32 {s(S_T0)}, {s(S_T0)}, 480")
    st.e(f"v_subrev_u32 {v(vt)}, 24, {v(V_LANE)}")
    st.e(f"v_min_u32 {v(vt)}, 14, {v(vt)}")
    st.e(f"v_mul_u32_u24 {v(vt + 1)}, 43, {v(vt)}")
    st.e(f"v_lshrrev_b32 {v(vt + 1)}, 7, {v(vt + 1)}")
    st.e(f"v_mul_u32_u24 {v(vt + 2)}, 7, {v(vt + 1)}")
    st.e(f"v_add3_u32 {v(vt)}, {v(vt)}, {v(vt + 2)}, {s(S_T0)}")
    st.e(f"v_cmp_gt_u32 vcc, 24, {v(V_LANE)}")
    st.e("s_nop 1")
    st.e(f"v_cndmask_b32 {v(vd)}, {v(vt)}, {v(vd)}, vcc")
    st.e(f"v_lshrrev_b32 {v(vt)}, 2, {v(vd)}")
    st.e(f"v_and_b32 {v(vd)}, 3, {v(vd)}")
    st.e(f"v_lshlrev_b32 {v(vd)}, 2, {v(vd)}")
    st.e(f"v_lshl_add_u32 {v(vd)}, {v(vt)}, 7, {v(vd)}")
    st.e(f"v_add_u32 {v(vd)}, {WS_FP:#x}, {v(vd)}")


def xread_addrs(st, vX, vt):
    st.e(f"v_and_b32 {v(vt)}, 31, {v(V_LANE)}")
    st.e(f"v_bfe_u32 {v(vt + 1)}, {v(V_LANE)}, 1, 3")
    st.e(f"v_lshrrev_b32 {v(vt + 2)}, 5, {v(V_LANE)}")
    st.e(f"v_xor_b32 {v(vt + 1)}, {v(vt + 1)}, {v(vt + 2)}")
    st.e(f"v_lshlrev_b32 {v(vt + 1)}, 4, {v(vt + 1)}")
    st.e(f"v_lshl_add_u32 {v(vt)}, {v(vt)}, 7, {v(vt + 1)}")
    st.e(f"s_lshl_b32 {s(S_T0)}, {s(S_W)}, 12")
    st.e(f"v_add_u32 {v(vX)}, {s(S_T0)}, {v(vt)}")
    for k in range(1, 4):
        st.e(f"v_xor_b32 {v(vX + k)}, {32 * k}, {v(vX)}")
    for k in range(4):
        st.e(f"v_add_u32 {v(vX + 4 + k)}, {2 * SL}, {v(vX + k)}")


def slot_addr(vbase_lo, vbase_hi, slot, off):
    if slot == 2:
        return vbase_hi, off
    return vbase_lo, off + slot * SL


def w2_prefetch(st, g, role, sW2, vL16b, sM0):
    slot = (7 + g) % 3
    out = []
    out.append(("e", f"s_add_u32 m0, {s(sM0)}, {slot * SL}"))
    out.append(("e", f"s_add_u32 {s(S_T3)}, {s(sW2)}, {g * 4 * 5120}"))
    out.append(("vm", f"buffer_load_dwordx4 {v(V_L16)}, {s(R_WS, 4)}, {s(S_T3)} offen sc1 lds"))
    out.append(("vm", f"buffer_load_dwordx4 {v(V_L16)}, {s(R_WS, 4)}, {s(S_T3)} offen offset:1024 sc1 lds"))
    out.append(("vm", f"buffer_load_dwordx4 {v(vL16b)}, {s(R_WS, 4)}, {s(S_T3)} offen offset:2048 sc1 lds"))
    out.append(("vm", f"buffer_load_dwordx4 {v(vL16b)}, {s(R_WS, 4)}, {s(S_T3)} offen offset:3072 sc1 lds"))
    return out


def put(st, item):
    kind, text = item
    if kind == "vm":
        return st.vm(text)
    if kind == "lg":
        return st.lg(text)
    st.e(text)
    return None


def interleave(st, mains, sides):
    ids = []
    n = len(mains)
    k = 0
    for i, m in enumerate(mains):
        put(st, m)
        upto = (len(sides) * (i + 1) + n - 1) // n
        while k < upto:
            r = put(st, sides[k])
            if sides[k][0] == "vm":
                ids.append(r)
            k += 1
    return ids


def gen_common(st):
    st.e("s_cmp_ge_u32 s2, 256")
    st.e("s_cbranch_scc1 L_end")
    st.e("s_load_dwordx16 s[4:19], s[0:1], 0")
    st.e("s_load_dwordx16 s[20:35], s[0:1], 64")
    st.e("s_load_dwordx4 s[36:39], s[0:1], 128")
    st.e(f"v_lshrrev_b32 {v(V_EP)}, 6, v0")
    st.e(f"v_and_b32 {v(V_LANE)}, 63, v0")
    st.e(f"v_readfirstlane_b32 {s(S_W)}, {v(V_EP)}")
    st.e(f"v_lshlrev_b32 {v(V_L16)}, 4, {v(V_LANE)}")
    st.e(f"s_lshr_b32 {s(S_T1)}, s2, 3")
    st.e(f"s_bfe_u32 {s(S_RB)}, s2, 0x20001")
    st.e(f"s_lshl_b32 {s(S_RB)}, {s(S_RB)}, 2")
    st.e(f"s_lshr_b32 {s(S_T2)}, {s(S_T1)}, 3")
    st.e(f"s_add_u32 {s(S_RB)}, {s(S_RB)}, {s(S_T2)}")
    st.e(f"s_and_b32 {s(S_T0)}, s2, 1")
    st.e(f"s_lshl_b32 {s(S_CS)}, {s(S_T0)}, 3")
    st.e(f"s_and_b32 {s(S_T2)}, {s(S_T1)}, 7")
    st.e(f"s_add_u32 {s(S_CS)}, {s(S_CS)}, {s(S_T2)}")
    st.e(f"s_and_b32 {s(S_HH)}, {s(S_CS)}, 1")
    st.e(f"s_lshr_b32 {s(S_NS)}, {s(S_CS)}, 1")
    st.e("s_waitcnt lgkmcnt(0)")
    srd(st, R_WS, P_WS, 0x10000000)
    st.vm(f"buffer_load_dword {v(V_EP)}, off, {s(R_WS, 4)}, 0 sc1")
    st.e(f"s_cmp_ge_u32 {s(S_W)}, 4")
    st.e("s_cbranch_scc1 L_S")


def gen_G(st):
    sr = Regs("s", S_FREE, 102)
    vr = Regs("v", 4, 256)
    stamp = Stamper(st, sr, "G")
    stamp("start")
    R_X = sr.alloc("R_X", 4, 4)
    R_W1 = sr.alloc("R_W1", 4, 4)
    sr2 = Regs("s", P_LRE, P_DSK)
    sOX = sr2.alloc("sOX")
    sOW = sr2.alloc("sOW")
    sMX = sr2.alloc("sMX")
    sMW = sr2.alloc("sMW")
    sW2 = sr2.alloc("sW2")
    sMP = sr2.alloc("sMP")
    sH = sr2.alloc("sH", 4)
    sWg = sr2.alloc("sWg")
    vDX = vr.alloc("vDX", 4)
    vDW = vr.alloc("vDW")
    vX = vr.alloc("vX", 8)
    vW = vr.alloc("vW", 2)
    vL16b = vr.alloc("vL16b")
    vL16c = vr.alloc("vL16c")
    vPF = vr.alloc("vPF")
    vPD = vr.alloc("vPD")
    vHS = vr.alloc("vHS")
    vFM = vr.alloc("vFM")
    vLW = vr.alloc("vLW", 2)
    vT = vr.alloc("vT", 4)
    assert vr.next <= 32, vr.next
    BIG = 32
    acc1 = [BIG + 16 * b for b in range(3)]
    fX = [BIG + 48 + 16 * p for p in range(2)]
    fW = [[BIG + 48 + 16 * p + 4 + 4 * b for b in range(3)] for p in range(2)]
    cv = BIG + 80
    bias = BIG + 104
    srd(st, R_X, P_X, 2048 * 1280)
    srd(st, R_W1, P_W1, 640 * 3072)
    st.e(f"v_lshrrev_b32 {v(vT)}, 3, {v(V_LANE)}")
    st.e(f"v_and_b32 {v(vT + 1)}, 3, {v(vT)}")
    st.e(f"v_lshrrev_b32 {v(vT)}, 2, {v(vT)}")
    st.e(f"v_lshl_add_u32 {v(vT)}, {v(vT)}, 4, {v(vT + 1)}")
    st.e(f"v_mul_u32_u24 {v(vT)}, 1280, {v(vT)}")
    st.e(f"v_lshrrev_b32 {v(vT + 1)}, 4, {v(V_LANE)}")
    st.e(f"v_and_b32 {v(vT + 2)}, 7, {v(V_LANE)}")
    st.e(f"v_xor_b32 {v(vT + 1)}, {v(vT + 1)}, {v(vT + 2)}")
    st.e(f"v_lshl_add_u32 {v(vDX)}, {v(vT + 1)}, 4, {v(vT)}")
    st.e(f"v_xor_b32 {v(vDX + 1)}, 64, {v(vDX)}")
    st.e(f"v_add_u32 {v(vDX + 1)}, {4096}, {v(vDX + 1)}")
    st.e(f"v_add_u32 {v(vDX + 2)}, {8192}, {v(vDX)}")
    st.e(f"v_add_u32 {v(vDX + 3)}, {8192}, {v(vDX + 1)}")
    st.e(f"s_lshl_b32 {s(S_T0)}, {s(S_RB)}, 2")
    st.e(f"s_add_u32 {s(S_T0)}, {s(S_T0)}, {s(S_W)}")
    st.e(f"s_mul_i32 {s(sOX)}, {s(S_T0)}, {32 * 1280}")
    st.e(f"s_lshl_b32 {s(sMX)}, {s(S_W)}, 12")
    st.e(f"v_and_b32 {v(vT)}, 255, v0")
    st.e(f"v_mul_u32_u24 {v(vT + 1)}, 43691, {v(vT)}")
    st.e(f"v_lshrrev_b32 {v(vT + 1)}, 19, {v(vT + 1)}")
    st.e(f"v_mul_u32_u24 {v(vT + 1)}, {3072 - 192}, {v(vT + 1)}")
    st.e(f"v_lshl_add_u32 {v(vDW)}, {v(vT)}, 4, {v(vT + 1)}")
    st.e(f"s_mul_i32 {s(sOW)}, {s(S_CS)}, 192")
    st.e(f"s_lshl_b32 {s(sMW)}, {s(S_W)}, 10")
    st.e(f"s_add_u32 {s(sMW)}, {s(sMW)}, {O_W1}")

    def dma_chunk(c):
        slot = c % 3
        out = [("e", f"s_add_u32 m0, {s(sMX)}, {slot * SL + O_X}"),
               ("e", "s_nop 0")]
        for i in range(4):
            out.append(("vm", f"buffer_load_dwordx4 {v(vDX + i)}, {s(R_X, 4)}, {s(sOX)} offen offset:{1024 * i} lds"))
        out.append(("e", f"s_add_u32 m0, {s(sMW)}, {slot * SL}"))
        out.append(("e", f"s_add_u32 {s(sOX)}, {s(sOX)}, 128"))
        out.append(("vm", f"buffer_load_dwordx4 {v(vDW)}, {s(R_W1, 4)}, {s(sOW)} offen lds"))
        out.append(("e", f"s_add_u32 {s(sOW)}, {s(sOW)}, {64 * 3072}"))
        return out

    st.e(f"v_and_b32 {v(vT)}, 31, {v(V_LANE)}")
    st.e(f"v_lshlrev_b32 {v(vT)}, 1, {v(vT)}")
    st.e(f"v_add_u32 {v(vT)}, {s(sOW)}, {v(vT)}")
    for b in range(3):
        idb = st.vm(f"global_load_ushort {v(bias + 4 * b)}, {v(vT)}, {s(P_B1, 2)} offset:{64 * b}")
    chunk_id = {}
    for c in range(3):
        for it in dma_chunk(c):
            r = put(st, it)
            if r:
                chunk_id[c] = r
    stamp("dma0")
    xread_addrs(st, vX, vT)
    st.e(f"v_bfe_u32 {v(vT)}, {v(V_LANE)}, 2, 2")
    st.e(f"v_lshrrev_b32 {v(vT + 1)}, 5, {v(V_LANE)}")
    st.e(f"v_lshl_add_u32 {v(vT)}, {v(vT + 1)}, 3, {v(vT)}")
    st.e(f"v_mul_u32_u24 {v(vT)}, 192, {v(vT)}")
    st.e(f"v_and_b32 {v(vT + 1)}, 3, {v(V_LANE)}")
    st.e(f"v_lshl_add_u32 {v(vT)}, {v(vT + 1)}, 3, {v(vT)}")
    st.e(f"v_bfe_u32 {v(vT + 1)}, {v(V_LANE)}, 4, 1")
    st.e(f"v_lshl_add_u32 {v(vT)}, {v(vT + 1)}, 5, {v(vT)}")
    st.e(f"v_add_u32 {v(vW)}, {O_W1}, {v(vT)}")
    st.e(f"v_add_u32 {v(vW + 1)}, {O_W1 + 2 * SL}, {v(vT)}")
    st.e(f"v_add_u32 {v(vL16b)}, 3072, {v(V_L16)}")
    st.e(f"v_add_u32 {v(vL16c)}, 4096, {v(V_L16)}")
    pack_flag_addr(st, vPF, vT)
    st.e(f"v_bfe_u32 {v(vT)}, {v(V_LANE)}, 2, 1")
    st.e(f"v_mul_u32_u24 {v(vT)}, {RTS}, {v(vT)}")
    st.e(f"v_lshrrev_b32 {v(vT + 1)}, 5, {v(V_LANE)}")
    st.e(f"v_lshl_add_u32 {v(vT)}, {v(vT + 1)}, 8, {v(vT)}")
    st.e(f"v_bfe_u32 {v(vT + 1)}, {v(V_LANE)}, 3, 2")
    st.e(f"v_lshl_add_u32 {v(vT)}, {v(vT + 1)}, 6, {v(vT)}")
    st.e(f"v_and_b32 {v(vT + 1)}, 3, {v(V_LANE)}")
    st.e(f"v_lshl_add_u32 {v(vHS)}, {v(vT + 1)}, 4, {v(vT)}")
    st.e(f"s_lshl_b32 {s(S_T0)}, {s(S_RB)}, 4")
    st.e(f"s_lshl_b32 {s(S_T1)}, {s(S_W)}, 2")
    st.e(f"s_add_u32 {s(S_T0)}, {s(S_T0)}, {s(S_T1)}")
    st.e(f"s_lshl_b32 {s(S_T0)}, {s(S_T0)}, 7")
    st.e(f"s_lshl_b32 {s(S_T1)}, {s(S_HH)}, 3")
    st.e(f"s_add_u32 {s(S_T0)}, {s(S_T0)}, {s(S_T1)}")
    st.e(f"s_add_u32 {s(S_T0)}, {s(S_T0)}, {WS_FM:#x}")
    st.e(f"v_bfe_u32 {v(vT)}, {v(V_LANE)}, 1, 2")
    st.e(f"v_and_b32 {v(vT + 1)}, 1, {v(V_LANE)}")
    st.e(f"v_lshlrev_b32 {v(vT + 1)}, 2, {v(vT + 1)}")
    st.e(f"v_lshl_add_u32 {v(vT)}, {v(vT)}, 7, {v(vT + 1)}")
    st.e(f"v_add_u32 {v(vFM)}, {s(S_T0)}, {v(vT)}")
    st.e(f"s_mul_i32 {s(sWg)}, {s(S_NS)}, {NSS}")
    st.e(f"s_mul_i32 {s(S_T0)}, {s(S_W)}, {12 * 5120}")
    st.e(f"s_add_u32 {s(sWg)}, {s(sWg)}, {s(S_T0)}")
    st.e(f"s_add_u32 {s(sWg)}, {s(sWg)}, {WS_W2P:#x}")
    st.e(f"s_add_u32 {s(sW2)}, {s(sWg)}, 3072")
    st.e(f"s_lshl_b32 {s(sMP)}, {s(S_W)}, 13")
    st.e(f"v_add_u32 {v(vLW)}, {s(sMP)}, {v(V_L16)}")
    st.e(f"v_add_u32 {v(vLW + 1)}, {2 * SL}, {v(vLW)}")
    for b in range(3):
        for k in range(1, 4):
            st.e(f"v_mov_b32 {v(bias + 4 * b + k)}, 0")
    st.e(f"v_mov_b32 {v(bias + 12)}, 0x3f80")
    for k in range(1, 4):
        st.e(f"v_mov_b32 {v(bias + 12 + k)}, 0")
    st.e(f"v_cmp_gt_u32 vcc, 32, {v(V_LANE)}")
    st.e("s_nop 0")
    st.wait(vm=idb)
    for b in range(3):
        st.e(f"v_cndmask_b32 {v(bias + 4 * b)}, 0, {v(bias + 4 * b)}, vcc")
    nonce_from_epoch(st)
    for b in range(3):
        st.e(f"v_mfma_f32_32x32x16_bf16 {v(acc1[b], 16)}, {v(bias + 4 * b, 4)}, {v(bias + 12, 4)}, 0")

    def reads(c, sidx):
        slot, p = c % 3, sidx & 1
        out = []
        ra, off = slot_addr(vX + sidx, vX + 4 + sidx, slot, O_X)
        out.append(("lg", f"ds_read_b128 {v(fX[p], 4)}, {v(ra)} offset:{off}"))
        for b in range(3):
            for e2 in range(2):
                ra, off = slot_addr(vW, vW + 1, slot, sidx * 3072 + e2 * 768 + b * 64)
                out.append(("lg", f"ds_read_b64_tr_b16 {v(fW[p][b] + 2 * e2, 2)}, {v(ra)} offset:{off}"))
        return out

    def mfmas(sidx):
        p = sidx & 1
        return [("e", f"v_mfma_f32_32x32x16_bf16 {v(acc1[b], 16)}, {v(fW[p][b], 4)}, {v(fX[p], 4)}, {v(acc1[b], 16)}")
                for b in range(3)]

    st.wait(vm=chunk_id[0])
    st.e("s_barrier")
    stamp("B0")
    for it in reads(0, 0):
        put(st, it)
    w2ids = []
    pf_id = None
    for c in range(10):
        for sidx in range(4):
            if sidx < 3:
                st.wait(lg="all")
                interleave(st, mfmas(sidx), reads(c, sidx + 1))
            else:
                if c < 9:
                    st.wait(vm=chunk_id[c + 1], lg="all")
                else:
                    st.wait(lg="all")
                if c == 7:
                    flag_check(st, vPD, f"buffer_load_dword {v(vPD)}, {v(vPF)}, {s(R_WS, 4)}, 0 offen sc1")
                st.e("s_barrier")
                if c in (2, 5, 8):
                    stamp(f"B{c + 1}")
                sides = reads(c + 1, 0) if c < 9 else []
                if c == 5:
                    sides = sides + [("vm", f"buffer_load_dword {v(vPD)}, {v(vPF)}, {s(R_WS, 4)}, 0 offen sc1")]
                if c + 3 <= 9:
                    sides = sides + dma_chunk(c + 3)
                else:
                    sides = sides + w2_prefetch(st, c - 7, "G", sW2, vL16b, sMP)
                ids = interleave(st, mfmas(sidx), sides)
                if c + 3 <= 9:
                    chunk_id[c + 3] = ids[-1]
                else:
                    w2ids.append(ids[-1])
    stamp("loopend")
    st.e(f"s_lshl_b32 {s(S_T0)}, {s(S_RB)}, 2")
    st.e(f"s_add_u32 {s(S_T0)}, {s(S_T0)}, {s(S_W)}")
    st.e(f"s_mul_i32 {s(S_T0)}, {s(S_T0)}, {2 * RTS}")
    st.e(f"s_mul_i32 {s(S_T1)}, {s(S_CS)}, {12 * 256}")
    st.e(f"s_add_u32 {s(S_T0)}, {s(S_T0)}, {s(S_T1)}")
    st.e(f"s_add_u32 {s(S_T0)}, {s(S_T0)}, {WS_H:#x}")
    st.nop(6)
    for b in range(3):
        for e2 in range(2):
            a0 = acc1[b] + 8 * e2
            for j in range(8):
                st.e(f"v_max_f32 {v(a0 + j)}, 0, {v(a0 + j)}")
            for j in range(0, 8, 2):
                st.e(f"v_pk_mul_f32 {v(a0 + j, 2)}, {v(a0 + j, 2)}, {v(a0 + j, 2)}")
            for j in range(4):
                st.e(f"v_cvt_pk_bf16_f32 {v(cv + 8 * b + 4 * e2 + j)}, {v(a0 + 2 * j)}, {v(a0 + 2 * j + 1)}")
            hst = st.vm(f"buffer_store_dwordx4 {v(cv + 8 * b + 4 * e2, 4)}, {v(vHS)}, {s(R_WS, 4)}, {s(S_T0)} "
                        f"offen offset:{b * 1024 + e2 * 512} sc1")
    stamp("Hstored")
    acc2 = BIG
    Hb = [BIG + 80 + 16 * d for d in range(D)]
    Wb = [BIG + 80 + 16 * D + 20 * d for d in range(D)]
    assert Wb[-1] + 20 <= 256
    NST = 22

    def wsrc(i):
        return i * 5120 if i < 12 else None

    st.e(f"s_lshl_b32 {s(S_T1)}, {s(S_RB)}, 1")
    st.e(f"s_add_u32 {s(S_T1)}, {s(S_T1)}, {s(S_HH)}")
    st.e(f"s_mul_i32 {s(S_T1)}, {s(S_T1)}, {4 * RTS}")
    st.e(f"s_mul_i32 {s(S_T2)}, {s(S_W)}, {12 * 1024}")
    st.e(f"s_add_u32 {s(S_T1)}, {s(S_T1)}, {s(S_T2)}")
    st.e(f"s_add_u32 {s(sH)}, {s(S_T1)}, {WS_H:#x}")
    for mt in range(1, 4):
        st.e(f"s_add_u32 {s(sH + mt)}, {s(sH + mt - 1)}, {RTS}")

    state = dict(w=0, h=0)

    def w_loads(i):
        out = []
        assert state["w"] == i
        if i == 12:
            out.append(("e", f"s_mul_i32 {s(S_T2)}, {s(S_W)}, {2 * 5120}"))
            out.append(("e", f"s_sub_u32 {s(sWg)}, {s(sWg)}, {s(S_T2)}"))
            out.append(("e", f"s_add_u32 {s(sWg)}, {s(sWg)}, {36 * 5120}"))
        nts = range(3) if i < 12 else range(5)
        for nt in nts:
            va, off = (V_L16, nt * 1024) if nt < 4 else (vL16c, 0)
            out.append(("vm", f"buffer_load_dwordx4 {v(Wb[i % D] + 4 * nt, 4)}, {v(va)}, {s(R_WS, 4)}, {s(sWg)} "
                              f"offen offset:{off} sc1"))
        out.append(("e", f"s_add_u32 {s(sWg)}, {s(sWg)}, 5120"))
        state["w"] += 1
        return out

    def h_loads(i):
        out = []
        assert state["h"] == i
        j = i if i < 12 else i - 12
        if i == 12:
            out.append(("e", f"s_mul_i32 {s(S_T2)}, {s(S_W)}, {2 * 1024}"))
            out.append(("e", f"s_sub_u32 {s(S_T2)}, {36 * 1024 + 4096}, {s(S_T2)}"))
            for mt in range(4):
                out.append(("e", f"s_add_u32 {s(sH + mt)}, {s(sH + mt)}, {s(S_T2)}"))
        elif j % 4 == 0 and j > 0:
            for mt in range(4):
                out.append(("e", f"s_add_u32 {s(sH + mt)}, {s(sH + mt)}, 4096"))
        for mt in range(4):
            out.append(("vm", f"buffer_load_dwordx4 {v(Hb[i % D] + 4 * mt, 4)}, {v(V_L16)}, {s(R_WS, 4)}, {s(sH + mt)} "
                              f"offen offset:{(j % 4) * 1024} sc1"))
        state["h"] += 1
        return out

    def lds_w(i):
        g, within = i >> 2, i & 3
        slot = (7 + g) % 3
        out = []
        for k in range(2):
            ra, off = slot_addr(vLW, vLW + 1, slot, within * 2048 + k * 1024)
            out.append(("lg", f"ds_read_b128 {v(Wb[i % D] + 12 + 4 * k, 4)}, {v(ra)} offset:{off}"))
        return out

    last_id = {}
    for i in range(D):
        for it in w_loads(i):
            r = put(st, it)
            if r:
                last_id[i] = r
    st.e(f"s_lshl_b32 {s(S_T0)}, {s(S_RB)}, 4")
    st.e(f"s_add_u32 {s(S_T0)}, {s(S_T0)}, {s(S_CS)}")
    st.e(f"s_lshl_b32 {s(S_T0)}, {s(S_T0)}, 5")
    st.e(f"s_add_u32 {s(S_T0)}, {s(S_T0)}, {s(S_W)}")
    st.e(f"s_lshl_b32 {s(S_T0)}, {s(S_T0)}, 2")
    st.e(f"s_add_u32 {s(S_T0)}, {s(S_T0)}, {WS_FM:#x}")
    st.e(f"v_mov_b32 {v(vT)}, {s(S_NONCE)}")
    st.e("s_mov_b64 exec, 1")
    st.wait(vm=hst)
    st.vm(f"buffer_store_dword {v(vT)}, off, {s(R_WS, 4)}, {s(S_T0)} sc1")
    st.e("s_mov_b64 exec, -1")
    stamp("FMset")
    st.vm(f"buffer_load_dword {v(vPD)}, {v(vFM)}, {s(R_WS, 4)}, 0 offen sc1")
    st.e(f"v_mov_b32 {v(vT)}, {SY}")
    st.e(f"v_mov_b32 {v(vW)}, {SY}")
    lds_flag_wait(st, vW, 32, vT)
    st.wait(vm="all")
    flag_check(st, vPD, f"buffer_load_dword {v(vPD)}, {v(vFM)}, {s(R_WS, 4)}, 0 offen sc1")
    stamp("FMok")
    for i in range(D - 1):
        for it in h_loads(i):
            r = put(st, it)
            if r:
                last_id[i] = r
    for it in lds_w(0):
        put(st, it)
    vG = vX
    st.e(f"v_and_b32 {v(vT)}, 15, {v(V_LANE)}")
    st.e(f"s_lshl_b32 {s(S_T0)}, {s(S_HH)}, 8")
    st.e(f"s_add_u32 {s(S_T0)}, {s(S_T0)}, {GB}")
    st.e(f"v_lshl_add_u32 {v(vT)}, {v(vT)}, 2, {s(S_T0)}")
    for mt in range(4):
        st.lg(f"ds_read_b32 {v(vG + mt)}, {v(vT)} offset:{64 * mt}")
    st.wait(lg="all")
    for mt in range(4):
        st.e(f"v_sub_f32 {v(vG + mt)}, 1.0, {v(vG + mt)}")

    vER = vDX
    fs_id = None
    epi = {}
    for i in range(NST):
        p = i % D
        sides = []
        nxt = i + D - 1
        if i == 12 - (D - 1) - 2:
            sides.append(("vm", f"buffer_load_dword {v(vPD)}, {v(vFM)}, {s(R_WS, 4)}, {s(sOX)} offen sc1"))
            st.e(f"s_mov_b32 {s(sOX)}, {WS_FS - WS_FM:#x}")
        st.wait(vm=max(last_id[i], fs_id) if nxt == 12 else last_id[i], lg="all")
        if nxt == 12:
            flag_check(st, vPD, f"buffer_load_dword {v(vPD)}, {v(vFM)}, {s(R_WS, 4)}, {s(sOX)} offen sc1")
            stamp("FSok")
        if i == 12:
            st.nop(4)
            for mt in range(4):
                for nt in range(5):
                    a0 = acc2 + 20 * mt + 4 * nt
                    for k in range(4):
                        st.e(f"v_mul_f32 {v(a0 + k)}, {v(vG + mt)}, {v(a0 + k)}")
            st.nop(2)
        if i == NST - 2:
            st.e("s_barrier")
        if nxt < NST:
            if nxt >= D:
                sides += w_loads(nxt)
            sides += h_loads(nxt)
        if i + 1 < 12:
            sides += lds_w(i + 1)
        if i == NST - D + 1:
            fr = Hb[(i - 1) % D]
            epi["x"], epi["dsk"], epi["b2"] = fr, fr + 12, fr + 14
            sides.append(("e", f"v_mul_u32_u24 {v(vER)}, 205, {v(V_LANE)}"))
            sides.append(("e", f"v_lshrrev_b32 {v(vER)}, 12, {v(vER)}"))
            sides.append(("e", f"v_mul_u32_u24 {v(vER + 1)}, 20, {v(vER)}"))
            sides.append(("e", f"v_sub_u32 {v(vER + 1)}, {v(V_LANE)}, {v(vER + 1)}"))
            sides.append(("e", f"s_mul_i32 {s(S_T0)}, {s(S_NS)}, 160"))
            sides.append(("e", f"v_lshl_add_u32 {v(vER + 2)}, {v(vER + 1)}, 3, {s(S_T0)}"))
            sides.append(("vm", f"global_load_dwordx2 {v(epi['dsk'], 2)}, {v(vER + 2)}, {s(P_DSK, 2)}"))
            sides.append(("vm", f"global_load_dwordx2 {v(epi['b2'], 2)}, {v(vER + 2)}, {s(P_B2, 2)}"))
            sides.append(("e", f"s_lshl_b32 {s(S_T1)}, {s(S_RB)}, 1"))
            sides.append(("e", f"s_add_u32 {s(S_T1)}, {s(S_T1)}, {s(S_HH)}"))
            sides.append(("e", f"s_lshl_b32 {s(S_T1)}, {s(S_T1)}, 2"))
            sides.append(("e", f"s_add_u32 {s(S_T1)}, {s(S_T1)}, {s(S_W)}"))
            sides.append(("e", f"s_mul_i32 {s(sOW)}, {s(S_T1)}, {16 * 1280}"))
            sides.append(("e", f"v_mul_u32_u24 {v(vER + 3)}, 1280, {v(vER)}"))
            sides.append(("e", f"v_add_u32 {v(vER + 3)}, {v(vER + 3)}, {v(vER + 2)}"))
            for k in range(6):
                sides.append(("vm", f"buffer_load_dwordx2 {v(epi['x'] + 2 * k, 2)}, {v(vER + 3)}, {s(R_X, 4)}, {s(sOW)} offen"))
                if k < 5:
                    sides.append(("e", f"s_add_u32 {s(sOW)}, {s(sOW)}, {3 * 1280}"))
        mains = []
        for mt in range(4):
            for nt in range(5):
                a0 = acc2 + 20 * mt + 4 * nt
                cin = "0" if i == 0 else v(a0, 4)
                mains.append(("e", f"v_mfma_f32_16x16x32_bf16 {v(a0, 4)}, {v(Wb[p] + 4 * nt, 4)}, {v(Hb[p] + 4 * mt, 4)}, {cin}"))
        ids = interleave(st, mains, sides)
        if i == 12 - (D - 1) - 2:
            fs_id = ids[0]
        if nxt < NST:
            last_id[nxt] = ids[-1]
        if i == NST - D + 1:
            epi["id"] = ids[-1]
        if i == NST - 2:
            fe = Wb[(i - 1) % D]
            fe2 = Hb[(i - 1) % D]
            E = [fe + 4 * k for k in range(5)] + [fe2]
            un = fe2 + 4
            gk = vX + 4
            st.e(f"s_lshl_b32 {s(S_T0)}, {s(S_HH)}, 2")
            st.e(f"s_add_u32 {s(S_T0)}, {s(S_T0)}, {s(S_W)}")
            st.e(f"s_lshl_b32 {s(S_T0)}, {s(S_T0)}, 6")
            st.e(f"s_add_u32 {s(S_T0)}, {s(S_T0)}, {GB}")
            st.e(f"v_lshl_add_u32 {v(vT)}, {v(vER)}, 2, {s(S_T0)}")
            gks = [vX + 4, vX + 5, vX + 6, vX + 7, vW, vW + 1]
            for k in range(6):
                st.lg(f"ds_read_b32 {v(gks[k])}, {v(vT)} offset:{12 * k}")
            st.e(f"v_mov_b32 {v(vT + 1)}, 0xffff0000")
            st.wait(vm=epi["id"], lg="all")
            for q, src in ((0, epi["dsk"]), (4, epi["b2"])):
                st.e(f"v_lshlrev_b32 {v(un + q)}, 16, {v(src)}")
                st.e(f"v_and_b32 {v(un + q + 1)}, {v(vT + 1)}, {v(src)}")
                st.e(f"v_lshlrev_b32 {v(un + q + 2)}, 16, {v(src + 1)}")
                st.e(f"v_and_b32 {v(un + q + 3)}, {v(vT + 1)}, {v(src + 1)}")
            for k in range(6):
                xs = epi["x"] + 2 * k
                st.e(f"v_lshlrev_b32 {v(E[k])}, 16, {v(xs)}")
                st.e(f"v_and_b32 {v(E[k] + 1)}, {v(vT + 1)}, {v(xs)}")
                st.e(f"v_lshlrev_b32 {v(E[k] + 2)}, 16, {v(xs + 1)}")
                st.e(f"v_and_b32 {v(E[k] + 3)}, {v(vT + 1)}, {v(xs + 1)}")
                for q in range(4):
                    st.e(f"v_fma_f32 {v(E[k] + q)}, {v(E[k] + q)}, {v(un + q)}, -{v(un + 4 + q)}")
                for q in range(4):
                    st.e(f"v_fma_f32 {v(E[k] + q)}, {v(E[k] + q)}, {v(gks[k])}, {v(un + 4 + q)}")
            epi["E"] = E
    stamp("kend")
    st.e(f"v_and_b32 {v(vT)}, 15, {v(V_LANE)}")
    st.e(f"v_mul_u32_u24 {v(vT)}, 336, {v(vT)}")
    st.e(f"v_lshrrev_b32 {v(vT + 1)}, 4, {v(V_LANE)}")
    st.e(f"v_lshl_add_u32 {v(vT)}, {v(vT + 1)}, 4, {v(vT)}")
    st.e(f"s_mul_i32 {s(S_T0)}, {s(S_W)}, {PARTW}")
    st.e(f"v_add_u32 {v(vT)}, {s(S_T0)}, {v(vT)}")
    st.e(f"s_mul_i32 {s(S_T0)}, {s(S_W)}, {16 * 336}")
    st.e(f"v_mul_u32_u24 {v(vT + 1)}, 336, {v(vER)}")
    st.e(f"v_lshl_add_u32 {v(vT + 1)}, {v(vER + 1)}, 4, {v(vT + 1)}")
    st.e(f"v_add_u32 {v(vT + 1)}, {s(S_T0)}, {v(vT + 1)}")
    st.e(f"v_add_u32 {v(vT + 2)}, {2 * PARTW}, {v(vT + 1)}")
    for mt in range(4):
        for nt in range(5):
            st.lg(f"ds_write_b128 {v(vT)}, {v(acc2 + 20 * mt + 4 * nt, 4)} offset:{mt * 16 * 336 + nt * 64}")
            if mt * 5 + nt == 12:
                st.wait(lg=st.lg_issued - 4)
    R_O = R_W1
    srd(st, R_O, P_OUT, 2048 * 2560)
    st.e(f"v_mul_u32_u24 {v(vER + 3)}, 2560, {v(vER)}")
    st.e(f"v_lshl_add_u32 {v(vER + 3)}, {v(vER + 2)}, 1, {v(vER + 3)}")
    st.e(f"v_cmp_gt_u32 vcc, 60, {v(V_LANE)}")
    st.e(f"v_mov_b32 {v(vER + 2)}, 0x80000000")
    st.e(f"s_mul_i32 {s(sOW)}, {s(S_T1)}, {16 * 2560}")
    st.e(f"v_cndmask_b32 {v(vER + 3)}, {v(vER + 2)}, {v(vER + 3)}, vcc")
    st.e(f"v_cmp_gt_u32 vcc, 20, {v(V_LANE)}")
    st.e("s_nop 0")
    st.wait(lg="all")
    st.e(f"v_cndmask_b32 {v(vER + 2)}, {v(vER + 2)}, {v(vER + 3)}, vcc")
    st.e("s_barrier")
    stamp("red")
    E = epi["E"]
    busy = set()
    for r in E:
        busy.update(range(r, r + 4))
    free = [r for r in range(BIG, 256, 4) if not (set(range(r, r + 4)) & busy)]
    rd = {}
    fi = 0
    order = []
    for k in range(6):
        for pw in range(4):
            rd[k, pw] = free[fi]
            fi += 1
    lgid = {}

    def issue_reads(k):
        for pw in range(4):
            ra = vT + 1 + (pw >> 1)
            lgid[k] = st.lg(f"ds_read_b128 {v(rd[k, pw], 4)}, {v(ra)} offset:{(pw & 1) * PARTW + k * 3 * 336}")

    for k in range(3):
        issue_reads(k)
    for k in range(6):
        st.wait(lg=lgid[k])
        if k + 3 < 6:
            issue_reads(k + 3)
        for q in (0, 2):
            st.e(f"v_pk_add_f32 {v(rd[k, 0] + q, 2)}, {v(rd[k, 0] + q, 2)}, {v(rd[k, 1] + q, 2)}")
            st.e(f"v_pk_add_f32 {v(rd[k, 2] + q, 2)}, {v(rd[k, 2] + q, 2)}, {v(rd[k, 3] + q, 2)}")
        for q in (0, 2):
            st.e(f"v_pk_add_f32 {v(E[k] + q, 2)}, {v(E[k] + q, 2)}, {v(rd[k, 0] + q, 2)}")
        for q in (0, 2):
            st.e(f"v_pk_add_f32 {v(E[k] + q, 2)}, {v(E[k] + q, 2)}, {v(rd[k, 2] + q, 2)}")
        st.vm(f"buffer_store_dwordx4 {v(E[k], 4)}, {v(vER + 3 if k < 5 else vER + 2)}, {s(R_O, 4)}, {s(sOW)} offen")
        if k < 5:
            st.e(f"s_add_u32 {s(sOW)}, {s(sOW)}, {3 * 2560}")
    skip = newlabel("noep")
    st.e(f"s_lshl_b32 {s(S_T0)}, {s(S_CS)}, 2")
    st.e(f"s_add_u32 {s(S_T0)}, {s(S_T0)}, {s(S_W)}")
    st.e(f"s_lshl_b32 {s(S_T0)}, {s(S_T0)}, 4")
    st.e(f"s_add_u32 {s(S_T0)}, {s(S_T0)}, {s(S_RB)}")
    st.e(f"s_cmp_lg_u32 {s(S_T0)}, 15")
    st.e(f"s_cbranch_scc1 {skip}")
    st.e(f"v_mov_b32 {v(vT)}, {s(S_NONCE)}")
    st.e("s_mov_b64 exec, 1")
    st.e(f"buffer_store_dword {v(vT)}, off, {s(R_WS, 4)}, 0 sc1")
    st.e("s_mov_b64 exec, -1")
    st.label(skip)
    if STAMPS:
        st.e("s_waitcnt vmcnt(0)")
    stamp("end")
    stamp.flush(vT)
    st.e("s_endpgm")
    return stamp.names


def gen_S(st):
    sr = Regs("s", S_FREE, 102)
    vr = Regs("v", 4, 256)
    st.label("L_S")
    st.e(f"s_sub_u32 {s(S_W)}, {s(S_W)}, 4")
    stamp = Stamper(st, sr, "S")
    stamp("start")
    R_A = sr.alloc("R_A", 4, 4)
    R_B = sr.alloc("R_B", 4, 4)
    sOA, sOB, sSA, sMA, sMB = [sr.alloc(n) for n in ("sOA", "sOB", "sSA", "sMA", "sMB")]
    sE5 = sr.alloc("sE5", 2)
    sW2, sMP = sr.alloc("sW2"), sr.alloc("sMP")
    sMask = [P_X, P_DSK, P_BX, P_B1, P_B2, P_OUT, P_DBG]
    sP = sr.alloc("sP", 4)
    vDA = vr.alloc("vDA", 5)
    vX = vr.alloc("vX", 8)
    vB = vr.alloc("vB", 8)
    vB2 = vr.alloc("vB2", 8)
    vL16b = vr.alloc("vL16b")
    vPF = vr.alloc("vPF")
    vPD = vr.alloc("vPD")
    vSig = vr.alloc("vSig")
    vSgn = vr.alloc("vSgn")
    vT = vr.alloc("vT", 4, 4)
    acc = [vr.alloc(f"acc{b}", 16, 4) for b in range(3)]
    frag = vr.alloc("frag", 32, 4)
    fX = [frag + 16 * p for p in range(2)]
    fB = [[frag + 16 * p + 4 + 4 * b for b in range(3)] for p in range(2)]
    names = ["lr", "li", "l16r", "l16i", "psr", "psi", "qr", "qi", "r8r", "r8i", "A", "Bc"]
    K = {n: [vr.alloc(f"{n}{b}") for b in range(3)] for n in names}
    tn = ["Lr", "Li", "dt", "la", "rv", "m", "an", "cs", "liu"]
    Tm = {n: [vr.alloc(f"t{n}{b}") for b in range(3)] for n in tn}
    big = vr.alloc("big", 48, 4)

    st.e(f"v_bfe_u32 {v(vT)}, {v(V_LANE)}, 1, 4")
    st.e(f"s_mul_i32 {s(S_T0)}, {s(S_CS)}, 40")
    st.e(f"v_add_u32 {v(vT)}, {s(S_T0)}, {v(vT)}")
    st.e(f"v_add_u32 {v(vT + 1)}, 32, {v(vT)}")
    st.e(f"v_min_u32 {v(vT + 1)}, 639, {v(vT + 1)}")
    st.e(f"v_lshlrev_b32 {v(vT)}, 1, {v(vT)}")
    st.e(f"v_lshlrev_b32 {v(vT + 1)}, 1, {v(vT + 1)}")
    for n, ptr in (("Lr", P_LRE), ("Li", P_LIM), ("dt", P_LDT)):
        st.vm(f"global_load_ushort {v(Tm[n][0])}, {v(vT)}, {s(ptr, 2)}")
        st.vm(f"global_load_ushort {v(Tm[n][1])}, {v(vT)}, {s(ptr, 2)} offset:32")
        st.vm(f"global_load_ushort {v(Tm[n][2])}, {v(vT + 1)}, {s(ptr, 2)}")
    lC, lJ = newlabel("packC"), newlabel("packJ")
    sV = sOB
    st.e(f"s_lshl_b32 {s(sV)}, s2, 2")
    st.e(f"s_add_u32 {s(sV)}, {s(sV)}, {s(S_W)}")
    st.e(f"s_sub_u32 {s(S_T0)}, {s(sV)}, 880")
    st.e(f"s_cselect_b32 {s(sV)}, {s(sV)}, {s(S_T0)}")
    st.e(f"v_lshrrev_b32 {v(vT)}, 3, {v(V_LANE)}")
    st.e(f"v_mul_u32_u24 {v(vT)}, 1280, {v(vT)}")
    st.e(f"v_and_b32 {v(vT + 1)}, 7, {v(V_LANE)}")
    st.e(f"v_lshl_add_u32 {v(vT)}, {v(vT + 1)}, 4, {v(vT)}")
    st.e(f"s_mul_i32 {s(S_T0)}, {s(S_W)}, 7680")
    st.e(f"s_add_u32 m0, {s(S_T0)}, {TS}")
    sTy = sE5
    st.e(f"s_sub_u32 {s(S_T1)}, {s(sV)}, 480")
    st.e(f"s_cselect_b32 {s(sTy)}, 0, 1")
    st.e(f"s_cselect_b32 {s(S_T1)}, {s(sV)}, {s(S_T1)}")
    st.e(f"s_mul_i32 {s(S_T2)}, {s(S_T1)}, 6554")
    st.e(f"s_lshr_b32 {s(S_T2)}, {s(S_T2)}, 16")
    st.e(f"s_mul_i32 {s(S_T3)}, {s(S_T2)}, 10")
    st.e(f"s_sub_u32 {s(S_T3)}, {s(S_T1)}, {s(S_T3)}")
    st.e(f"s_cmp_eq_u32 {s(sTy)}, 1")
    st.e(f"s_cbranch_scc1 {lC}")
    srd(st, R_A, P_W2, 1536 * 1280)
    st.e(f"s_mul_i32 {s(sOA)}, {s(S_T2)}, {32 * 1280}")
    st.e(f"s_lshl_b32 {s(S_T0)}, {s(S_T3)}, 7")
    st.e(f"s_add_u32 {s(sOA)}, {s(sOA)}, {s(S_T0)}")
    for i in range(4):
        st.e(f"buffer_load_dwordx4 {v(vT)}, {s(R_A, 4)}, {s(sOA)} offen offset:{1024 * i} lds")
        if i < 3:
            st.e(f"s_add_u32 {s(sOA)}, {s(sOA)}, {10240 - 1024}")
    st.e(f"s_mul_i32 {s(S_T2)}, {s(S_T2)}, 5120")
    st.e(f"s_add_u32 {s(S_T2)}, {s(S_T2)}, {WS_W2P:#x}")
    st.e(f"s_lshl_b32 {s(S_T3)}, {s(S_T3)}, 2")
    for k in range(4):
        st.e(f"s_add_u32 {s(S_T0)}, {s(S_T3)}, {k}")
        st.e(f"s_mul_i32 {s(S_T1)}, {s(S_T0)}, 205")
        st.e(f"s_lshr_b32 {s(S_T1)}, {s(S_T1)}, 10")
        st.e(f"s_mul_i32 {s(S_T1)}, {s(S_T1)}, {NSS - 5 * 1024}")
        st.e(f"s_lshl_b32 {s(S_T0)}, {s(S_T0)}, 10")
        st.e(f"s_add_u32 {s(S_T0)}, {s(S_T0)}, {s(S_T1)}")
        st.e(f"s_add_u32 {s(sP + k)}, {s(S_T0)}, {s(S_T2)}")
    st.e(f"s_branch {lJ}")
    st.label(lC)
    srd(st, R_A, P_CRE, 640 * 1280)
    srd(st, R_B, P_CIM, 640 * 1280)
    st.e(f"s_mul_i32 {s(sOA)}, {s(S_T2)}, {16 * 1280}")
    st.e(f"s_lshl_b32 {s(S_T0)}, {s(S_T3)}, 7")
    st.e(f"s_add_u32 {s(sOA)}, {s(sOA)}, {s(S_T0)}")
    st.e(f"s_add_u32 {s(S_T0)}, {s(sOA)}, {10240 - 1024}")
    st.e(f"buffer_load_dwordx4 {v(vT)}, {s(R_A, 4)}, {s(sOA)} offen lds")
    st.e(f"buffer_load_dwordx4 {v(vT)}, {s(R_A, 4)}, {s(S_T0)} offen offset:1024 lds")
    st.e(f"s_add_u32 m0, m0, 2048")
    st.e("s_nop 0")
    st.e(f"buffer_load_dwordx4 {v(vT)}, {s(R_B, 4)}, {s(sOA)} offen lds")
    st.e(f"buffer_load_dwordx4 {v(vT)}, {s(R_B, 4)}, {s(S_T0)} offen offset:1024 lds")
    st.e(f"s_mul_i32 {s(S_T1)}, {s(S_T2)}, 205")
    st.e(f"s_lshr_b32 {s(S_T1)}, {s(S_T1)}, 10")
    st.e(f"s_mul_i32 {s(S_T1)}, {s(S_T1)}, {NSS - 5 * 1024}")
    st.e(f"s_lshl_b32 {s(S_T2)}, {s(S_T2)}, 10")
    st.e(f"s_add_u32 {s(S_T1)}, {s(S_T1)}, {s(S_T2)}")
    st.e(f"s_mul_i32 {s(S_T3)}, {s(S_T3)}, {4 * 5120}")
    st.e(f"s_add_u32 {s(S_T1)}, {s(S_T1)}, {s(S_T3)}")
    st.e(f"s_add_u32 {s(sP)}, {s(S_T1)}, {WS_W2P + 48 * 5120:#x}")
    for k in range(1, 4):
        st.e(f"s_add_u32 {s(sP + k)}, {s(sP + k - 1)}, 5120")
    st.label(lJ)
    st.vm_issued += 4
    pack_ld = st.vm_issued
    sTy2 = sW2
    st.e(f"s_mov_b32 {s(sTy2)}, {s(sTy)}")
    lW, lK = newlabel("dW"), newlabel("dK")
    st.e(f"s_cmp_ge_u32 {s(S_W)}, 2")
    st.e(f"s_cbranch_scc1 {lW}")
    st.e(f"s_cmp_eq_u32 {s(S_W)}, 0")
    st.e(f"s_cselect_b32 {s(R_A)}, {s(P_BRE)}, {s(P_BIM)}")
    st.e(f"s_cselect_b32 {s(R_A + 1)}, {s(P_BRE + 1)}, {s(P_BIM + 1)}")
    st.e(f"s_mov_b32 {s(R_A + 2)}, {640 * 1280:#x}")
    st.e(f"s_mov_b32 {s(R_A + 3)}, 0x20000")
    st.e(f"s_mov_b32 {s(R_B)}, {s(R_A)}")
    st.e(f"s_mov_b32 {s(R_B + 1)}, {s(R_A + 1)}")
    st.e(f"s_mov_b32 {s(R_B + 2)}, {640 * 1280:#x}")
    st.e(f"s_mov_b32 {s(R_B + 3)}, 0x20000")
    st.e(f"v_lshrrev_b32 {v(vT + 1)}, 4, {v(V_LANE)}")
    st.e(f"s_lshl_b32 {s(S_T0)}, {s(S_W)}, 2")
    st.e(f"v_xor_b32 {v(vT + 1)}, {s(S_T0)}, {v(vT + 1)}")
    st.e(f"v_lshlrev_b32 {v(vT + 1)}, 4, {v(vT + 1)}")
    st.e(f"v_xor_b32 {v(vDA)}, {v(vT + 1)}, {v(vT)}")
    st.e(f"v_xor_b32 {v(vDA + 1)}, 64, {v(vDA)}")
    st.e(f"v_add_u32 {v(vDA + 1)}, {10240 - 1024}, {v(vDA + 1)}")
    st.e(f"v_add_u32 {v(vDA + 2)}, {2 * (10240 - 1024)}, {v(vDA)}")
    st.e(f"v_add_u32 {v(vDA + 3)}, {2 * (10240 - 1024)}, {v(vDA + 1)}")
    st.e(f"v_add_u32 {v(vDA + 4)}, {4 * 10240}, {v(vDA)}")
    st.e(f"s_mul_i32 {s(sOA)}, {s(S_CS)}, {40 * 1280}")
    st.e(f"s_mov_b32 {s(sOB)}, {s(sOA)}")
    st.e(f"s_mov_b32 {s(sSA)}, 128")
    st.e(f"s_mul_i32 {s(sMA)}, {s(S_W)}, 5120")
    st.e(f"s_add_u32 {s(sMA)}, {s(sMA)}, {O_BRE}")
    st.e(f"s_add_u32 {s(sMB)}, {s(sMA)}, 4096")
    st.e(f"s_mov_b64 {s(sE5, 2)}, -1")
    st.e(f"s_branch {lK}")
    st.label(lW)
    srd(st, R_A, P_W1, 640 * 3072)
    srd(st, R_B, P_GATE, 1280)
    st.e(f"s_sub_u32 {s(S_T0)}, {s(S_W)}, 1")
    st.e(f"s_lshl_b32 {s(S_T0)}, {s(S_T0)}, 8")
    for i in range(4):
        st.e(f"v_add_u32 {v(vT + 1)}, {s(S_T0)}, {v(V_LANE)}")
        st.e(f"v_mul_u32_u24 {v(vT + 2)}, 43691, {v(vT + 1)}")
        st.e(f"v_lshrrev_b32 {v(vT + 2)}, 19, {v(vT + 2)}")
        st.e(f"v_mul_u32_u24 {v(vT + 2)}, {3072 - 192}, {v(vT + 2)}")
        st.e(f"v_lshl_add_u32 {v(vDA + i)}, {v(vT + 1)}, 4, {v(vT + 2)}")
        if i:
            st.e(f"v_subrev_u32 {v(vDA + i)}, {1024 * i}, {v(vDA + i)}")
        if i < 3:
            st.e(f"s_add_u32 {s(S_T0)}, {s(S_T0)}, 64")
    st.e(f"v_mov_b32 {v(vDA + 4)}, {v(V_L16)}")
    st.e(f"s_mul_i32 {s(sOA)}, {s(S_CS)}, 192")
    st.e(f"s_mov_b32 {s(sOB)}, 0")
    st.e(f"s_mov_b32 {s(sSA)}, {64 * 3072}")
    st.e(f"s_sub_u32 {s(sMA)}, {s(S_W)}, 1")
    st.e(f"s_lshl_b32 {s(sMA)}, {s(sMA)}, 12")
    st.e(f"s_add_u32 {s(sMA)}, {s(sMA)}, {O_W1}")
    st.e(f"s_mov_b32 {s(sMB)}, {O_GATE}")
    st.e(f"s_mov_b64 {s(sE5, 2)}, 0xff")
    st.label(lK)

    def dma_chunk(c):
        slot = c % 3
        out = [("e", f"s_add_u32 m0, {s(sMA)}, {slot * SL}"),
               ("e", "s_nop 0")]
        for i in range(4):
            out.append(("vm", f"buffer_load_dwordx4 {v(vDA + i)}, {s(R_A, 4)}, {s(sOA)} offen offset:{1024 * i} lds"))
        out.append(("e", f"s_add_u32 m0, {s(sMB)}, {slot * SL}"))
        out.append(("e", f"s_add_u32 {s(sOA)}, {s(sOA)}, {s(sSA)}"))
        out.append(("vm", f"s_mov_b64 exec, {s(sE5, 2)}\n"
                          f"    buffer_load_dwordx4 {v(vDA + 4)}, {s(R_B, 4)}, {s(sOB)} offen lds\n"
                          f"    s_mov_b64 exec, -1"))
        out.append(("e", f"s_add_u32 {s(sOB)}, {s(sOB)}, 128"))
        return out

    chunk_id = {}
    for c in range(3):
        for it in dma_chunk(c):
            r = put(st, it)
            if r:
                chunk_id[c] = r
    st.e(f"v_mov_b32 {v(vT + 1)}, {SY}")
    st.e(f"v_lshl_add_u32 {v(vT + 1)}, {v(V_LANE)}, 2, {v(vT + 1)}")
    st.e(f"v_mov_b32 {v(vT + 2)}, 0")
    st.e("s_mov_b64 exec, 0xffff")
    st.lg(f"ds_write_b32 {v(vT + 1)}, {v(vT + 2)}")
    st.e("s_mov_b64 exec, -1")
    xread_addrs(st, vX, vT)
    st.e(f"v_and_b32 {v(vT)}, 1, {v(V_LANE)}")
    st.e(f"v_bfe_u32 {v(vT + 1)}, {v(V_LANE)}, 1, 4")
    st.e(f"v_mad_u32_u24 {v(vT + 1)}, {v(vT)}, 40, {v(vT + 1)}")
    st.e(f"v_bfe_u32 {v(vT + 2)}, {v(vT + 1)}, 1, 3")
    st.e(f"v_lshrrev_b32 {v(vT + 3)}, 5, {v(V_LANE)}")
    st.e(f"v_xor_b32 {v(vT + 2)}, {v(vT + 2)}, {v(vT + 3)}")
    st.e(f"v_lshlrev_b32 {v(vT + 2)}, 4, {v(vT + 2)}")
    st.e(f"v_lshl_add_u32 {v(vT + 1)}, {v(vT + 1)}, 7, {v(vT + 2)}")
    st.e(f"v_add_u32 {v(vB)}, {O_BRE}, {v(vT + 1)}")
    st.e(f"v_add_u32 {v(vB2)}, 4096, {v(vB)}")
    st.e(f"v_lshlrev_b32 {v(vT + 1)}, 4, {v(vT + 3)}")
    st.e(f"v_add_u32 {v(vT + 1)}, {O_GATE}, {v(vT + 1)}")
    st.e(f"v_and_b32 {v(vT + 2)}, 16, {v(V_LANE)}")
    st.e(f"v_cmp_eq_u32 vcc, 0, {v(vT + 2)}")
    st.e(f"s_lshl_b32 {s(S_T0)}, {s(S_W)}, 1")
    st.e(f"v_add_u32 {v(vSig)}, {s(S_T0)}, {v(vT + 3)}")
    st.e(f"v_cndmask_b32 {v(vB2)}, {v(vT + 1)}, {v(vB2)}, vcc")
    for base in (vB, vB2):
        for k in range(1, 4):
            st.e(f"v_xor_b32 {v(base + k)}, {32 * k}, {v(base)}")
        for k in range(4):
            st.e(f"v_add_u32 {v(base + 4 + k)}, {2 * SL}, {v(base + k)}")
    st.e(f"v_cvt_f32_u32 {v(vT)}, {v(vT)}")
    st.e(f"v_fma_f32 {v(vSgn)}, {v(vT)}, 2.0, -1.0")
    st.e(f"v_add_u32 {v(vL16b)}, 3072, {v(V_L16)}")
    lC2, lJ2 = newlabel("packC"), newlabel("packJ")
    st.e(f"s_mul_i32 {s(S_T0)}, {s(S_W)}, 7680")
    st.e(f"s_add_u32 {s(S_T0)}, {s(S_T0)}, {TS}")
    st.e(f"s_cmp_eq_u32 {s(sTy2)}, 1")
    st.e(f"s_cbranch_scc1 {lC2}")
    st.e(f"v_bfe_u32 {v(vT)}, {v(V_LANE)}, 2, 3")
    st.e(f"v_lshrrev_b32 {v(vT + 1)}, 5, {v(V_LANE)}")
    st.e(f"v_lshl_add_u32 {v(vT)}, {v(vT + 1)}, 4, {v(vT)}")
    st.e(f"v_and_b32 {v(vT + 1)}, 3, {v(V_LANE)}")
    st.e(f"v_lshlrev_b32 {v(vT + 1)}, 3, {v(vT + 1)}")
    st.e(f"v_lshl_add_u32 {v(vT)}, {v(vT)}, 7, {v(vT + 1)}")
    st.e(f"v_add_u32 {v(vT)}, {s(S_T0)}, {v(vT)}")
    st.wait(vm=pack_ld)
    for k in range(4):
        for e2 in range(2):
            st.e(f"ds_read_b64_tr_b16 {v(big + 4 * k + 2 * e2, 2)}, {v(vT)} offset:{e2 * 1024 + k * 32}")
    st.e(f"s_branch {lJ2}")
    st.label(lC2)
    st.e(f"v_and_b32 {v(vT)}, 31, {v(V_LANE)}")
    st.e(f"v_lshrrev_b32 {v(vT + 1)}, 5, {v(V_LANE)}")
    st.e(f"v_lshlrev_b32 {v(vT + 1)}, 4, {v(vT + 1)}")
    st.e(f"v_lshl_add_u32 {v(vT)}, {v(vT)}, 7, {v(vT + 1)}")
    st.e(f"v_add_u32 {v(vT)}, {s(S_T0)}, {v(vT)}")
    st.wait(vm=pack_ld)
    for k in range(4):
        st.e(f"ds_read_b128 {v(big + 4 * k, 4)}, {v(vT)} offset:{k * 32}")
    st.label(lJ2)
    nonce_from_epoch(st)
    st.e("s_waitcnt lgkmcnt(0)")
    for k in range(4):
        pack_st = st.vm(f"buffer_store_dwordx4 {v(big + 4 * k, 4)}, {v(V_L16)}, {s(R_WS, 4)}, {s(sP + k)} offen sc1")
    stamp("packst")
    pack_flag_addr(st, vPF, vT)
    st.e(f"s_mul_i32 {s(sW2)}, {s(S_NS)}, {NSS}")
    st.e(f"s_mul_i32 {s(S_T0)}, {s(S_W)}, {12 * 5120}")
    st.e(f"s_add_u32 {s(sW2)}, {s(sW2)}, {s(S_T0)}")
    st.e(f"s_add_u32 {s(sW2)}, {s(sW2)}, {WS_W2P + 2 * 5120 + 3072:#x}")
    st.e(f"s_lshl_b32 {s(sMP)}, {s(S_W)}, 13")
    st.e(f"s_add_u32 {s(sMP)}, {s(sMP)}, 4096")

    fill = []

    def f3(fmt, **kw):
        for b in range(3):
            m = {k: v(val[b]) for k, val in {**K, **Tm}.items()}
            m.update(kw)
            fill.append(("e", fmt.format(**m)))

    sg, sig = v(vSgn), v(vSig)
    f3("v_lshlrev_b32 {dt}, 16, {dt}")
    f3("v_lshlrev_b32 {Lr}, 16, {Lr}")
    f3("v_lshlrev_b32 {Li}, 16, {Li}")
    f3("v_mul_f32 {dt}, " + LOG2E + ", {dt}")
    f3("v_exp_f32 {dt}, {dt}")
    f3("v_cvt_pk_bf16_f32 {dt}, {dt}, {dt}")
    f3("v_lshlrev_b32 {dt}, 16, {dt}")
    f3("v_mul_f32 {la}, {dt}, {Lr}")
    f3("v_mul_f32 {rv}, {dt}, {Li}")
    f3("v_mul_f32 {la}, " + LOG2E + ", {la}")
    f3("v_mul_f32 {rv}, 0.15915494, {rv}")

    def powr(nop, r, i, keep_unsigned=False):
        if nop is None:
            f3("v_exp_f32 {m}, {la}")
            f3("v_fract_f32 {an}, {rv}")
        else:
            f3("v_mul_f32 {m}, " + nop + ", {la}")
            f3("v_mul_f32 {an}, " + nop + ", {rv}")
            f3("v_exp_f32 {m}, {m}")
            f3("v_fract_f32 {an}, {an}")
        f3("v_cos_f32 {cs}, {an}")
        f3("v_sin_f32 {an}, {an}")
        f3("v_mul_f32 {" + r + "}, {m}, {cs}")
        if keep_unsigned:
            f3("v_mul_f32 {liu}, {m}, {an}")
            f3("v_mul_f32 {" + i + "}, " + sg + ", {liu}")
        else:
            f3("v_mul_f32 {m}, " + sg + ", {m}")
            f3("v_mul_f32 {" + i + "}, {m}, {an}")

    powr(None, "lr", "li", keep_unsigned=True)
    f3("v_add_f32 {cs}, -1.0, {lr}")
    f3("v_mul_f32 {m}, {Lr}, {Lr}")
    f3("v_fmac_f32 {m}, {Li}, {Li}")
    f3("v_rcp_f32 {m}, {m}")
    f3("v_mul_f32 {A}, {cs}, {Lr}")
    f3("v_fmac_f32 {A}, {liu}, {Li}")
    f3("v_mul_f32 {Bc}, {liu}, {Lr}")
    f3("v_fma_f32 {Bc}, -{cs}, {Li}, {Bc}")
    f3("v_mul_f32 {m}, -2.0, {m}")
    f3("v_mul_f32 {A}, {m}, {A}")
    f3("v_mul_f32 {Bc}, {m}, {Bc}")
    f3("v_mul_f32 {A}, " + sg + ", {A}")
    powr("0x41800000", "l16r", "l16i")
    fill.append(("e", f"v_cvt_f32_u32 {v(vT + 2)}, {sig}"))
    fill.append(("e", f"v_mul_f32 {v(vT + 2)}, 0x41800000, {v(vT + 2)}"))
    fill.append(("e", f"v_mul_f32 {v(vT + 3)}, 0x41000000, {v(vT + 2)}"))
    powr(v(vT + 2), "psr", "psi")
    powr(v(vT + 3), "qr", "qi")
    powr("0x44800000", "r8r", "r8i")
    for j in range(1, 8):
        fill.append(("e", f"v_cmp_eq_u32 {s(sMask[j - 1], 2)}, {j}, {sig}"))
    per = -(-len(fill) // 38)

    def reads(c, sidx):
        slot, p = c % 3, sidx & 1
        out = []
        ra, off = slot_addr(vX + sidx, vX + 4 + sidx, slot, O_X)
        out.append(("lg", f"ds_read_b128 {v(fX[p], 4)}, {v(ra)} offset:{off}"))
        for b in range(3):
            base = vB if b < 2 else vB2
            ra, off = slot_addr(base + sidx, base + 4 + sidx, slot, 2048 * b if b < 2 else 0)
            out.append(("lg", f"ds_read_b128 {v(fB[p][b], 4)}, {v(ra)} offset:{off}"))
        return out

    def mfmas(c, sidx):
        p = sidx & 1
        first = (c == 0 and sidx == 0)
        return [("e", f"v_mfma_f32_32x32x16_bf16 {v(acc[b], 16)}, {v(fX[p], 4)}, {v(fB[p][b], 4)}, "
                      + ("0" if first else v(acc[b], 16))) for b in range(3)]

    st.wait(vm=chunk_id[0], lg="all")
    st.e("s_barrier")
    stamp("B0")
    for it in reads(0, 0):
        put(st, it)
    w2ids = []
    for c in range(10):
        for sidx in range(4):
            fl, fill = fill[:per], fill[per:]
            if sidx < 3:
                st.wait(lg="all")
                interleave(st, mfmas(c, sidx), reads(c, sidx + 1) + fl)
            else:
                if c < 9:
                    st.wait(vm=chunk_id[c + 1], lg="all")
                else:
                    st.wait(lg="all")
                if c == 7:
                    flag_check(st, vPD, f"buffer_load_dword {v(vPD)}, {v(vPF)}, {s(R_WS, 4)}, 0 offen sc1")
                st.e("s_barrier")
                if c in (2, 5, 8):
                    stamp(f"B{c + 1}")
                sides = reads(c + 1, 0) if c < 9 else []
                if c == 2:
                    assert chunk_id[3] > pack_st
                    sides = sides + [
                        ("e", f"s_lshl_b32 {s(S_T0)}, s2, 5"),
                        ("e", f"s_add_u32 {s(S_T0)}, {s(S_T0)}, {s(S_W)}"),
                        ("e", f"s_lshl_b32 {s(S_T0)}, {s(S_T0)}, 2"),
                        ("e", f"s_add_u32 {s(S_T0)}, {s(S_T0)}, {WS_FP:#x}"),
                        ("e", f"v_mov_b32 {v(vT)}, {s(S_NONCE)}"),
                        ("vm", f"s_mov_b64 exec, 1\n"
                               f"    buffer_store_dword {v(vT)}, off, {s(R_WS, 4)}, {s(S_T0)} sc1\n"
                               f"    s_mov_b64 exec, -1")]
                if c == 5:
                    sides = sides + [("vm", f"buffer_load_dword {v(vPD)}, {v(vPF)}, {s(R_WS, 4)}, 0 offen sc1")]
                if c + 3 <= 9:
                    sides = sides + dma_chunk(c + 3)
                else:
                    sides = sides + w2_prefetch(st, c - 7, "S", sW2, vL16b, sMP)
                ids = interleave(st, mfmas(c, sidx), sides + fl)
                if c + 3 <= 9:
                    chunk_id[c + 3] = ids[-1]
                else:
                    w2ids.append(ids[-1])
    assert not fill
    stamp("loopend")
    vEX = vX
    vSYa = vX + 1
    st.e(f"v_and_b32 {v(vT)}, 31, {v(V_LANE)}")
    st.e(f"v_lshlrev_b32 {v(vT)}, 5, {v(vT)}")
    st.e(f"v_add_u32 {v(vX + 2)}, {EX1}, {v(vT)}")
    st.e(f"v_lshl_add_u32 {v(vEX)}, {v(vSig)}, 2, {v(vX + 2)}")
    st.e(f"v_mov_b32 {v(vSYa)}, {SY}")
    st.e(f"s_lshl_b32 {s(S_T0)}, {s(S_W)}, 2")
    st.e(f"v_add_u32 {v(vX + 3)}, {s(S_T0)}, {v(vSYa)}")
    st.e(f"v_mov_b32 {v(vX + 4)}, -1")
    st.nop(5)
    hA = [frag + b for b in range(3)]
    hB = [frag + 3 + b for b in range(3)]
    cur = [acc[b] for b in range(3)]
    for j in range(1, 16):
        dst = hA if j & 1 else hB
        for b in range(3):
            st.e(f"v_fma_f32 {v(dst[b])}, {v(K['lr'][b])}, {v(cur[b])}, {v(acc[b] + j)}")
        for b in range(3):
            st.e(f"v_fmac_f32_dpp {v(dst[b])}, {v(cur[b])}, {v(K['li'][b])} {DPP}")
        cur = dst
    for b in range(3):
        st.lg(f"ds_write_b32 {v(vEX)}, {v(cur[b])} offset:{1024 * b}")
    st.lg(f"ds_write_b32 {v(vX + 3)}, {v(vX + 4)}")
    lds_flag_wait(st, vSYa, 0, vT)
    Ev = [big + 8 * b for b in range(3)]
    for b in range(3):
        for q in range(2):
            st.lg(f"ds_read_b128 {v(Ev[b] + 4 * q, 4)}, {v(vX + 2)} offset:{1024 * b + 16 * q}")
    Pv = [frag + 6 + b for b in range(3)]
    Tv = [frag + 10 + 2 * b for b in range(3)]
    for b in range(3):
        st.e(f"v_mov_b32 {v(Pv[b])}, 0")
        st.e(f"v_mov_b32 {v(Tv[b] + 1)}, {s(S_NONCE)}")
    st.wait(lg="all")
    cur = [Ev[b] for b in range(3)]
    for j in range(1, 8):
        dst = Tv if j == 7 else (hA if j & 1 else hB)
        for b in range(3):
            st.e(f"v_fma_f32 {v(dst[b])}, {v(K['l16r'][b])}, {v(cur[b])}, {v(Ev[b] + j)}")
        for b in range(3):
            st.e(f"v_fmac_f32_dpp {v(dst[b])}, {v(cur[b])}, {v(K['l16i'][b])} {DPP}")
        for b in range(3):
            st.e(f"v_cndmask_b32 {v(Pv[b])}, {v(Pv[b])}, {v(cur[b])}, {s(sMask[j - 1], 2)}")
        cur = dst
    st.e(f"s_lshl_b32 {s(S_T0)}, {s(S_RB)}, 4")
    st.e(f"s_add_u32 {s(S_T0)}, {s(S_T0)}, {s(S_CS)}")
    st.e(f"s_mul_i32 {s(S_T0)}, {s(S_T0)}, 768")
    st.e(f"s_add_u32 {s(S_T0)}, {s(S_T0)}, {WS_T:#x}")
    st.e(f"s_cmp_eq_u32 {s(S_W)}, 0")
    st.e(f"s_cselect_b32 {s(S_T1)}, 0, 0x80000000")
    st.e(f"v_lshl_add_u32 {v(vT)}, {v(V_LANE)}, 3, {s(S_T1)}")
    st.e("s_mov_b32 exec_hi, 0")
    for b in range(3):
        st.vm(f"buffer_store_dwordx2 {v(Tv[b], 2)}, {v(vT)}, {s(R_WS, 4)}, {s(S_T0)} offen offset:{256 * b} sc1")
    st.e("s_mov_b32 exec_hi, -1")
    stamp("Tpub")
    gv = big + 24
    st.e(f"v_lshlrev_b32 {v(vT)}, 6, {v(vSig)}")
    st.e(f"v_add_u32 {v(vX + 5)}, {GS}, {v(vT)}")
    st.e(f"s_mov_b32 exec_lo, 0x10000")
    st.e(f"s_mov_b32 exec_hi, 0x10000")
    for q in range(4):
        st.lg(f"ds_write_b128 {v(vX + 5)}, {v(acc[2] + 4 * q, 4)} offset:{16 * q}")
    st.e("s_mov_b64 exec, -1")
    st.e(f"v_and_b32 {v(vT)}, 31, {v(V_LANE)}")
    st.e(f"s_lshl_b32 {s(S_T0)}, {s(S_W)}, 7")
    st.e(f"s_add_u32 {s(S_T0)}, {s(S_T0)}, {GS}")
    st.e(f"v_lshl_add_u32 {v(vT)}, {v(vT)}, 2, {s(S_T0)}")
    st.lg(f"ds_read_b32 {v(vT + 1)}, {v(vT)}")
    st.wait(lg="all")
    st.e(f"v_mul_f32 {v(vT + 1)}, {NLOG2E}, {v(vT + 1)}")
    st.e(f"v_exp_f32 {v(vT + 1)}, {v(vT + 1)}")
    st.e("s_nop 0")
    st.e(f"v_add_f32 {v(vT + 1)}, 1.0, {v(vT + 1)}")
    st.e(f"v_rcp_f32 {v(vT + 1)}, {v(vT + 1)}")
    st.e("s_nop 0")
    st.lg(f"ds_write_b32 {v(vT)}, {v(vT + 1)} offset:512")
    for q in range(4):
        st.lg(f"ds_read_b128 {v(gv + 4 * q, 4)}, {v(vX + 5)} offset:{512 + 16 * q}")
    st.wait(vm=w2ids[-1])
    st.lg(f"ds_write_b32 {v(vX + 3)}, {v(vX + 4)} offset:32")
    vC = vB
    mk = [P_BRE, P_BIM, P_CRE, P_CIM]
    st.e(f"s_sub_u32 {s(S_T0)}, {s(S_RB)}, 1")
    st.e(f"v_sub_u32 {v(vT)}, {s(S_T0)}, {v(vSig)}")
    st.e(f"v_and_b32 {v(vT + 1)}, 31, {v(V_LANE)}")
    st.e(f"s_mul_i32 {s(S_T1)}, {s(S_CS)}, 768")
    st.e(f"s_add_u32 {s(S_T1)}, {s(S_T1)}, {WS_T:#x}")
    st.e(f"v_lshl_add_u32 {v(vT + 1)}, {v(vT + 1)}, 3, {s(S_T1)}")
    st.e(f"v_mov_b32 {v(vT + 3)}, 0x80000000")
    st.e(f"s_mov_b32 {s(S_T2)}, 0xffff0000")
    st.e(f"s_mov_b32 {s(S_T3)}, 0xffff0000")
    for dl in range(2):
        if dl:
            st.e(f"v_subrev_u32 {v(vT)}, 8, {v(vT)}")
        st.e(f"v_cmp_gt_i32 {s(mk[2 * dl], 2)}, 0, {v(vT)}")
        st.e(f"v_mul_i32_i24 {v(vT + 2)}, {16 * 768}, {v(vT)}")
        st.e(f"v_add_u32 {v(vT + 2)}, {v(vT + 2)}, {v(vT + 1)}")
        st.e(f"s_or_b64 {s(mk[2 * dl + 1], 2)}, {s(mk[2 * dl], 2)}, {s(S_T2, 2)}")
        st.e(f"v_cndmask_b32 {v(vC + 2 * dl)}, {v(vT + 2)}, {v(vT + 3)}, {s(mk[2 * dl], 2)}")
        st.e(f"v_cndmask_b32 {v(vC + 2 * dl + 1)}, {v(vT + 2)}, {v(vT + 3)}, {s(mk[2 * dl + 1], 2)}")
    Cv = [[big + 4 * b + 2 * dl for dl in range(2)] for b in range(3)]

    def carry_loads():
        out = []
        for dl in range(2):
            for b in range(3):
                ra = vC + 2 * dl + (1 if b == 2 else 0)
                out.append(f"buffer_load_dwordx2 {v(Cv[b][dl], 2)}, {v(ra)}, {s(R_WS, 4)}, 0 offen offset:{256 * b} sc1")
        return out

    tt = [frag + 16 + k for k in range(6)]
    for j in range(16):
        for b in range(3):
            st.e(f"v_mul_f32_dpp {v(tt[3 * (j & 1) + b])}, {v(acc[b] + j)}, {v(K['Bc'][b])} {DPP}")
        for b in range(3):
            st.e(f"v_fma_f32 {v(acc[b] + j)}, {v(K['A'][b])}, {v(acc[b] + j)}, {v(tt[3 * (j & 1) + b])}")
    stamp("win")
    top, done = newlabel("cp"), newlabel("cok")
    st.e(f"s_mov_b32 {s(S_SPIN)}, {OPT['spin']}")
    st.label(top)
    for t in carry_loads():
        st.e(t)
    st.e(f"s_mov_b64 {s(S_T0, 2)}, -1")
    st.e("s_waitcnt vmcnt(0)")
    for dl in range(2):
        for b in range(3):
            st.e(f"v_cmp_eq_u32 vcc, {s(S_NONCE)}, {v(Cv[b][dl] + 1)}")
            st.e("s_nop 0")
            st.e(f"s_or_b64 vcc, vcc, {s(mk[2 * dl + (1 if b == 2 else 0)], 2)}")
            st.e(f"s_and_b64 {s(S_T0, 2)}, {s(S_T0, 2)}, vcc")
    st.e(f"s_cmp_eq_u64 {s(S_T0, 2)}, -1")
    st.e(f"s_cbranch_scc1 {done}")
    st.e("s_sleep 4")
    st.e(f"s_sub_u32 {s(S_SPIN)}, {s(S_SPIN)}, 1")
    st.e(f"s_cbranch_scc0 {top}")
    st.label(done)
    stamp("carry")
    for b in range(3):
        st.e(f"v_fma_f32 {v(hA[b])}, {v(K['r8r'][b])}, {v(Cv[b][1])}, {v(Cv[b][0])}")
    for b in range(3):
        st.e(f"v_fmac_f32_dpp {v(hA[b])}, {v(Cv[b][1])}, {v(K['r8i'][b])} {DPP}")
    for b in range(3):
        st.e(f"v_mul_f32 {v(hB[b])}, {v(K['qr'][b])}, {v(hA[b])}")
    for b in range(3):
        st.e(f"v_fmac_f32_dpp {v(hB[b])}, {v(hA[b])}, {v(K['qi'][b])} {DPP}")
    for b in range(3):
        st.lg(f"ds_write_b32 {v(vEX)}, {v(hB[b])} offset:{3072 + 1024 * b}")
    st.lg(f"ds_write_b32 {v(vX + 3)}, {v(vX + 4)} offset:16")
    lds_flag_wait(st, vSYa, 16, vT)
    for b in range(3):
        for q in range(2):
            st.lg(f"ds_read_b128 {v(Ev[b] + 4 * q, 4)}, {v(vX + 2)} offset:{3072 + 1024 * b + 16 * q}")
    st.e(f"s_mul_i32 {s(S_T0)}, {s(S_W)}, 7680")
    st.e(f"s_add_u32 {s(S_T0)}, {s(S_T0)}, {TS}")
    st.e(f"v_and_b32 {v(vT)}, 31, {v(V_LANE)}")
    st.e(f"v_mul_u32_u24 {v(vT)}, 80, {v(vT)}")
    st.e(f"v_and_b32 {v(vT + 1)}, 32, {v(V_LANE)}")
    st.e(f"v_add3_u32 {v(vB2)}, {v(vT)}, {v(vT + 1)}, {s(S_T0)}")
    st.e(f"v_bfe_u32 {v(vT)}, {v(V_LANE)}, 2, 2")
    st.e(f"v_bfe_u32 {v(vT + 2)}, {v(V_LANE)}, 4, 1")
    st.e(f"v_lshl_add_u32 {v(vT)}, {v(vT)}, 1, {v(vT + 2)}")
    st.e(f"v_mul_u32_u24 {v(vT)}, 80, {v(vT)}")
    st.e(f"v_and_b32 {v(vT + 3)}, 3, {v(V_LANE)}")
    st.e(f"v_lshl_add_u32 {v(vT)}, {v(vT + 3)}, 3, {v(vT)}")
    st.e(f"v_add3_u32 {v(vB2 + 1)}, {v(vT)}, {v(vT + 1)}, {s(S_T0)}")
    st.e(f"v_lshrrev_b32 {v(vT)}, 5, {v(V_LANE)}")
    st.e(f"v_mul_u32_u24 {v(vT)}, {RTS - 512}, {v(vT)}")
    st.e(f"v_add_u32 {v(vB2 + 2)}, {v(vT)}, {v(V_L16)}")
    st.wait(lg="all")
    for q in (0, 2):
        for b in range(3):
            st.e(f"v_pk_add_f32 {v(Ev[b] + q, 2)}, {v(Ev[b] + q, 2)}, {v(Ev[b] + 4 + q, 2)}")
    for b in range(3):
        st.e(f"v_pk_add_f32 {v(Ev[b], 2)}, {v(Ev[b], 2)}, {v(Ev[b] + 2, 2)}")
    for b in range(3):
        st.e(f"v_add_f32 {v(hA[b])}, {v(Ev[b])}, {v(Ev[b] + 1)}")
    for b in range(3):
        st.e(f"v_fmac_f32 {v(Pv[b])}, {v(K['psr'][b])}, {v(hA[b])}")
    for b in range(3):
        st.e(f"v_fmac_f32_dpp {v(Pv[b])}, {v(hA[b])}, {v(K['psi'][b])} {DPP}")
    for b in range(3):
        st.e(f"v_mul_f32 {v(hB[b])}, {v(K['A'][b])}, {v(Pv[b])}")
    for b in range(3):
        st.e(f"v_fmac_f32_dpp {v(hB[b])}, {v(Pv[b])}, {v(K['Bc'][b])} {DPP}")
    pk = [big + 8 * b for b in range(3)]
    sc = [frag + 16 + 2 * b for b in range(3)]
    for j in range(16):
        prev = [hB[b] if j == 0 else acc[b] + j - 1 for b in range(3)]
        for b in range(3):
            st.e(f"v_fmac_f32 {v(acc[b] + j)}, {v(K['lr'][b])}, {v(prev[b])}")
        for b in range(3):
            st.e(f"v_fmac_f32_dpp {v(acc[b] + j)}, -{v(prev[b])}, {v(K['li'][b])} {DPP}")
        if j & 1:
            for b in range(3):
                st.e(f"v_pk_mul_f32 {v(sc[b], 2)}, {v(acc[b] + j - 1, 2)}, {v(gv + j - 1, 2)}")
            for b in range(3):
                st.e(f"v_cvt_pk_bf16_f32 {v(pk[b] + (j >> 1))}, {v(sc[b])}, {v(sc[b] + 1)}")
        if j in (7, 15):
            for b in range(3):
                st.lg(f"ds_write_b128 {v(vB2)}, {v(pk[b] + (4 if j == 15 else 0), 4)} offset:{2560 * b + (16 if j == 15 else 0)}")
    st.e(f"s_lshl_b32 {s(S_T0)}, {s(S_RB)}, 2")
    st.e(f"s_add_u32 {s(S_T0)}, {s(S_T0)}, {s(S_W)}")
    st.e(f"s_mul_i32 {s(S_T0)}, {s(S_T0)}, {2 * RTS}")
    st.e(f"s_mul_i32 {s(S_T1)}, {s(S_CS)}, 2560")
    st.e(f"s_add_u32 {s(S_T0)}, {s(S_T0)}, {s(S_T1)}")
    st.e(f"s_add_u32 {s(S_T0)}, {s(S_T0)}, {WS_H + 192 * 256:#x}")
    ids = []
    for k in range(5):
        for e2 in range(2):
            r = st.lg(f"ds_read_b64_tr_b16 {v(acc[0] + 4 * k + 2 * e2, 2)}, {v(vB2 + 1)} offset:{k * 1280 + e2 * 640}")
        ids.append(r)
    for k in range(5):
        st.wait(lg=ids[k])
        st.vm(f"buffer_store_dwordx4 {v(acc[0] + 4 * k, 4)}, {v(vB2 + 2)}, {s(R_WS, 4)}, {s(S_T0)} offen offset:{512 * k} sc1")
    stamp("hst")
    st.e(f"s_lshl_b32 {s(S_T0)}, {s(S_RB)}, 4")
    st.e(f"s_add_u32 {s(S_T0)}, {s(S_T0)}, {s(S_CS)}")
    st.e(f"s_lshl_b32 {s(S_T0)}, {s(S_T0)}, 5")
    st.e(f"s_add_u32 {s(S_T0)}, {s(S_T0)}, {s(S_W)}")
    st.e(f"s_lshl_b32 {s(S_T0)}, {s(S_T0)}, 2")
    st.e(f"s_add_u32 {s(S_T0)}, {s(S_T0)}, {WS_FS:#x}")
    st.e(f"v_mov_b32 {v(vT)}, {s(S_NONCE)}")
    st.e("s_mov_b64 exec, 1")
    st.wait(vm="all")
    st.vm(f"buffer_store_dword {v(vT)}, off, {s(R_WS, 4)}, {s(S_T0)} sc1")
    st.e("s_mov_b64 exec, -1")
    stamp("end")
    stamp.flush(vT)
    st.label("L_end")
    st.e("s_endpgm")
    return stamp.names


HEADER = """; gated mix of an S5 state-space branch and a squared-relu MLP branch, one persistent launch.
; @launch grid=(256,1,1) block=(512,1,1) lds={lds}
.amdgcn_target "amdgcn-amd-amdhsa--gfx950"
.text
.globl {name}_kernel
.p2align 8
.type {name}_kernel,@function
{name}_kernel:
"""
FOOTER = """.section .rodata,"a"
.p2align 6
.amdhsa_kernel {name}_kernel
  .amdhsa_next_free_vgpr 256
  .amdhsa_next_free_sgpr 102
  .amdhsa_accum_offset 256
  .amdhsa_group_segment_fixed_size 0
  .amdhsa_kernarg_size 144
  .amdhsa_user_sgpr_count 2
  .amdhsa_user_sgpr_kernarg_segment_ptr 1
  .amdhsa_system_sgpr_workgroup_id_x 1
  .amdhsa_float_denorm_mode_32 3
.end_amdhsa_kernel
"""


def main():
    c = Stream()
    gen_common(c)
    g = Stream()
    g.vm_issued = c.vm_issued
    gn = gen_G(g)
    sst = Stream()
    sst.vm_issued = c.vm_issued
    sn = gen_S(sst)
    text = HEADER.format(lds=LDS_BYTES, name=NAME) + c.text() + g.text() + ".p2align 6\n" + sst.text() + FOOTER.format(name=NAME)
    open(sys.argv[1], "w").write(text)
    if STAMPS:
        import json
        json.dump(dict(G=gn, S=sn), open(sys.argv[1] + ".stamps.json", "w"))


if __name__ == "__main__":
    main()
```

```python
import sys
from asmlib import Regs, Stream, v, s

NAME = "gated_mix__ssm_conv_s5__dense_activation_squared_relu__prompt"
OPT = dict(stamps=False, D=4, spin=1 << 14, x_nodma=0, x_nomfma=0, x_nords=0, x_pad=0)
for a in sys.argv[2:]:
    k, val = a.split("=")
    OPT[k] = int(val)
STAMPS = bool(OPT["stamps"])
D = OPT["D"]

WS_EPOCH = 0
WS_FP = 0x8000
WS_FM = 0x10000
WS_FS = 0x18000
WS_T = 0x20000
WS_W2P = 0x100000
WS_H = 0x800000
WS_ST = 0x2000000
RTS = 352 * 256
NSS = 88 * 5120
SL = 39040
O_X, O_BRE, O_BIM, O_GATE, O_W1 = 0, 16384, 21504, 26624, 26752
XR = 3 * SL
TS = XR
EX1 = TS + 4 * 7680
EX2 = EX1 + 3072
GS = EX2 + 3072
GB = GS + 512
SY = GB + 512
LDS_BYTES = SY + 64
PARTW = 64 * 336
assert LDS_BYTES <= 163840 and 4 * PARTW <= XR

DPP = "quad_perm:[1,0,3,2] row_mask:0xf bank_mask:0xf"
LOG2E = "0x3fb8aa3b"
NLOG2E = "0xbfb8aa3b"

P_X, P_LRE, P_LIM, P_BRE, P_BIM, P_CRE, P_CIM, P_LDT = 4, 6, 8, 10, 12, 14, 16, 18
P_DSK, P_BX, P_W1, P_B1, P_W2, P_B2, P_GATE, P_OUT = 20, 22, 24, 26, 28, 30, 32, 34
P_DBG, P_WS = 36, 38
R_WS = 40
S_RB, S_CS, S_HH, S_NS, S_W, S_NONCE, S_T0, S_T1, S_T2, S_T3 = 44, 45, 46, 47, 48, 49, 50, 51, 52, 53
S_SPIN = 3
S_FREE = 54
V_LANE = 1
V_L16 = 2
V_EP = 3


def srd(st, base, ptr, size):
    st.e(f"s_mov_b32 {s(base)}, {s(ptr)}")
    st.e(f"s_mov_b32 {s(base + 1)}, {s(ptr + 1)}")
    st.e(f"s_mov_b32 {s(base + 2)}, {size:#x}")
    st.e(f"s_mov_b32 {s(base + 3)}, 0x20000")


class Stamper:
    def __init__(self, st, sr, role):
        self.st, self.role, self.n = st, role, 0
        self.max = 14 if role == "G" else 12
        self.base = (sr.alloc("stamps", 2 * self.max, 2) if STAMPS else None)
        self.names = []
        if STAMPS:
            self.rt0 = P_DBG if role == "G" else P_LRE + 100
            if role == "S":
                self.rt0 = None
            else:
                st.e(f"s_memrealtime {s(self.rt0, 2)}")

    def __call__(self, name):
        if not STAMPS:
            return
        assert self.n < self.max
        self.st.e(f"s_memtime {s(self.base + 2 * self.n, 2)}")
        self.names.append(name)
        self.n += 1

    def flush(self, vt):
        if not STAMPS:
            return
        st = self.st
        st.e(f"s_memrealtime {s(S_T0, 2)}")
        st.e("s_waitcnt lgkmcnt(0)")
        st.e(f"v_mov_b32 {v(vt)}, 0")
        for i in range(self.n):
            st.e(f"v_writelane_b32 {v(vt)}, {s(self.base + 2 * i)}, {i}")
        st.e(f"v_writelane_b32 {v(vt)}, {s(S_T0)}, 15")
        if self.rt0 is not None:
            st.e(f"v_writelane_b32 {v(vt)}, {s(self.rt0)}, 14")
        st.e(f"s_lshl_b32 {s(S_T0)}, s2, 3")
        st.e(f"s_add_u32 {s(S_T0)}, {s(S_T0)}, {s(S_W)}")
        if self.role == "S":
            st.e(f"s_add_u32 {s(S_T0)}, {s(S_T0)}, 4")
        st.e(f"s_lshl_b32 {s(S_T0)}, {s(S_T0)}, 6")
        st.e(f"s_add_u32 {s(S_T0)}, {s(S_T0)}, {WS_ST:#x}")
        st.e(f"v_lshlrev_b32 {v(vt + 1)}, 2, {v(V_LANE)}")
        st.e("s_mov_b64 exec, 0xffff")
        st.e(f"buffer_store_dword {v(vt)}, {v(vt + 1)}, {s(R_WS, 4)}, {s(S_T0)} offen")
        st.e("s_mov_b64 exec, -1")


_lbl = [0]


def newlabel(p):
    _lbl[0] += 1
    return f"L_{p}_{_lbl[0]}"


def nonce_from_epoch(st):
    st.e(f"v_readfirstlane_b32 {s(S_NONCE)}, {v(V_EP)}")
    st.e("s_nop 3")
    st.e(f"s_mul_i32 {s(S_NONCE)}, {s(S_NONCE)}, 0x9e3779b1")
    st.e(f"s_add_u32 {s(S_NONCE)}, {s(S_NONCE)}, 0x7f4a7c15")


def flag_check(st, vdata, reload_text, landed=True):
    top, done = newlabel("chk"), newlabel("ok")
    st.e(f"s_mov_b32 {s(S_SPIN)}, {OPT['spin']}")
    st.label(top)
    st.e(f"v_cmp_ne_u32 vcc, {s(S_NONCE)}, {v(vdata)}")
    st.e(f"s_sub_u32 {s(S_SPIN)}, {s(S_SPIN)}, 1")
    st.e(f"s_cbranch_scc1 {done}")
    st.e("s_nop 2")
    st.e(f"s_cbranch_vccz {done}")
    st.e("s_sleep 2")
    st.e(reload_text)
    st.e("s_waitcnt vmcnt(0)")
    st.e(f"s_branch {top}")
    st.label(done)


def lds_flag_wait(st, vaddr, off, vtmp):
    top, done = newlabel("lw"), newlabel("lok")
    st.e(f"s_mov_b32 {s(S_SPIN)}, {OPT['spin'] * 8}")
    st.label(top)
    st.e(f"ds_read_b128 {v(vtmp, 4)}, {v(vaddr)} offset:{off}")
    st.e(f"s_sub_u32 {s(S_SPIN)}, {s(S_SPIN)}, 1")
    st.e(f"s_cbranch_scc1 {done}")
    st.e("s_waitcnt lgkmcnt(0)")
    st.e(f"v_and_b32 {v(vtmp)}, {v(vtmp)}, {v(vtmp + 1)}")
    st.e(f"v_and_b32 {v(vtmp + 2)}, {v(vtmp + 2)}, {v(vtmp + 3)}")
    st.e(f"v_and_b32 {v(vtmp)}, {v(vtmp)}, {v(vtmp + 2)}")
    st.e(f"v_cmp_ne_u32 vcc, -1, {v(vtmp)}")
    st.e("s_nop 4")
    st.e(f"s_cbranch_vccnz {top}")
    st.label(done)
    st.e("s_waitcnt lgkmcnt(0)")


def pack_flag_addr(st, vd, vt):
    st.e(f"s_mul_i32 {s(S_T0)}, {s(S_NS)}, 5")
    st.e(f"s_lshr_b32 {s(S_T1)}, {s(S_T0)}, 2")
    st.e(f"s_mul_i32 {s(S_T2)}, {s(S_W)}, 120")
    st.e(f"s_add_u32 {s(S_T1)}, {s(S_T1)}, {s(S_T2)}")
    st.e(f"v_lshrrev_b32 {v(vt)}, 1, {v(V_LANE)}")
    st.e(f"v_mul_u32_u24 {v(vt)}, 10, {v(vt)}")
    st.e(f"v_and_b32 {v(vt + 1)}, 1, {v(V_LANE)}")
    st.e(f"v_add3_u32 {v(vd)}, {v(vt)}, {v(vt + 1)}, {s(S_T1)}")
    st.e(f"s_mul_i32 {s(S_T2)}, {s(S_W)}, 10")
    st.e(f"s_lshr_b32 {s(S_T2)}, {s(S_T2)}, 2")
    st.e(f"s_mul_i32 {s(S_T0)}, {s(S_T0)}, 10")
    st.e(f"s_add_u32 {s(S_T0)}, {s(S_T0)}, {s(S_T2)}")
    st.e(f"s_add_u32 {s(S_T0)}, {s(S_T0)}, 480")
    st.e(f"v_subrev_u32 {v(vt)}, 24, {v(V_LANE)}")
    st.e(f"v_min_u32 {v(vt)}, 14, {v(vt)}")
    st.e(f"v_mul_u32_u24 {v(vt + 1)}, 43, {v(vt)}")
    st.e(f"v_lshrrev_b32 {v(vt + 1)}, 7, {v(vt + 1)}")
    st.e(f"v_mul_u32_u24 {v(vt + 2)}, 7, {v(vt + 1)}")
    st.e(f"v_add3_u32 {v(vt)}, {v(vt)}, {v(vt + 2)}, {s(S_T0)}")
    st.e(f"v_cmp_gt_u32 vcc, 24, {v(V_LANE)}")
    st.e("s_nop 1")
    st.e(f"v_cndmask_b32 {v(vd)}, {v(vt)}, {v(vd)}, vcc")
    st.e(f"v_lshrrev_b32 {v(vt)}, 2, {v(vd)}")
    st.e(f"v_and_b32 {v(vd)}, 3, {v(vd)}")
    st.e(f"v_lshlrev_b32 {v(vd)}, 2, {v(vd)}")
    st.e(f"v_lshl_add_u32 {v(vd)}, {v(vt)}, 7, {v(vd)}")
    st.e(f"v_add_u32 {v(vd)}, {WS_FP:#x}, {v(vd)}")


def xread_addrs(st, vX, vt):
    st.e(f"v_and_b32 {v(vt)}, 31, {v(V_LANE)}")
    st.e(f"v_bfe_u32 {v(vt + 1)}, {v(V_LANE)}, 1, 3")
    st.e(f"v_lshrrev_b32 {v(vt + 2)}, 5, {v(V_LANE)}")
    st.e(f"v_xor_b32 {v(vt + 1)}, {v(vt + 1)}, {v(vt + 2)}")
    st.e(f"v_lshlrev_b32 {v(vt + 1)}, 4, {v(vt + 1)}")
    st.e(f"v_lshl_add_u32 {v(vt)}, {v(vt)}, 7, {v(vt + 1)}")
    st.e(f"s_lshl_b32 {s(S_T0)}, {s(S_W)}, 12")
    st.e(f"v_add_u32 {v(vX)}, {s(S_T0)}, {v(vt)}")
    for k in range(1, 4):
        st.e(f"v_xor_b32 {v(vX + k)}, {32 * k}, {v(vX)}")
    for k in range(4):
        st.e(f"v_add_u32 {v(vX + 4 + k)}, {2 * SL}, {v(vX + k)}")


def slot_addr(vbase_lo, vbase_hi, slot, off):
    if slot == 2:
        return vbase_hi, off
    return vbase_lo, off + slot * SL


def w2_prefetch(st, g, role, sW2, vL16b, sM0):
    slot = (7 + g) % 3
    out = []
    out.append(("e", f"s_add_u32 m0, {s(sM0)}, {slot * SL}"))
    out.append(("e", f"s_add_u32 {s(S_T3)}, {s(sW2)}, {g * 4 * 5120}"))
    out.append(("vm", f"buffer_load_dwordx4 {v(V_L16)}, {s(R_WS, 4)}, {s(S_T3)} offen sc1 lds"))
    out.append(("vm", f"buffer_load_dwordx4 {v(V_L16)}, {s(R_WS, 4)}, {s(S_T3)} offen offset:1024 sc1 lds"))
    out.append(("vm", f"buffer_load_dwordx4 {v(vL16b)}, {s(R_WS, 4)}, {s(S_T3)} offen offset:2048 sc1 lds"))
    out.append(("vm", f"buffer_load_dwordx4 {v(vL16b)}, {s(R_WS, 4)}, {s(S_T3)} offen offset:3072 sc1 lds"))
    return out


EXP = dict(inloop=False)


def put(st, item):
    kind, text = item
    if EXP["inloop"]:
        if OPT["x_nodma"] and kind == "vm" and " lds" in text and "sc1" not in text:
            text = "s_nop 0"
            st.e(text)
            return st.vm_issued
        if OPT["x_nomfma"] and text.startswith("v_mfma"):
            text = "s_nop 0"
        if OPT["x_nords"] and kind == "lg":
            st.e("s_nop 0")
            return st.lg_issued
    if kind == "vm":
        return st.vm(text)
    if kind == "lg":
        return st.lg(text)
    st.e(text)
    return None


def interleave(st, mains, sides):
    ids = []
    n = len(mains)
    k = 0
    for i, m in enumerate(mains):
        put(st, m)
        upto = (len(sides) * (i + 1) + n - 1) // n
        while k < upto:
            r = put(st, sides[k])
            if sides[k][0] == "vm":
                ids.append(r)
            k += 1
    return ids


def gen_common(st):
    st.e("s_cmp_ge_u32 s2, 256")
    st.e("s_cbranch_scc1 L_end")
    st.e("s_load_dwordx16 s[4:19], s[0:1], 0")
    st.e("s_load_dwordx16 s[20:35], s[0:1], 64")
    st.e("s_load_dwordx4 s[36:39], s[0:1], 128")
    st.e(f"v_lshrrev_b32 {v(V_EP)}, 6, v0")
    st.e(f"v_and_b32 {v(V_LANE)}, 63, v0")
    st.e(f"v_readfirstlane_b32 {s(S_W)}, {v(V_EP)}")
    st.e(f"v_lshlrev_b32 {v(V_L16)}, 4, {v(V_LANE)}")
    st.e(f"s_lshr_b32 {s(S_T1)}, s2, 3")
    st.e(f"s_bfe_u32 {s(S_RB)}, s2, 0x20001")
    st.e(f"s_lshl_b32 {s(S_RB)}, {s(S_RB)}, 2")
    st.e(f"s_lshr_b32 {s(S_T2)}, {s(S_T1)}, 3")
    st.e(f"s_add_u32 {s(S_RB)}, {s(S_RB)}, {s(S_T2)}")
    st.e(f"s_and_b32 {s(S_T0)}, s2, 1")
    st.e(f"s_lshl_b32 {s(S_CS)}, {s(S_T0)}, 3")
    st.e(f"s_and_b32 {s(S_T2)}, {s(S_T1)}, 7")
    st.e(f"s_add_u32 {s(S_CS)}, {s(S_CS)}, {s(S_T2)}")
    st.e(f"s_and_b32 {s(S_HH)}, {s(S_CS)}, 1")
    st.e(f"s_lshr_b32 {s(S_NS)}, {s(S_CS)}, 1")
    st.e("s_waitcnt lgkmcnt(0)")
    srd(st, R_WS, P_WS, 0x10000000)
    st.vm(f"buffer_load_dword {v(V_EP)}, off, {s(R_WS, 4)}, 0 sc1")
    st.e(f"s_cmp_ge_u32 {s(S_W)}, 4")
    st.e("s_cbranch_scc1 L_S")


def gen_G(st):
    sr = Regs("s", S_FREE, 102)
    vr = Regs("v", 4, 256)
    stamp = Stamper(st, sr, "G")
    stamp("start")
    if OPT["x_pad"]:
        st.e(f"s_memrealtime {s(P_DBG, 2)}")
    R_X = sr.alloc("R_X", 4, 4)
    R_W1 = sr.alloc("R_W1", 4, 4)
    sr2 = Regs("s", P_LRE, P_DSK)
    sOX = sr2.alloc("sOX")
    sOW = sr2.alloc("sOW")
    sMX = sr2.alloc("sMX")
    sMW = sr2.alloc("sMW")
    sW2 = sr2.alloc("sW2")
    sMP = sr2.alloc("sMP")
    sH = sr2.alloc("sH", 4)
    sWg = sr2.alloc("sWg")
    vDX = vr.alloc("vDX", 4)
    vDW = vr.alloc("vDW")
    vX = vr.alloc("vX", 8)
    vW = vr.alloc("vW", 2)
    vL16b = vr.alloc("vL16b")
    vL16c = vr.alloc("vL16c")
    vPF = vr.alloc("vPF")
    vPD = vr.alloc("vPD")
    vHS = vr.alloc("vHS")
    vFM = vr.alloc("vFM")
    vLW = vr.alloc("vLW", 2)
    vT = vr.alloc("vT", 4)
    assert vr.next <= 32, vr.next
    BIG = 32
    acc1 = [BIG + 16 * b for b in range(3)]
    fX = [BIG + 48 + 16 * p for p in range(2)]
    fW = [[BIG + 48 + 16 * p + 4 + 4 * b for b in range(3)] for p in range(2)]
    cv = BIG + 80
    bias = BIG + 104
    srd(st, R_X, P_X, 2048 * 1280)
    srd(st, R_W1, P_W1, 640 * 3072)
    st.e(f"v_lshrrev_b32 {v(vT)}, 3, {v(V_LANE)}")
    st.e(f"v_and_b32 {v(vT + 1)}, 3, {v(vT)}")
    st.e(f"v_lshrrev_b32 {v(vT)}, 2, {v(vT)}")
    st.e(f"v_lshl_add_u32 {v(vT)}, {v(vT)}, 4, {v(vT + 1)}")
    st.e(f"v_mul_u32_u24 {v(vT)}, 1280, {v(vT)}")
    st.e(f"v_lshrrev_b32 {v(vT + 1)}, 4, {v(V_LANE)}")
    st.e(f"v_and_b32 {v(vT + 2)}, 7, {v(V_LANE)}")
    st.e(f"v_xor_b32 {v(vT + 1)}, {v(vT + 1)}, {v(vT + 2)}")
    st.e(f"v_lshl_add_u32 {v(vDX)}, {v(vT + 1)}, 4, {v(vT)}")
    st.e(f"v_xor_b32 {v(vDX + 1)}, 64, {v(vDX)}")
    st.e(f"v_add_u32 {v(vDX + 1)}, {4096}, {v(vDX + 1)}")
    st.e(f"v_add_u32 {v(vDX + 2)}, {8192}, {v(vDX)}")
    st.e(f"v_add_u32 {v(vDX + 3)}, {8192}, {v(vDX + 1)}")
    st.e(f"s_lshl_b32 {s(S_T0)}, {s(S_RB)}, 2")
    st.e(f"s_add_u32 {s(S_T0)}, {s(S_T0)}, {s(S_W)}")
    st.e(f"s_mul_i32 {s(sOX)}, {s(S_T0)}, {32 * 1280}")
    st.e(f"s_lshl_b32 {s(sMX)}, {s(S_W)}, 12")
    st.e(f"v_and_b32 {v(vT)}, 255, v0")
    st.e(f"v_mul_u32_u24 {v(vT + 1)}, 43691, {v(vT)}")
    st.e(f"v_lshrrev_b32 {v(vT + 1)}, 19, {v(vT + 1)}")
    st.e(f"v_mul_u32_u24 {v(vT + 1)}, {3072 - 192}, {v(vT + 1)}")
    st.e(f"v_lshl_add_u32 {v(vDW)}, {v(vT)}, 4, {v(vT + 1)}")
    st.e(f"s_mul_i32 {s(sOW)}, {s(S_CS)}, 192")
    st.e(f"s_lshl_b32 {s(sMW)}, {s(S_W)}, 10")
    st.e(f"s_add_u32 {s(sMW)}, {s(sMW)}, {O_W1}")

    def dma_chunk(c):
        slot = c % 3
        out = [("e", f"s_add_u32 m0, {s(sMX)}, {slot * SL + O_X}"),
               ("e", "s_nop 0")]
        for i in range(4):
            out.append(("vm", f"buffer_load_dwordx4 {v(vDX + i)}, {s(R_X, 4)}, {s(sOX)} offen offset:{1024 * i} lds"))
        out.append(("e", f"s_add_u32 m0, {s(sMW)}, {slot * SL}"))
        out.append(("e", f"s_add_u32 {s(sOX)}, {s(sOX)}, 128"))
        out.append(("vm", f"buffer_load_dwordx4 {v(vDW)}, {s(R_W1, 4)}, {s(sOW)} offen lds"))
        out.append(("e", f"s_add_u32 {s(sOW)}, {s(sOW)}, {64 * 3072}"))
        return out

    st.e(f"v_and_b32 {v(vT)}, 31, {v(V_LANE)}")
    st.e(f"v_lshlrev_b32 {v(vT)}, 1, {v(vT)}")
    st.e(f"v_add_u32 {v(vT)}, {s(sOW)}, {v(vT)}")
    for b in range(3):
        idb = st.vm(f"global_load_ushort {v(bias + 4 * b)}, {v(vT)}, {s(P_B1, 2)} offset:{64 * b}")
    chunk_id = {}
    for c in range(3):
        for it in dma_chunk(c):
            r = put(st, it)
            if r:
                chunk_id[c] = r
    stamp("dma0")
    xread_addrs(st, vX, vT)
    st.e(f"v_bfe_u32 {v(vT)}, {v(V_LANE)}, 2, 2")
    st.e(f"v_lshrrev_b32 {v(vT + 1)}, 5, {v(V_LANE)}")
    st.e(f"v_lshl_add_u32 {v(vT)}, {v(vT + 1)}, 3, {v(vT)}")
    st.e(f"v_mul_u32_u24 {v(vT)}, 192, {v(vT)}")
    st.e(f"v_and_b32 {v(vT + 1)}, 3, {v(V_LANE)}")
    st.e(f"v_lshl_add_u32 {v(vT)}, {v(vT + 1)}, 3, {v(vT)}")
    st.e(f"v_bfe_u32 {v(vT + 1)}, {v(V_LANE)}, 4, 1")
    st.e(f"v_lshl_add_u32 {v(vT)}, {v(vT + 1)}, 5, {v(vT)}")
    st.e(f"v_add_u32 {v(vW)}, {O_W1}, {v(vT)}")
    st.e(f"v_add_u32 {v(vW + 1)}, {O_W1 + 2 * SL}, {v(vT)}")
    st.e(f"v_add_u32 {v(vL16b)}, 3072, {v(V_L16)}")
    st.e(f"v_add_u32 {v(vL16c)}, 4096, {v(V_L16)}")
    pack_flag_addr(st, vPF, vT)
    st.e(f"v_bfe_u32 {v(vT)}, {v(V_LANE)}, 2, 1")
    st.e(f"v_mul_u32_u24 {v(vT)}, {RTS}, {v(vT)}")
    st.e(f"v_lshrrev_b32 {v(vT + 1)}, 5, {v(V_LANE)}")
    st.e(f"v_lshl_add_u32 {v(vT)}, {v(vT + 1)}, 8, {v(vT)}")
    st.e(f"v_bfe_u32 {v(vT + 1)}, {v(V_LANE)}, 3, 2")
    st.e(f"v_lshl_add_u32 {v(vT)}, {v(vT + 1)}, 6, {v(vT)}")
    st.e(f"v_and_b32 {v(vT + 1)}, 3, {v(V_LANE)}")
    st.e(f"v_lshl_add_u32 {v(vHS)}, {v(vT + 1)}, 4, {v(vT)}")
    st.e(f"s_lshl_b32 {s(S_T0)}, {s(S_RB)}, 4")
    st.e(f"s_lshl_b32 {s(S_T1)}, {s(S_W)}, 2")
    st.e(f"s_add_u32 {s(S_T0)}, {s(S_T0)}, {s(S_T1)}")
    st.e(f"s_lshl_b32 {s(S_T0)}, {s(S_T0)}, 7")
    st.e(f"s_lshl_b32 {s(S_T1)}, {s(S_HH)}, 3")
    st.e(f"s_add_u32 {s(S_T0)}, {s(S_T0)}, {s(S_T1)}")
    st.e(f"s_add_u32 {s(S_T0)}, {s(S_T0)}, {WS_FM:#x}")
    st.e(f"v_bfe_u32 {v(vT)}, {v(V_LANE)}, 1, 2")
    st.e(f"v_and_b32 {v(vT + 1)}, 1, {v(V_LANE)}")
    st.e(f"v_lshlrev_b32 {v(vT + 1)}, 2, {v(vT + 1)}")
    st.e(f"v_lshl_add_u32 {v(vT)}, {v(vT)}, 7, {v(vT + 1)}")
    st.e(f"v_add_u32 {v(vFM)}, {s(S_T0)}, {v(vT)}")
    st.e(f"s_mul_i32 {s(sWg)}, {s(S_NS)}, {NSS}")
    st.e(f"s_mul_i32 {s(S_T0)}, {s(S_W)}, {12 * 5120}")
    st.e(f"s_add_u32 {s(sWg)}, {s(sWg)}, {s(S_T0)}")
    st.e(f"s_add_u32 {s(sWg)}, {s(sWg)}, {WS_W2P:#x}")
    st.e(f"s_add_u32 {s(sW2)}, {s(sWg)}, 3072")
    st.e(f"s_lshl_b32 {s(sMP)}, {s(S_W)}, 13")
    st.e(f"v_add_u32 {v(vLW)}, {s(sMP)}, {v(V_L16)}")
    st.e(f"v_add_u32 {v(vLW + 1)}, {2 * SL}, {v(vLW)}")
    for b in range(3):
        for k in range(1, 4):
            st.e(f"v_mov_b32 {v(bias + 4 * b + k)}, 0")
    st.e(f"v_mov_b32 {v(bias + 12)}, 0x3f80")
    for k in range(1, 4):
        st.e(f"v_mov_b32 {v(bias + 12 + k)}, 0")
    st.e(f"v_cmp_gt_u32 vcc, 32, {v(V_LANE)}")
    st.e("s_nop 0")
    st.wait(vm=idb)
    for b in range(3):
        st.e(f"v_cndmask_b32 {v(bias + 4 * b)}, 0, {v(bias + 4 * b)}, vcc")
    nonce_from_epoch(st)
    for b in range(3):
        st.e(f"v_mfma_f32_32x32x16_bf16 {v(acc1[b], 16)}, {v(bias + 4 * b, 4)}, {v(bias + 12, 4)}, 0")

    def reads(c, sidx):
        slot, p = c % 3, sidx & 1
        out = []
        ra, off = slot_addr(vX + sidx, vX + 4 + sidx, slot, O_X)
        out.append(("lg", f"ds_read_b128 {v(fX[p], 4)}, {v(ra)} offset:{off}"))
        for b in range(3):
            for e2 in range(2):
                ra, off = slot_addr(vW, vW + 1, slot, sidx * 3072 + e2 * 768 + b * 64)
                out.append(("lg", f"ds_read_b64_tr_b16 {v(fW[p][b] + 2 * e2, 2)}, {v(ra)} offset:{off}"))
        return out

    def mfmas(sidx):
        p = sidx & 1
        return [("e", f"v_mfma_f32_32x32x16_bf16 {v(acc1[b], 16)}, {v(fW[p][b], 4)}, {v(fX[p], 4)}, {v(acc1[b], 16)}")
                for b in range(3)]

    st.wait(vm=chunk_id[0])
    st.e("s_barrier")
    stamp("B0")
    for it in reads(0, 0):
        put(st, it)
    w2ids = []
    pf_id = None
    EXP["inloop"] = True
    for c in range(10):
        for sidx in range(4):
            if sidx < 3:
                st.wait(lg="all")
                interleave(st, mfmas(sidx), reads(c, sidx + 1))
            else:
                if c < 9:
                    st.wait(vm=chunk_id[c + 1], lg="all")
                else:
                    st.wait(lg="all")
                if c == 7:
                    flag_check(st, vPD, f"buffer_load_dword {v(vPD)}, {v(vPF)}, {s(R_WS, 4)}, 0 offen sc1")
                st.e("s_barrier")
                if c in (2, 5, 8):
                    stamp(f"B{c + 1}")
                sides = reads(c + 1, 0) if c < 9 else []
                if c == 5:
                    sides = sides + [("vm", f"buffer_load_dword {v(vPD)}, {v(vPF)}, {s(R_WS, 4)}, 0 offen sc1")]
                if c + 3 <= 9:
                    sides = sides + dma_chunk(c + 3)
                else:
                    sides = sides + w2_prefetch(st, c - 7, "G", sW2, vL16b, sMP)
                ids = interleave(st, mfmas(sidx), sides)
                if c + 3 <= 9:
                    chunk_id[c + 3] = ids[-1]
                else:
                    w2ids.append(ids[-1])
    EXP["inloop"] = False
    stamp("loopend")
    st.e(f"s_lshl_b32 {s(S_T0)}, {s(S_RB)}, 2")
    st.e(f"s_add_u32 {s(S_T0)}, {s(S_T0)}, {s(S_W)}")
    st.e(f"s_mul_i32 {s(S_T0)}, {s(S_T0)}, {2 * RTS}")
    st.e(f"s_mul_i32 {s(S_T1)}, {s(S_CS)}, {12 * 256}")
    st.e(f"s_add_u32 {s(S_T0)}, {s(S_T0)}, {s(S_T1)}")
    st.e(f"s_add_u32 {s(S_T0)}, {s(S_T0)}, {WS_H:#x}")
    st.nop(6)
    for b in range(3):
        for e2 in range(2):
            a0 = acc1[b] + 8 * e2
            for j in range(8):
                st.e(f"v_max_f32 {v(a0 + j)}, 0, {v(a0 + j)}")
            for j in range(0, 8, 2):
                st.e(f"v_pk_mul_f32 {v(a0 + j, 2)}, {v(a0 + j, 2)}, {v(a0 + j, 2)}")
            for j in range(4):
                st.e(f"v_cvt_pk_bf16_f32 {v(cv + 8 * b + 4 * e2 + j)}, {v(a0 + 2 * j)}, {v(a0 + 2 * j + 1)}")
            hst = st.vm(f"buffer_store_dwordx4 {v(cv + 8 * b + 4 * e2, 4)}, {v(vHS)}, {s(R_WS, 4)}, {s(S_T0)} "
                        f"offen offset:{b * 1024 + e2 * 512} sc1")
    stamp("Hstored")
    acc2 = BIG
    Hb = [BIG + 80 + 16 * d for d in range(D)]
    Wb = [BIG + 80 + 16 * D + 20 * d for d in range(D)]
    assert Wb[-1] + 20 <= 256
    NST = 22

    def wsrc(i):
        return i * 5120 if i < 12 else None

    st.e(f"s_lshl_b32 {s(S_T1)}, {s(S_RB)}, 1")
    st.e(f"s_add_u32 {s(S_T1)}, {s(S_T1)}, {s(S_HH)}")
    st.e(f"s_mul_i32 {s(S_T1)}, {s(S_T1)}, {4 * RTS}")
    st.e(f"s_mul_i32 {s(S_T2)}, {s(S_W)}, {12 * 1024}")
    st.e(f"s_add_u32 {s(S_T1)}, {s(S_T1)}, {s(S_T2)}")
    st.e(f"s_add_u32 {s(sH)}, {s(S_T1)}, {WS_H:#x}")
    for mt in range(1, 4):
        st.e(f"s_add_u32 {s(sH + mt)}, {s(sH + mt - 1)}, {RTS}")

    state = dict(w=0, h=0)

    def w_loads(i):
        out = []
        assert state["w"] == i
        if i == 12:
            out.append(("e", f"s_mul_i32 {s(S_T2)}, {s(S_W)}, {2 * 5120}"))
            out.append(("e", f"s_sub_u32 {s(sWg)}, {s(sWg)}, {s(S_T2)}"))
            out.append(("e", f"s_add_u32 {s(sWg)}, {s(sWg)}, {36 * 5120}"))
        nts = range(3) if i < 12 else range(5)
        for nt in nts:
            va, off = (V_L16, nt * 1024) if nt < 4 else (vL16c, 0)
            out.append(("vm", f"buffer_load_dwordx4 {v(Wb[i % D] + 4 * nt, 4)}, {v(va)}, {s(R_WS, 4)}, {s(sWg)} "
                              f"offen offset:{off} sc1"))
        out.append(("e", f"s_add_u32 {s(sWg)}, {s(sWg)}, 5120"))
        state["w"] += 1
        return out

    def h_loads(i):
        out = []
        assert state["h"] == i
        j = i if i < 12 else i - 12
        if i == 12:
            out.append(("e", f"s_mul_i32 {s(S_T2)}, {s(S_W)}, {2 * 1024}"))
            out.append(("e", f"s_sub_u32 {s(S_T2)}, {36 * 1024 + 4096}, {s(S_T2)}"))
            for mt in range(4):
                out.append(("e", f"s_add_u32 {s(sH + mt)}, {s(sH + mt)}, {s(S_T2)}"))
        elif j % 4 == 0 and j > 0:
            for mt in range(4):
                out.append(("e", f"s_add_u32 {s(sH + mt)}, {s(sH + mt)}, 4096"))
        for mt in range(4):
            out.append(("vm", f"buffer_load_dwordx4 {v(Hb[i % D] + 4 * mt, 4)}, {v(V_L16)}, {s(R_WS, 4)}, {s(sH + mt)} "
                              f"offen offset:{(j % 4) * 1024} sc1"))
        state["h"] += 1
        return out

    def lds_w(i):
        g, within = i >> 2, i & 3
        slot = (7 + g) % 3
        out = []
        for k in range(2):
            ra, off = slot_addr(vLW, vLW + 1, slot, within * 2048 + k * 1024)
            out.append(("lg", f"ds_read_b128 {v(Wb[i % D] + 12 + 4 * k, 4)}, {v(ra)} offset:{off}"))
        return out

    last_id = {}
    for i in range(D):
        for it in w_loads(i):
            r = put(st, it)
            if r:
                last_id[i] = r
    st.e(f"s_lshl_b32 {s(S_T0)}, {s(S_RB)}, 4")
    st.e(f"s_add_u32 {s(S_T0)}, {s(S_T0)}, {s(S_CS)}")
    st.e(f"s_lshl_b32 {s(S_T0)}, {s(S_T0)}, 5")
    st.e(f"s_add_u32 {s(S_T0)}, {s(S_T0)}, {s(S_W)}")
    st.e(f"s_lshl_b32 {s(S_T0)}, {s(S_T0)}, 2")
    st.e(f"s_add_u32 {s(S_T0)}, {s(S_T0)}, {WS_FM:#x}")
    st.e(f"v_mov_b32 {v(vT)}, {s(S_NONCE)}")
    st.e("s_mov_b64 exec, 1")
    st.wait(vm=hst)
    st.vm(f"buffer_store_dword {v(vT)}, off, {s(R_WS, 4)}, {s(S_T0)} sc1")
    st.e("s_mov_b64 exec, -1")
    stamp("FMset")
    st.vm(f"buffer_load_dword {v(vPD)}, {v(vFM)}, {s(R_WS, 4)}, 0 offen sc1")
    st.e(f"v_mov_b32 {v(vT)}, {SY}")
    st.e(f"v_mov_b32 {v(vW)}, {SY}")
    lds_flag_wait(st, vW, 32, vT)
    st.wait(vm="all")
    flag_check(st, vPD, f"buffer_load_dword {v(vPD)}, {v(vFM)}, {s(R_WS, 4)}, 0 offen sc1")
    stamp("FMok")
    for i in range(D - 1):
        for it in h_loads(i):
            r = put(st, it)
            if r:
                last_id[i] = r
    for it in lds_w(0):
        put(st, it)
    vG = vX
    st.e(f"v_and_b32 {v(vT)}, 15, {v(V_LANE)}")
    st.e(f"s_lshl_b32 {s(S_T0)}, {s(S_HH)}, 8")
    st.e(f"s_add_u32 {s(S_T0)}, {s(S_T0)}, {GB}")
    st.e(f"v_lshl_add_u32 {v(vT)}, {v(vT)}, 2, {s(S_T0)}")
    for mt in range(4):
        st.lg(f"ds_read_b32 {v(vG + mt)}, {v(vT)} offset:{64 * mt}")
    st.wait(lg="all")
    for mt in range(4):
        st.e(f"v_sub_f32 {v(vG + mt)}, 1.0, {v(vG + mt)}")

    vER = vDX
    fs_id = None
    epi = {}
    for i in range(NST):
        p = i % D
        sides = []
        nxt = i + D - 1
        if i == 12 - (D - 1) - 2:
            sides.append(("vm", f"buffer_load_dword {v(vPD)}, {v(vFM)}, {s(R_WS, 4)}, {s(sOX)} offen sc1"))
            st.e(f"s_mov_b32 {s(sOX)}, {WS_FS - WS_FM:#x}")
        st.wait(vm=max(last_id[i], fs_id) if nxt == 12 else last_id[i], lg="all")
        if nxt == 12:
            flag_check(st, vPD, f"buffer_load_dword {v(vPD)}, {v(vFM)}, {s(R_WS, 4)}, {s(sOX)} offen sc1")
            stamp("FSok")
        if i == 12:
            st.nop(4)
            for mt in range(4):
                for nt in range(5):
                    a0 = acc2 + 20 * mt + 4 * nt
                    for k in range(4):
                        st.e(f"v_mul_f32 {v(a0 + k)}, {v(vG + mt)}, {v(a0 + k)}")
            st.nop(2)
        if i == NST - 2:
            st.e("s_barrier")
        if nxt < NST:
            if nxt >= D:
                sides += w_loads(nxt)
            sides += h_loads(nxt)
        if i + 1 < 12:
            sides += lds_w(i + 1)
        if i == NST - D + 1:
            fr = Hb[(i - 1) % D]
            epi["x"], epi["dsk"], epi["b2"] = fr, fr + 12, fr + 14
            sides.append(("e", f"v_mul_u32_u24 {v(vER)}, 205, {v(V_LANE)}"))
            sides.append(("e", f"v_lshrrev_b32 {v(vER)}, 12, {v(vER)}"))
            sides.append(("e", f"v_mul_u32_u24 {v(vER + 1)}, 20, {v(vER)}"))
            sides.append(("e", f"v_sub_u32 {v(vER + 1)}, {v(V_LANE)}, {v(vER + 1)}"))
            sides.append(("e", f"s_mul_i32 {s(S_T0)}, {s(S_NS)}, 160"))
            sides.append(("e", f"v_lshl_add_u32 {v(vER + 2)}, {v(vER + 1)}, 3, {s(S_T0)}"))
            sides.append(("vm", f"global_load_dwordx2 {v(epi['dsk'], 2)}, {v(vER + 2)}, {s(P_DSK, 2)}"))
            sides.append(("vm", f"global_load_dwordx2 {v(epi['b2'], 2)}, {v(vER + 2)}, {s(P_B2, 2)}"))
            sides.append(("e", f"s_lshl_b32 {s(S_T1)}, {s(S_RB)}, 1"))
            sides.append(("e", f"s_add_u32 {s(S_T1)}, {s(S_T1)}, {s(S_HH)}"))
            sides.append(("e", f"s_lshl_b32 {s(S_T1)}, {s(S_T1)}, 2"))
            sides.append(("e", f"s_add_u32 {s(S_T1)}, {s(S_T1)}, {s(S_W)}"))
            sides.append(("e", f"s_mul_i32 {s(sOW)}, {s(S_T1)}, {16 * 1280}"))
            sides.append(("e", f"v_mul_u32_u24 {v(vER + 3)}, 1280, {v(vER)}"))
            sides.append(("e", f"v_add_u32 {v(vER + 3)}, {v(vER + 3)}, {v(vER + 2)}"))
            for k in range(6):
                sides.append(("vm", f"buffer_load_dwordx2 {v(epi['x'] + 2 * k, 2)}, {v(vER + 3)}, {s(R_X, 4)}, {s(sOW)} offen"))
                if k < 5:
                    sides.append(("e", f"s_add_u32 {s(sOW)}, {s(sOW)}, {3 * 1280}"))
        mains = []
        for mt in range(4):
            for nt in range(5):
                a0 = acc2 + 20 * mt + 4 * nt
                cin = "0" if i == 0 else v(a0, 4)
                mains.append(("e", f"v_mfma_f32_16x16x32_bf16 {v(a0, 4)}, {v(Wb[p] + 4 * nt, 4)}, {v(Hb[p] + 4 * mt, 4)}, {cin}"))
        ids = interleave(st, mains, sides)
        if i == 12 - (D - 1) - 2:
            fs_id = ids[0]
        if nxt < NST:
            last_id[nxt] = ids[-1]
        if i == NST - D + 1:
            epi["id"] = ids[-1]
        if i == NST - 2:
            fe = Wb[(i - 1) % D]
            fe2 = Hb[(i - 1) % D]
            E = [fe + 4 * k for k in range(5)] + [fe2]
            un = fe2 + 4
            gk = vX + 4
            st.e(f"s_lshl_b32 {s(S_T0)}, {s(S_HH)}, 2")
            st.e(f"s_add_u32 {s(S_T0)}, {s(S_T0)}, {s(S_W)}")
            st.e(f"s_lshl_b32 {s(S_T0)}, {s(S_T0)}, 6")
            st.e(f"s_add_u32 {s(S_T0)}, {s(S_T0)}, {GB}")
            st.e(f"v_lshl_add_u32 {v(vT)}, {v(vER)}, 2, {s(S_T0)}")
            gks = [vX + 4, vX + 5, vX + 6, vX + 7, vW, vW + 1]
            for k in range(6):
                st.lg(f"ds_read_b32 {v(gks[k])}, {v(vT)} offset:{12 * k}")
            st.e(f"v_mov_b32 {v(vT + 1)}, 0xffff0000")
            st.wait(vm=epi["id"], lg="all")
            for q, src in ((0, epi["dsk"]), (4, epi["b2"])):
                st.e(f"v_lshlrev_b32 {v(un + q)}, 16, {v(src)}")
                st.e(f"v_and_b32 {v(un + q + 1)}, {v(vT + 1)}, {v(src)}")
                st.e(f"v_lshlrev_b32 {v(un + q + 2)}, 16, {v(src + 1)}")
                st.e(f"v_and_b32 {v(un + q + 3)}, {v(vT + 1)}, {v(src + 1)}")
            for k in range(6):
                xs = epi["x"] + 2 * k
                st.e(f"v_lshlrev_b32 {v(E[k])}, 16, {v(xs)}")
                st.e(f"v_and_b32 {v(E[k] + 1)}, {v(vT + 1)}, {v(xs)}")
                st.e(f"v_lshlrev_b32 {v(E[k] + 2)}, 16, {v(xs + 1)}")
                st.e(f"v_and_b32 {v(E[k] + 3)}, {v(vT + 1)}, {v(xs + 1)}")
                for q in range(4):
                    st.e(f"v_fma_f32 {v(E[k] + q)}, {v(E[k] + q)}, {v(un + q)}, -{v(un + 4 + q)}")
                for q in range(4):
                    st.e(f"v_fma_f32 {v(E[k] + q)}, {v(E[k] + q)}, {v(gks[k])}, {v(un + 4 + q)}")
            epi["E"] = E
    stamp("kend")
    st.e(f"v_and_b32 {v(vT)}, 15, {v(V_LANE)}")
    st.e(f"v_mul_u32_u24 {v(vT)}, 336, {v(vT)}")
    st.e(f"v_lshrrev_b32 {v(vT + 1)}, 4, {v(V_LANE)}")
    st.e(f"v_lshl_add_u32 {v(vT)}, {v(vT + 1)}, 4, {v(vT)}")
    st.e(f"s_mul_i32 {s(S_T0)}, {s(S_W)}, {PARTW}")
    st.e(f"v_add_u32 {v(vT)}, {s(S_T0)}, {v(vT)}")
    st.e(f"s_mul_i32 {s(S_T0)}, {s(S_W)}, {16 * 336}")
    st.e(f"v_mul_u32_u24 {v(vT + 1)}, 336, {v(vER)}")
    st.e(f"v_lshl_add_u32 {v(vT + 1)}, {v(vER + 1)}, 4, {v(vT + 1)}")
    st.e(f"v_add_u32 {v(vT + 1)}, {s(S_T0)}, {v(vT + 1)}")
    st.e(f"v_add_u32 {v(vT + 2)}, {2 * PARTW}, {v(vT + 1)}")
    for mt in range(4):
        for nt in range(5):
            st.lg(f"ds_write_b128 {v(vT)}, {v(acc2 + 20 * mt + 4 * nt, 4)} offset:{mt * 16 * 336 + nt * 64}")
            if mt * 5 + nt == 12:
                st.wait(lg=st.lg_issued - 4)
    R_O = R_W1
    srd(st, R_O, P_OUT, 2048 * 2560)
    st.e(f"v_mul_u32_u24 {v(vER + 3)}, 2560, {v(vER)}")
    st.e(f"v_lshl_add_u32 {v(vER + 3)}, {v(vER + 2)}, 1, {v(vER + 3)}")
    st.e(f"v_cmp_gt_u32 vcc, 60, {v(V_LANE)}")
    st.e(f"v_mov_b32 {v(vER + 2)}, 0x80000000")
    st.e(f"s_mul_i32 {s(sOW)}, {s(S_T1)}, {16 * 2560}")
    st.e(f"v_cndmask_b32 {v(vER + 3)}, {v(vER + 2)}, {v(vER + 3)}, vcc")
    st.e(f"v_cmp_gt_u32 vcc, 20, {v(V_LANE)}")
    st.e("s_nop 0")
    st.wait(lg="all")
    st.e(f"v_cndmask_b32 {v(vER + 2)}, {v(vER + 2)}, {v(vER + 3)}, vcc")
    st.e("s_barrier")
    stamp("red")
    E = epi["E"]
    busy = set()
    for r in E:
        busy.update(range(r, r + 4))
    free = [r for r in range(BIG, 256, 4) if not (set(range(r, r + 4)) & busy)]
    rd = {}
    fi = 0
    order = []
    for k in range(6):
        for pw in range(4):
            rd[k, pw] = free[fi]
            fi += 1
    lgid = {}

    def issue_reads(k):
        for pw in range(4):
            ra = vT + 1 + (pw >> 1)
            lgid[k] = st.lg(f"ds_read_b128 {v(rd[k, pw], 4)}, {v(ra)} offset:{(pw & 1) * PARTW + k * 3 * 336}")

    for k in range(3):
        issue_reads(k)
    for k in range(6):
        st.wait(lg=lgid[k])
        if k + 3 < 6:
            issue_reads(k + 3)
        for q in (0, 2):
            st.e(f"v_pk_add_f32 {v(rd[k, 0] + q, 2)}, {v(rd[k, 0] + q, 2)}, {v(rd[k, 1] + q, 2)}")
            st.e(f"v_pk_add_f32 {v(rd[k, 2] + q, 2)}, {v(rd[k, 2] + q, 2)}, {v(rd[k, 3] + q, 2)}")
        for q in (0, 2):
            st.e(f"v_pk_add_f32 {v(E[k] + q, 2)}, {v(E[k] + q, 2)}, {v(rd[k, 0] + q, 2)}")
        for q in (0, 2):
            st.e(f"v_pk_add_f32 {v(E[k] + q, 2)}, {v(E[k] + q, 2)}, {v(rd[k, 2] + q, 2)}")
        st.vm(f"buffer_store_dwordx4 {v(E[k], 4)}, {v(vER + 3 if k < 5 else vER + 2)}, {s(R_O, 4)}, {s(sOW)} offen")
        if k < 5:
            st.e(f"s_add_u32 {s(sOW)}, {s(sOW)}, {3 * 2560}")
    skip = newlabel("noep")
    st.e(f"s_lshl_b32 {s(S_T0)}, {s(S_CS)}, 2")
    st.e(f"s_add_u32 {s(S_T0)}, {s(S_T0)}, {s(S_W)}")
    st.e(f"s_lshl_b32 {s(S_T0)}, {s(S_T0)}, 4")
    st.e(f"s_add_u32 {s(S_T0)}, {s(S_T0)}, {s(S_RB)}")
    st.e(f"s_cmp_lg_u32 {s(S_T0)}, 15")
    st.e(f"s_cbranch_scc1 {skip}")
    st.e(f"v_mov_b32 {v(vT)}, {s(S_NONCE)}")
    st.e("s_mov_b64 exec, 1")
    st.e(f"buffer_store_dword {v(vT)}, off, {s(R_WS, 4)}, 0 sc1")
    st.e("s_mov_b64 exec, -1")
    st.label(skip)
    if STAMPS:
        st.e("s_waitcnt vmcnt(0)")
    stamp("end")
    stamp.flush(vT)
    if OPT["x_pad"]:
        st.label("L_pad")
        st.e(f"s_memrealtime {s(S_T0, 2)}")
        st.e("s_waitcnt lgkmcnt(0)")
        st.e(f"s_sub_u32 {s(S_T0)}, {s(S_T0)}, {s(P_DBG)}")
        st.e(f"s_cmp_lt_u32 {s(S_T0)}, {OPT['x_pad'] * 100}")
        st.e("s_cbranch_scc1 L_pad")
    st.e("s_endpgm")
    return stamp.names


def gen_S(st):
    sr = Regs("s", S_FREE, 102)
    vr = Regs("v", 4, 256)
    st.label("L_S")
    st.e(f"s_sub_u32 {s(S_W)}, {s(S_W)}, 4")
    stamp = Stamper(st, sr, "S")
    stamp("start")
    R_A = sr.alloc("R_A", 4, 4)
    R_B = sr.alloc("R_B", 4, 4)
    sOA, sOB, sSA, sMA, sMB = [sr.alloc(n) for n in ("sOA", "sOB", "sSA", "sMA", "sMB")]
    sE5 = sr.alloc("sE5", 2)
    sW2, sMP = sr.alloc("sW2"), sr.alloc("sMP")
    sMask = [P_X, P_DSK, P_BX, P_B1, P_B2, P_OUT, P_DBG]
    sP = sr.alloc("sP", 4)
    vDA = vr.alloc("vDA", 5)
    vX = vr.alloc("vX", 8)
    vB = vr.alloc("vB", 8)
    vB2 = vr.alloc("vB2", 8)
    vL16b = vr.alloc("vL16b")
    vPF = vr.alloc("vPF")
    vPD = vr.alloc("vPD")
    vSig = vr.alloc("vSig")
    vSgn = vr.alloc("vSgn")
    vT = vr.alloc("vT", 4, 4)
    acc = [vr.alloc(f"acc{b}", 16, 4) for b in range(3)]
    frag = vr.alloc("frag", 32, 4)
    fX = [frag + 16 * p for p in range(2)]
    fB = [[frag + 16 * p + 4 + 4 * b for b in range(3)] for p in range(2)]
    names = ["lr", "li", "l16r", "l16i", "psr", "psi", "qr", "qi", "r8r", "r8i", "A", "Bc"]
    K = {n: [vr.alloc(f"{n}{b}") for b in range(3)] for n in names}
    tn = ["Lr", "Li", "dt", "la", "rv", "m", "an", "cs", "liu"]
    Tm = {n: [vr.alloc(f"t{n}{b}") for b in range(3)] for n in tn}
    big = vr.alloc("big", 48, 4)

    st.e(f"v_bfe_u32 {v(vT)}, {v(V_LANE)}, 1, 4")
    st.e(f"s_mul_i32 {s(S_T0)}, {s(S_CS)}, 40")
    st.e(f"v_add_u32 {v(vT)}, {s(S_T0)}, {v(vT)}")
    st.e(f"v_add_u32 {v(vT + 1)}, 32, {v(vT)}")
    st.e(f"v_min_u32 {v(vT + 1)}, 639, {v(vT + 1)}")
    st.e(f"v_lshlrev_b32 {v(vT)}, 1, {v(vT)}")
    st.e(f"v_lshlrev_b32 {v(vT + 1)}, 1, {v(vT + 1)}")
    for n, ptr in (("Lr", P_LRE), ("Li", P_LIM), ("dt", P_LDT)):
        st.vm(f"global_load_ushort {v(Tm[n][0])}, {v(vT)}, {s(ptr, 2)}")
        st.vm(f"global_load_ushort {v(Tm[n][1])}, {v(vT)}, {s(ptr, 2)} offset:32")
        st.vm(f"global_load_ushort {v(Tm[n][2])}, {v(vT + 1)}, {s(ptr, 2)}")
    lC, lJ = newlabel("packC"), newlabel("packJ")
    sV = sOB
    st.e(f"s_lshl_b32 {s(sV)}, s2, 2")
    st.e(f"s_add_u32 {s(sV)}, {s(sV)}, {s(S_W)}")
    st.e(f"s_sub_u32 {s(S_T0)}, {s(sV)}, 880")
    st.e(f"s_cselect_b32 {s(sV)}, {s(sV)}, {s(S_T0)}")
    st.e(f"v_lshrrev_b32 {v(vT)}, 3, {v(V_LANE)}")
    st.e(f"v_mul_u32_u24 {v(vT)}, 1280, {v(vT)}")
    st.e(f"v_and_b32 {v(vT + 1)}, 7, {v(V_LANE)}")
    st.e(f"v_lshl_add_u32 {v(vT)}, {v(vT + 1)}, 4, {v(vT)}")
    st.e(f"s_mul_i32 {s(S_T0)}, {s(S_W)}, 7680")
    st.e(f"s_add_u32 m0, {s(S_T0)}, {TS}")
    sTy = sE5
    st.e(f"s_sub_u32 {s(S_T1)}, {s(sV)}, 480")
    st.e(f"s_cselect_b32 {s(sTy)}, 0, 1")
    st.e(f"s_cselect_b32 {s(S_T1)}, {s(sV)}, {s(S_T1)}")
    st.e(f"s_mul_i32 {s(S_T2)}, {s(S_T1)}, 6554")
    st.e(f"s_lshr_b32 {s(S_T2)}, {s(S_T2)}, 16")
    st.e(f"s_mul_i32 {s(S_T3)}, {s(S_T2)}, 10")
    st.e(f"s_sub_u32 {s(S_T3)}, {s(S_T1)}, {s(S_T3)}")
    st.e(f"s_cmp_eq_u32 {s(sTy)}, 1")
    st.e(f"s_cbranch_scc1 {lC}")
    srd(st, R_A, P_W2, 1536 * 1280)
    st.e(f"s_mul_i32 {s(sOA)}, {s(S_T2)}, {32 * 1280}")
    st.e(f"s_lshl_b32 {s(S_T0)}, {s(S_T3)}, 7")
    st.e(f"s_add_u32 {s(sOA)}, {s(sOA)}, {s(S_T0)}")
    for i in range(4):
        st.e(f"buffer_load_dwordx4 {v(vT)}, {s(R_A, 4)}, {s(sOA)} offen offset:{1024 * i} lds")
        if i < 3:
            st.e(f"s_add_u32 {s(sOA)}, {s(sOA)}, {10240 - 1024}")
    st.e(f"s_mul_i32 {s(S_T2)}, {s(S_T2)}, 5120")
    st.e(f"s_add_u32 {s(S_T2)}, {s(S_T2)}, {WS_W2P:#x}")
    st.e(f"s_lshl_b32 {s(S_T3)}, {s(S_T3)}, 2")
    for k in range(4):
        st.e(f"s_add_u32 {s(S_T0)}, {s(S_T3)}, {k}")
        st.e(f"s_mul_i32 {s(S_T1)}, {s(S_T0)}, 205")
        st.e(f"s_lshr_b32 {s(S_T1)}, {s(S_T1)}, 10")
        st.e(f"s_mul_i32 {s(S_T1)}, {s(S_T1)}, {NSS - 5 * 1024}")
        st.e(f"s_lshl_b32 {s(S_T0)}, {s(S_T0)}, 10")
        st.e(f"s_add_u32 {s(S_T0)}, {s(S_T0)}, {s(S_T1)}")
        st.e(f"s_add_u32 {s(sP + k)}, {s(S_T0)}, {s(S_T2)}")
    st.e(f"s_branch {lJ}")
    st.label(lC)
    srd(st, R_A, P_CRE, 640 * 1280)
    srd(st, R_B, P_CIM, 640 * 1280)
    st.e(f"s_mul_i32 {s(sOA)}, {s(S_T2)}, {16 * 1280}")
    st.e(f"s_lshl_b32 {s(S_T0)}, {s(S_T3)}, 7")
    st.e(f"s_add_u32 {s(sOA)}, {s(sOA)}, {s(S_T0)}")
    st.e(f"s_add_u32 {s(S_T0)}, {s(sOA)}, {10240 - 1024}")
    st.e(f"buffer_load_dwordx4 {v(vT)}, {s(R_A, 4)}, {s(sOA)} offen lds")
    st.e(f"buffer_load_dwordx4 {v(vT)}, {s(R_A, 4)}, {s(S_T0)} offen offset:1024 lds")
    st.e(f"s_add_u32 m0, m0, 2048")
    st.e("s_nop 0")
    st.e(f"buffer_load_dwordx4 {v(vT)}, {s(R_B, 4)}, {s(sOA)} offen lds")
    st.e(f"buffer_load_dwordx4 {v(vT)}, {s(R_B, 4)}, {s(S_T0)} offen offset:1024 lds")
    st.e(f"s_mul_i32 {s(S_T1)}, {s(S_T2)}, 205")
    st.e(f"s_lshr_b32 {s(S_T1)}, {s(S_T1)}, 10")
    st.e(f"s_mul_i32 {s(S_T1)}, {s(S_T1)}, {NSS - 5 * 1024}")
    st.e(f"s_lshl_b32 {s(S_T2)}, {s(S_T2)}, 10")
    st.e(f"s_add_u32 {s(S_T1)}, {s(S_T1)}, {s(S_T2)}")
    st.e(f"s_mul_i32 {s(S_T3)}, {s(S_T3)}, {4 * 5120}")
    st.e(f"s_add_u32 {s(S_T1)}, {s(S_T1)}, {s(S_T3)}")
    st.e(f"s_add_u32 {s(sP)}, {s(S_T1)}, {WS_W2P + 48 * 5120:#x}")
    for k in range(1, 4):
        st.e(f"s_add_u32 {s(sP + k)}, {s(sP + k - 1)}, 5120")
    st.label(lJ)
    st.vm_issued += 4
    pack_ld = st.vm_issued
    sTy2 = sW2
    st.e(f"s_mov_b32 {s(sTy2)}, {s(sTy)}")
    lW, lK = newlabel("dW"), newlabel("dK")
    st.e(f"s_cmp_ge_u32 {s(S_W)}, 2")
    st.e(f"s_cbranch_scc1 {lW}")
    st.e(f"s_cmp_eq_u32 {s(S_W)}, 0")
    st.e(f"s_cselect_b32 {s(R_A)}, {s(P_BRE)}, {s(P_BIM)}")
    st.e(f"s_cselect_b32 {s(R_A + 1)}, {s(P_BRE + 1)}, {s(P_BIM + 1)}")
    st.e(f"s_mov_b32 {s(R_A + 2)}, {640 * 1280:#x}")
    st.e(f"s_mov_b32 {s(R_A + 3)}, 0x20000")
    st.e(f"s_mov_b32 {s(R_B)}, {s(R_A)}")
    st.e(f"s_mov_b32 {s(R_B + 1)}, {s(R_A + 1)}")
    st.e(f"s_mov_b32 {s(R_B + 2)}, {640 * 1280:#x}")
    st.e(f"s_mov_b32 {s(R_B + 3)}, 0x20000")
    st.e(f"v_lshrrev_b32 {v(vT + 1)}, 4, {v(V_LANE)}")
    st.e(f"s_lshl_b32 {s(S_T0)}, {s(S_W)}, 2")
    st.e(f"v_xor_b32 {v(vT + 1)}, {s(S_T0)}, {v(vT + 1)}")
    st.e(f"v_lshlrev_b32 {v(vT + 1)}, 4, {v(vT + 1)}")
    st.e(f"v_xor_b32 {v(vDA)}, {v(vT + 1)}, {v(vT)}")
    st.e(f"v_xor_b32 {v(vDA + 1)}, 64, {v(vDA)}")
    st.e(f"v_add_u32 {v(vDA + 1)}, {10240 - 1024}, {v(vDA + 1)}")
    st.e(f"v_add_u32 {v(vDA + 2)}, {2 * (10240 - 1024)}, {v(vDA)}")
    st.e(f"v_add_u32 {v(vDA + 3)}, {2 * (10240 - 1024)}, {v(vDA + 1)}")
    st.e(f"v_add_u32 {v(vDA + 4)}, {4 * 10240}, {v(vDA)}")
    st.e(f"s_mul_i32 {s(sOA)}, {s(S_CS)}, {40 * 1280}")
    st.e(f"s_mov_b32 {s(sOB)}, {s(sOA)}")
    st.e(f"s_mov_b32 {s(sSA)}, 128")
    st.e(f"s_mul_i32 {s(sMA)}, {s(S_W)}, 5120")
    st.e(f"s_add_u32 {s(sMA)}, {s(sMA)}, {O_BRE}")
    st.e(f"s_add_u32 {s(sMB)}, {s(sMA)}, 4096")
    st.e(f"s_mov_b64 {s(sE5, 2)}, -1")
    st.e(f"s_branch {lK}")
    st.label(lW)
    srd(st, R_A, P_W1, 640 * 3072)
    srd(st, R_B, P_GATE, 1280)
    st.e(f"s_sub_u32 {s(S_T0)}, {s(S_W)}, 1")
    st.e(f"s_lshl_b32 {s(S_T0)}, {s(S_T0)}, 8")
    for i in range(4):
        st.e(f"v_add_u32 {v(vT + 1)}, {s(S_T0)}, {v(V_LANE)}")
        st.e(f"v_mul_u32_u24 {v(vT + 2)}, 43691, {v(vT + 1)}")
        st.e(f"v_lshrrev_b32 {v(vT + 2)}, 19, {v(vT + 2)}")
        st.e(f"v_mul_u32_u24 {v(vT + 2)}, {3072 - 192}, {v(vT + 2)}")
        st.e(f"v_lshl_add_u32 {v(vDA + i)}, {v(vT + 1)}, 4, {v(vT + 2)}")
        if i:
            st.e(f"v_subrev_u32 {v(vDA + i)}, {1024 * i}, {v(vDA + i)}")
        if i < 3:
            st.e(f"s_add_u32 {s(S_T0)}, {s(S_T0)}, 64")
    st.e(f"v_mov_b32 {v(vDA + 4)}, {v(V_L16)}")
    st.e(f"s_mul_i32 {s(sOA)}, {s(S_CS)}, 192")
    st.e(f"s_mov_b32 {s(sOB)}, 0")
    st.e(f"s_mov_b32 {s(sSA)}, {64 * 3072}")
    st.e(f"s_sub_u32 {s(sMA)}, {s(S_W)}, 1")
    st.e(f"s_lshl_b32 {s(sMA)}, {s(sMA)}, 12")
    st.e(f"s_add_u32 {s(sMA)}, {s(sMA)}, {O_W1}")
    st.e(f"s_mov_b32 {s(sMB)}, {O_GATE}")
    st.e(f"s_mov_b64 {s(sE5, 2)}, 0xff")
    st.label(lK)

    def dma_chunk(c):
        slot = c % 3
        out = [("e", f"s_add_u32 m0, {s(sMA)}, {slot * SL}"),
               ("e", "s_nop 0")]
        for i in range(4):
            out.append(("vm", f"buffer_load_dwordx4 {v(vDA + i)}, {s(R_A, 4)}, {s(sOA)} offen offset:{1024 * i} lds"))
        out.append(("e", f"s_add_u32 m0, {s(sMB)}, {slot * SL}"))
        out.append(("e", f"s_add_u32 {s(sOA)}, {s(sOA)}, {s(sSA)}"))
        out.append(("vm", f"s_mov_b64 exec, {s(sE5, 2)}\n"
                          f"    buffer_load_dwordx4 {v(vDA + 4)}, {s(R_B, 4)}, {s(sOB)} offen lds\n"
                          f"    s_mov_b64 exec, -1"))
        out.append(("e", f"s_add_u32 {s(sOB)}, {s(sOB)}, 128"))
        return out

    chunk_id = {}
    for c in range(3):
        for it in dma_chunk(c):
            r = put(st, it)
            if r:
                chunk_id[c] = r
    st.e(f"v_mov_b32 {v(vT + 1)}, {SY}")
    st.e(f"v_lshl_add_u32 {v(vT + 1)}, {v(V_LANE)}, 2, {v(vT + 1)}")
    st.e(f"v_mov_b32 {v(vT + 2)}, 0")
    st.e("s_mov_b64 exec, 0xffff")
    st.lg(f"ds_write_b32 {v(vT + 1)}, {v(vT + 2)}")
    st.e("s_mov_b64 exec, -1")
    xread_addrs(st, vX, vT)
    st.e(f"v_and_b32 {v(vT)}, 1, {v(V_LANE)}")
    st.e(f"v_bfe_u32 {v(vT + 1)}, {v(V_LANE)}, 1, 4")
    st.e(f"v_mad_u32_u24 {v(vT + 1)}, {v(vT)}, 40, {v(vT + 1)}")
    st.e(f"v_bfe_u32 {v(vT + 2)}, {v(vT + 1)}, 1, 3")
    st.e(f"v_lshrrev_b32 {v(vT + 3)}, 5, {v(V_LANE)}")
    st.e(f"v_xor_b32 {v(vT + 2)}, {v(vT + 2)}, {v(vT + 3)}")
    st.e(f"v_lshlrev_b32 {v(vT + 2)}, 4, {v(vT + 2)}")
    st.e(f"v_lshl_add_u32 {v(vT + 1)}, {v(vT + 1)}, 7, {v(vT + 2)}")
    st.e(f"v_add_u32 {v(vB)}, {O_BRE}, {v(vT + 1)}")
    st.e(f"v_add_u32 {v(vB2)}, 4096, {v(vB)}")
    st.e(f"v_lshlrev_b32 {v(vT + 1)}, 4, {v(vT + 3)}")
    st.e(f"v_add_u32 {v(vT + 1)}, {O_GATE}, {v(vT + 1)}")
    st.e(f"v_and_b32 {v(vT + 2)}, 16, {v(V_LANE)}")
    st.e(f"v_cmp_eq_u32 vcc, 0, {v(vT + 2)}")
    st.e(f"s_lshl_b32 {s(S_T0)}, {s(S_W)}, 1")
    st.e(f"v_add_u32 {v(vSig)}, {s(S_T0)}, {v(vT + 3)}")
    st.e(f"v_cndmask_b32 {v(vB2)}, {v(vT + 1)}, {v(vB2)}, vcc")
    for base in (vB, vB2):
        for k in range(1, 4):
            st.e(f"v_xor_b32 {v(base + k)}, {32 * k}, {v(base)}")
        for k in range(4):
            st.e(f"v_add_u32 {v(base + 4 + k)}, {2 * SL}, {v(base + k)}")
    st.e(f"v_cvt_f32_u32 {v(vT)}, {v(vT)}")
    st.e(f"v_fma_f32 {v(vSgn)}, {v(vT)}, 2.0, -1.0")
    st.e(f"v_add_u32 {v(vL16b)}, 3072, {v(V_L16)}")
    lC2, lJ2 = newlabel("packC"), newlabel("packJ")
    st.e(f"s_mul_i32 {s(S_T0)}, {s(S_W)}, 7680")
    st.e(f"s_add_u32 {s(S_T0)}, {s(S_T0)}, {TS}")
    st.e(f"s_cmp_eq_u32 {s(sTy2)}, 1")
    st.e(f"s_cbranch_scc1 {lC2}")
    st.e(f"v_bfe_u32 {v(vT)}, {v(V_LANE)}, 2, 3")
    st.e(f"v_lshrrev_b32 {v(vT + 1)}, 5, {v(V_LANE)}")
    st.e(f"v_lshl_add_u32 {v(vT)}, {v(vT + 1)}, 4, {v(vT)}")
    st.e(f"v_and_b32 {v(vT + 1)}, 3, {v(V_LANE)}")
    st.e(f"v_lshlrev_b32 {v(vT + 1)}, 3, {v(vT + 1)}")
    st.e(f"v_lshl_add_u32 {v(vT)}, {v(vT)}, 7, {v(vT + 1)}")
    st.e(f"v_add_u32 {v(vT)}, {s(S_T0)}, {v(vT)}")
    st.wait(vm=pack_ld)
    for k in range(4):
        for e2 in range(2):
            st.e(f"ds_read_b64_tr_b16 {v(big + 4 * k + 2 * e2, 2)}, {v(vT)} offset:{e2 * 1024 + k * 32}")
    st.e(f"s_branch {lJ2}")
    st.label(lC2)
    st.e(f"v_and_b32 {v(vT)}, 31, {v(V_LANE)}")
    st.e(f"v_lshrrev_b32 {v(vT + 1)}, 5, {v(V_LANE)}")
    st.e(f"v_lshlrev_b32 {v(vT + 1)}, 4, {v(vT + 1)}")
    st.e(f"v_lshl_add_u32 {v(vT)}, {v(vT)}, 7, {v(vT + 1)}")
    st.e(f"v_add_u32 {v(vT)}, {s(S_T0)}, {v(vT)}")
    st.wait(vm=pack_ld)
    for k in range(4):
        st.e(f"ds_read_b128 {v(big + 4 * k, 4)}, {v(vT)} offset:{k * 32}")
    st.label(lJ2)
    nonce_from_epoch(st)
    st.e("s_waitcnt lgkmcnt(0)")
    for k in range(4):
        pack_st = st.vm(f"buffer_store_dwordx4 {v(big + 4 * k, 4)}, {v(V_L16)}, {s(R_WS, 4)}, {s(sP + k)} offen sc1")
    stamp("packst")
    pack_flag_addr(st, vPF, vT)
    st.e(f"s_mul_i32 {s(sW2)}, {s(S_NS)}, {NSS}")
    st.e(f"s_mul_i32 {s(S_T0)}, {s(S_W)}, {12 * 5120}")
    st.e(f"s_add_u32 {s(sW2)}, {s(sW2)}, {s(S_T0)}")
    st.e(f"s_add_u32 {s(sW2)}, {s(sW2)}, {WS_W2P + 2 * 5120 + 3072:#x}")
    st.e(f"s_lshl_b32 {s(sMP)}, {s(S_W)}, 13")
    st.e(f"s_add_u32 {s(sMP)}, {s(sMP)}, 4096")

    fill = []

    def f3(fmt, **kw):
        for b in range(3):
            m = {k: v(val[b]) for k, val in {**K, **Tm}.items()}
            m.update(kw)
            fill.append(("e", fmt.format(**m)))

    sg, sig = v(vSgn), v(vSig)
    f3("v_lshlrev_b32 {dt}, 16, {dt}")
    f3("v_lshlrev_b32 {Lr}, 16, {Lr}")
    f3("v_lshlrev_b32 {Li}, 16, {Li}")
    f3("v_mul_f32 {dt}, " + LOG2E + ", {dt}")
    f3("v_exp_f32 {dt}, {dt}")
    f3("v_cvt_pk_bf16_f32 {dt}, {dt}, {dt}")
    f3("v_lshlrev_b32 {dt}, 16, {dt}")
    f3("v_mul_f32 {la}, {dt}, {Lr}")
    f3("v_mul_f32 {rv}, {dt}, {Li}")
    f3("v_mul_f32 {la}, " + LOG2E + ", {la}")
    f3("v_mul_f32 {rv}, 0.15915494, {rv}")

    def powr(nop, r, i, keep_unsigned=False):
        if nop is None:
            f3("v_exp_f32 {m}, {la}")
            f3("v_fract_f32 {an}, {rv}")
        else:
            f3("v_mul_f32 {m}, " + nop + ", {la}")
            f3("v_mul_f32 {an}, " + nop + ", {rv}")
            f3("v_exp_f32 {m}, {m}")
            f3("v_fract_f32 {an}, {an}")
        f3("v_cos_f32 {cs}, {an}")
        f3("v_sin_f32 {an}, {an}")
        f3("v_mul_f32 {" + r + "}, {m}, {cs}")
        if keep_unsigned:
            f3("v_mul_f32 {liu}, {m}, {an}")
            f3("v_mul_f32 {" + i + "}, " + sg + ", {liu}")
        else:
            f3("v_mul_f32 {m}, " + sg + ", {m}")
            f3("v_mul_f32 {" + i + "}, {m}, {an}")

    powr(None, "lr", "li", keep_unsigned=True)
    f3("v_add_f32 {cs}, -1.0, {lr}")
    f3("v_mul_f32 {m}, {Lr}, {Lr}")
    f3("v_fmac_f32 {m}, {Li}, {Li}")
    f3("v_rcp_f32 {m}, {m}")
    f3("v_mul_f32 {A}, {cs}, {Lr}")
    f3("v_fmac_f32 {A}, {liu}, {Li}")
    f3("v_mul_f32 {Bc}, {liu}, {Lr}")
    f3("v_fma_f32 {Bc}, -{cs}, {Li}, {Bc}")
    f3("v_mul_f32 {m}, -2.0, {m}")
    f3("v_mul_f32 {A}, {m}, {A}")
    f3("v_mul_f32 {Bc}, {m}, {Bc}")
    f3("v_mul_f32 {A}, " + sg + ", {A}")
    powr("0x41800000", "l16r", "l16i")
    fill.append(("e", f"v_cvt_f32_u32 {v(vT + 2)}, {sig}"))
    fill.append(("e", f"v_mul_f32 {v(vT + 2)}, 0x41800000, {v(vT + 2)}"))
    fill.append(("e", f"v_mul_f32 {v(vT + 3)}, 0x41000000, {v(vT + 2)}"))
    powr(v(vT + 2), "psr", "psi")
    powr(v(vT + 3), "qr", "qi")
    powr("0x44800000", "r8r", "r8i")
    for j in range(1, 8):
        fill.append(("e", f"v_cmp_eq_u32 {s(sMask[j - 1], 2)}, {j}, {sig}"))
    per = -(-len(fill) // 38)

    def reads(c, sidx):
        slot, p = c % 3, sidx & 1
        out = []
        ra, off = slot_addr(vX + sidx, vX + 4 + sidx, slot, O_X)
        out.append(("lg", f"ds_read_b128 {v(fX[p], 4)}, {v(ra)} offset:{off}"))
        for b in range(3):
            base = vB if b < 2 else vB2
            ra, off = slot_addr(base + sidx, base + 4 + sidx, slot, 2048 * b if b < 2 else 0)
            out.append(("lg", f"ds_read_b128 {v(fB[p][b], 4)}, {v(ra)} offset:{off}"))
        return out

    def mfmas(c, sidx):
        p = sidx & 1
        first = (c == 0 and sidx == 0)
        return [("e", f"v_mfma_f32_32x32x16_bf16 {v(acc[b], 16)}, {v(fX[p], 4)}, {v(fB[p][b], 4)}, "
                      + ("0" if first else v(acc[b], 16))) for b in range(3)]

    st.wait(vm=chunk_id[0], lg="all")
    st.e("s_barrier")
    stamp("B0")
    for it in reads(0, 0):
        put(st, it)
    w2ids = []
    EXP["inloop"] = True
    for c in range(10):
        for sidx in range(4):
            fl, fill = fill[:per], fill[per:]
            if sidx < 3:
                st.wait(lg="all")
                interleave(st, mfmas(c, sidx), reads(c, sidx + 1) + fl)
            else:
                if c < 9:
                    st.wait(vm=chunk_id[c + 1], lg="all")
                else:
                    st.wait(lg="all")
                if c == 7:
                    flag_check(st, vPD, f"buffer_load_dword {v(vPD)}, {v(vPF)}, {s(R_WS, 4)}, 0 offen sc1")
                st.e("s_barrier")
                if c in (2, 5, 8):
                    stamp(f"B{c + 1}")
                sides = reads(c + 1, 0) if c < 9 else []
                if c == 2:
                    assert chunk_id[3] >= pack_st
                    sides = sides + [
                        ("e", f"s_lshl_b32 {s(S_T0)}, s2, 5"),
                        ("e", f"s_add_u32 {s(S_T0)}, {s(S_T0)}, {s(S_W)}"),
                        ("e", f"s_lshl_b32 {s(S_T0)}, {s(S_T0)}, 2"),
                        ("e", f"s_add_u32 {s(S_T0)}, {s(S_T0)}, {WS_FP:#x}"),
                        ("e", f"v_mov_b32 {v(vT)}, {s(S_NONCE)}"),
                        ("vm", f"s_mov_b64 exec, 1\n"
                               f"    buffer_store_dword {v(vT)}, off, {s(R_WS, 4)}, {s(S_T0)} sc1\n"
                               f"    s_mov_b64 exec, -1")]
                if c == 5:
                    sides = sides + [("vm", f"buffer_load_dword {v(vPD)}, {v(vPF)}, {s(R_WS, 4)}, 0 offen sc1")]
                if c + 3 <= 9:
                    sides = sides + dma_chunk(c + 3)
                else:
                    sides = sides + w2_prefetch(st, c - 7, "S", sW2, vL16b, sMP)
                ids = interleave(st, mfmas(c, sidx), sides + fl)
                if c + 3 <= 9:
                    chunk_id[c + 3] = ids[-1]
                else:
                    w2ids.append(ids[-1])
    assert not fill
    EXP["inloop"] = False
    stamp("loopend")
    vEX = vX
    vSYa = vX + 1
    st.e(f"v_and_b32 {v(vT)}, 31, {v(V_LANE)}")
    st.e(f"v_lshlrev_b32 {v(vT)}, 5, {v(vT)}")
    st.e(f"v_add_u32 {v(vX + 2)}, {EX1}, {v(vT)}")
    st.e(f"v_lshl_add_u32 {v(vEX)}, {v(vSig)}, 2, {v(vX + 2)}")
    st.e(f"v_mov_b32 {v(vSYa)}, {SY}")
    st.e(f"s_lshl_b32 {s(S_T0)}, {s(S_W)}, 2")
    st.e(f"v_add_u32 {v(vX + 3)}, {s(S_T0)}, {v(vSYa)}")
    st.e(f"v_mov_b32 {v(vX + 4)}, -1")
    st.nop(5)
    hA = [frag + b for b in range(3)]
    hB = [frag + 3 + b for b in range(3)]
    cur = [acc[b] for b in range(3)]
    for j in range(1, 16):
        dst = hA if j & 1 else hB
        for b in range(3):
            st.e(f"v_fma_f32 {v(dst[b])}, {v(K['lr'][b])}, {v(cur[b])}, {v(acc[b] + j)}")
        for b in range(3):
            st.e(f"v_fmac_f32_dpp {v(dst[b])}, {v(cur[b])}, {v(K['li'][b])} {DPP}")
        cur = dst
    for b in range(3):
        st.lg(f"ds_write_b32 {v(vEX)}, {v(cur[b])} offset:{1024 * b}")
    st.lg(f"ds_write_b32 {v(vX + 3)}, {v(vX + 4)}")
    lds_flag_wait(st, vSYa, 0, vT)
    Ev = [big + 8 * b for b in range(3)]
    for b in range(3):
        for q in range(2):
            st.lg(f"ds_read_b128 {v(Ev[b] + 4 * q, 4)}, {v(vX + 2)} offset:{1024 * b + 16 * q}")
    Pv = [frag + 6 + b for b in range(3)]
    Tv = [frag + 10 + 2 * b for b in range(3)]
    for b in range(3):
        st.e(f"v_mov_b32 {v(Pv[b])}, 0")
        st.e(f"v_mov_b32 {v(Tv[b] + 1)}, {s(S_NONCE)}")
    st.wait(lg="all")
    cur = [Ev[b] for b in range(3)]
    for j in range(1, 8):
        dst = Tv if j == 7 else (hA if j & 1 else hB)
        for b in range(3):
            st.e(f"v_fma_f32 {v(dst[b])}, {v(K['l16r'][b])}, {v(cur[b])}, {v(Ev[b] + j)}")
        for b in range(3):
            st.e(f"v_fmac_f32_dpp {v(dst[b])}, {v(cur[b])}, {v(K['l16i'][b])} {DPP}")
        for b in range(3):
            st.e(f"v_cndmask_b32 {v(Pv[b])}, {v(Pv[b])}, {v(cur[b])}, {s(sMask[j - 1], 2)}")
        cur = dst
    st.e(f"s_lshl_b32 {s(S_T0)}, {s(S_RB)}, 4")
    st.e(f"s_add_u32 {s(S_T0)}, {s(S_T0)}, {s(S_CS)}")
    st.e(f"s_mul_i32 {s(S_T0)}, {s(S_T0)}, 768")
    st.e(f"s_add_u32 {s(S_T0)}, {s(S_T0)}, {WS_T:#x}")
    st.e(f"s_cmp_eq_u32 {s(S_W)}, 0")
    st.e(f"s_cselect_b32 {s(S_T1)}, 0, 0x80000000")
    st.e(f"v_lshl_add_u32 {v(vT)}, {v(V_LANE)}, 3, {s(S_T1)}")
    st.e("s_mov_b32 exec_hi, 0")
    for b in range(3):
        st.vm(f"buffer_store_dwordx2 {v(Tv[b], 2)}, {v(vT)}, {s(R_WS, 4)}, {s(S_T0)} offen offset:{256 * b} sc1")
    st.e("s_mov_b32 exec_hi, -1")
    stamp("Tpub")
    gv = big + 24
    st.e(f"v_lshlrev_b32 {v(vT)}, 6, {v(vSig)}")
    st.e(f"v_add_u32 {v(vX + 5)}, {GS}, {v(vT)}")
    st.e(f"s_mov_b32 exec_lo, 0x10000")
    st.e(f"s_mov_b32 exec_hi, 0x10000")
    for q in range(4):
        st.lg(f"ds_write_b128 {v(vX + 5)}, {v(acc[2] + 4 * q, 4)} offset:{16 * q}")
    st.e("s_mov_b64 exec, -1")
    st.e(f"v_and_b32 {v(vT)}, 31, {v(V_LANE)}")
    st.e(f"s_lshl_b32 {s(S_T0)}, {s(S_W)}, 7")
    st.e(f"s_add_u32 {s(S_T0)}, {s(S_T0)}, {GS}")
    st.e(f"v_lshl_add_u32 {v(vT)}, {v(vT)}, 2, {s(S_T0)}")
    st.lg(f"ds_read_b32 {v(vT + 1)}, {v(vT)}")
    st.wait(lg="all")
    st.e(f"v_mul_f32 {v(vT + 1)}, {NLOG2E}, {v(vT + 1)}")
    st.e(f"v_exp_f32 {v(vT + 1)}, {v(vT + 1)}")
    st.e("s_nop 0")
    st.e(f"v_add_f32 {v(vT + 1)}, 1.0, {v(vT + 1)}")
    st.e(f"v_rcp_f32 {v(vT + 1)}, {v(vT + 1)}")
    st.e("s_nop 0")
    st.lg(f"ds_write_b32 {v(vT)}, {v(vT + 1)} offset:512")
    for q in range(4):
        st.lg(f"ds_read_b128 {v(gv + 4 * q, 4)}, {v(vX + 5)} offset:{512 + 16 * q}")
    st.wait(vm=w2ids[-1])
    st.lg(f"ds_write_b32 {v(vX + 3)}, {v(vX + 4)} offset:32")
    vC = vB
    mk = [P_BRE, P_BIM, P_CRE, P_CIM]
    st.e(f"s_sub_u32 {s(S_T0)}, {s(S_RB)}, 1")
    st.e(f"v_sub_u32 {v(vT)}, {s(S_T0)}, {v(vSig)}")
    st.e(f"v_and_b32 {v(vT + 1)}, 31, {v(V_LANE)}")
    st.e(f"s_mul_i32 {s(S_T1)}, {s(S_CS)}, 768")
    st.e(f"s_add_u32 {s(S_T1)}, {s(S_T1)}, {WS_T:#x}")
    st.e(f"v_lshl_add_u32 {v(vT + 1)}, {v(vT + 1)}, 3, {s(S_T1)}")
    st.e(f"v_mov_b32 {v(vT + 3)}, 0x80000000")
    st.e(f"s_mov_b32 {s(S_T2)}, 0xffff0000")
    st.e(f"s_mov_b32 {s(S_T3)}, 0xffff0000")
    for dl in range(2):
        if dl:
            st.e(f"v_subrev_u32 {v(vT)}, 8, {v(vT)}")
        st.e(f"v_cmp_gt_i32 {s(mk[2 * dl], 2)}, 0, {v(vT)}")
        st.e(f"v_mul_i32_i24 {v(vT + 2)}, {16 * 768}, {v(vT)}")
        st.e(f"v_add_u32 {v(vT + 2)}, {v(vT + 2)}, {v(vT + 1)}")
        st.e(f"s_or_b64 {s(mk[2 * dl + 1], 2)}, {s(mk[2 * dl], 2)}, {s(S_T2, 2)}")
        st.e(f"v_cndmask_b32 {v(vC + 2 * dl)}, {v(vT + 2)}, {v(vT + 3)}, {s(mk[2 * dl], 2)}")
        st.e(f"v_cndmask_b32 {v(vC + 2 * dl + 1)}, {v(vT + 2)}, {v(vT + 3)}, {s(mk[2 * dl + 1], 2)}")
    Cv = [[big + 4 * b + 2 * dl for dl in range(2)] for b in range(3)]

    def carry_loads():
        out = []
        for dl in range(2):
            for b in range(3):
                ra = vC + 2 * dl + (1 if b == 2 else 0)
                out.append(f"buffer_load_dwordx2 {v(Cv[b][dl], 2)}, {v(ra)}, {s(R_WS, 4)}, 0 offen offset:{256 * b} sc1")
        return out

    tt = [frag + 16 + k for k in range(6)]
    for j in range(16):
        for b in range(3):
            st.e(f"v_mul_f32_dpp {v(tt[3 * (j & 1) + b])}, {v(acc[b] + j)}, {v(K['Bc'][b])} {DPP}")
        for b in range(3):
            st.e(f"v_fma_f32 {v(acc[b] + j)}, {v(K['A'][b])}, {v(acc[b] + j)}, {v(tt[3 * (j & 1) + b])}")
    stamp("win")
    top, done = newlabel("cp"), newlabel("cok")
    st.e(f"s_mov_b32 {s(S_SPIN)}, {OPT['spin']}")
    st.label(top)
    for t in carry_loads():
        st.e(t)
    st.e(f"s_mov_b64 {s(S_T0, 2)}, -1")
    st.e("s_waitcnt vmcnt(0)")
    for dl in range(2):
        for b in range(3):
            st.e(f"v_cmp_eq_u32 vcc, {s(S_NONCE)}, {v(Cv[b][dl] + 1)}")
            st.e("s_nop 0")
            st.e(f"s_or_b64 vcc, vcc, {s(mk[2 * dl + (1 if b == 2 else 0)], 2)}")
            st.e(f"s_and_b64 {s(S_T0, 2)}, {s(S_T0, 2)}, vcc")
    st.e(f"s_cmp_eq_u64 {s(S_T0, 2)}, -1")
    st.e(f"s_cbranch_scc1 {done}")
    st.e("s_sleep 4")
    st.e(f"s_sub_u32 {s(S_SPIN)}, {s(S_SPIN)}, 1")
    st.e(f"s_cbranch_scc0 {top}")
    st.label(done)
    stamp("carry")
    for b in range(3):
        st.e(f"v_fma_f32 {v(hA[b])}, {v(K['r8r'][b])}, {v(Cv[b][1])}, {v(Cv[b][0])}")
    for b in range(3):
        st.e(f"v_fmac_f32_dpp {v(hA[b])}, {v(Cv[b][1])}, {v(K['r8i'][b])} {DPP}")
    for b in range(3):
        st.e(f"v_mul_f32 {v(hB[b])}, {v(K['qr'][b])}, {v(hA[b])}")
    for b in range(3):
        st.e(f"v_fmac_f32_dpp {v(hB[b])}, {v(hA[b])}, {v(K['qi'][b])} {DPP}")
    for b in range(3):
        st.lg(f"ds_write_b32 {v(vEX)}, {v(hB[b])} offset:{3072 + 1024 * b}")
    st.lg(f"ds_write_b32 {v(vX + 3)}, {v(vX + 4)} offset:16")
    lds_flag_wait(st, vSYa, 16, vT)
    for b in range(3):
        for q in range(2):
            st.lg(f"ds_read_b128 {v(Ev[b] + 4 * q, 4)}, {v(vX + 2)} offset:{3072 + 1024 * b + 16 * q}")
    st.e(f"s_mul_i32 {s(S_T0)}, {s(S_W)}, 7680")
    st.e(f"s_add_u32 {s(S_T0)}, {s(S_T0)}, {TS}")
    st.e(f"v_and_b32 {v(vT)}, 31, {v(V_LANE)}")
    st.e(f"v_mul_u32_u24 {v(vT)}, 80, {v(vT)}")
    st.e(f"v_and_b32 {v(vT + 1)}, 32, {v(V_LANE)}")
    st.e(f"v_add3_u32 {v(vB2)}, {v(vT)}, {v(vT + 1)}, {s(S_T0)}")
    st.e(f"v_bfe_u32 {v(vT)}, {v(V_LANE)}, 2, 2")
    st.e(f"v_bfe_u32 {v(vT + 2)}, {v(V_LANE)}, 4, 1")
    st.e(f"v_lshl_add_u32 {v(vT)}, {v(vT)}, 1, {v(vT + 2)}")
    st.e(f"v_mul_u32_u24 {v(vT)}, 80, {v(vT)}")
    st.e(f"v_and_b32 {v(vT + 3)}, 3, {v(V_LANE)}")
    st.e(f"v_lshl_add_u32 {v(vT)}, {v(vT + 3)}, 3, {v(vT)}")
    st.e(f"v_add3_u32 {v(vB2 + 1)}, {v(vT)}, {v(vT + 1)}, {s(S_T0)}")
    st.e(f"v_lshrrev_b32 {v(vT)}, 5, {v(V_LANE)}")
    st.e(f"v_mul_u32_u24 {v(vT)}, {RTS - 512}, {v(vT)}")
    st.e(f"v_add_u32 {v(vB2 + 2)}, {v(vT)}, {v(V_L16)}")
    st.wait(lg="all")
    for q in (0, 2):
        for b in range(3):
            st.e(f"v_pk_add_f32 {v(Ev[b] + q, 2)}, {v(Ev[b] + q, 2)}, {v(Ev[b] + 4 + q, 2)}")
    for b in range(3):
        st.e(f"v_pk_add_f32 {v(Ev[b], 2)}, {v(Ev[b], 2)}, {v(Ev[b] + 2, 2)}")
    for b in range(3):
        st.e(f"v_add_f32 {v(hA[b])}, {v(Ev[b])}, {v(Ev[b] + 1)}")
    for b in range(3):
        st.e(f"v_fmac_f32 {v(Pv[b])}, {v(K['psr'][b])}, {v(hA[b])}")
    for b in range(3):
        st.e(f"v_fmac_f32_dpp {v(Pv[b])}, {v(hA[b])}, {v(K['psi'][b])} {DPP}")
    for b in range(3):
        st.e(f"v_mul_f32 {v(hB[b])}, {v(K['A'][b])}, {v(Pv[b])}")
    for b in range(3):
        st.e(f"v_fmac_f32_dpp {v(hB[b])}, {v(Pv[b])}, {v(K['Bc'][b])} {DPP}")
    pk = [big + 8 * b for b in range(3)]
    sc = [frag + 16 + 2 * b for b in range(3)]
    for j in range(16):
        prev = [hB[b] if j == 0 else acc[b] + j - 1 for b in range(3)]
        for b in range(3):
            st.e(f"v_fmac_f32 {v(acc[b] + j)}, {v(K['lr'][b])}, {v(prev[b])}")
        for b in range(3):
            st.e(f"v_fmac_f32_dpp {v(acc[b] + j)}, -{v(prev[b])}, {v(K['li'][b])} {DPP}")
        if j & 1:
            for b in range(3):
                st.e(f"v_pk_mul_f32 {v(sc[b], 2)}, {v(acc[b] + j - 1, 2)}, {v(gv + j - 1, 2)}")
            for b in range(3):
                st.e(f"v_cvt_pk_bf16_f32 {v(pk[b] + (j >> 1))}, {v(sc[b])}, {v(sc[b] + 1)}")
        if j in (7, 15):
            for b in range(3):
                st.lg(f"ds_write_b128 {v(vB2)}, {v(pk[b] + (4 if j == 15 else 0), 4)} offset:{2560 * b + (16 if j == 15 else 0)}")
    st.e(f"s_lshl_b32 {s(S_T0)}, {s(S_RB)}, 2")
    st.e(f"s_add_u32 {s(S_T0)}, {s(S_T0)}, {s(S_W)}")
    st.e(f"s_mul_i32 {s(S_T0)}, {s(S_T0)}, {2 * RTS}")
    st.e(f"s_mul_i32 {s(S_T1)}, {s(S_CS)}, 2560")
    st.e(f"s_add_u32 {s(S_T0)}, {s(S_T0)}, {s(S_T1)}")
    st.e(f"s_add_u32 {s(S_T0)}, {s(S_T0)}, {WS_H + 192 * 256:#x}")
    ids = []
    for k in range(5):
        for e2 in range(2):
            r = st.lg(f"ds_read_b64_tr_b16 {v(acc[0] + 4 * k + 2 * e2, 2)}, {v(vB2 + 1)} offset:{k * 1280 + e2 * 640}")
        ids.append(r)
    for k in range(5):
        st.wait(lg=ids[k])
        st.vm(f"buffer_store_dwordx4 {v(acc[0] + 4 * k, 4)}, {v(vB2 + 2)}, {s(R_WS, 4)}, {s(S_T0)} offen offset:{512 * k} sc1")
    stamp("hst")
    st.e(f"s_lshl_b32 {s(S_T0)}, {s(S_RB)}, 4")
    st.e(f"s_add_u32 {s(S_T0)}, {s(S_T0)}, {s(S_CS)}")
    st.e(f"s_lshl_b32 {s(S_T0)}, {s(S_T0)}, 5")
    st.e(f"s_add_u32 {s(S_T0)}, {s(S_T0)}, {s(S_W)}")
    st.e(f"s_lshl_b32 {s(S_T0)}, {s(S_T0)}, 2")
    st.e(f"s_add_u32 {s(S_T0)}, {s(S_T0)}, {WS_FS:#x}")
    st.e(f"v_mov_b32 {v(vT)}, {s(S_NONCE)}")
    st.e("s_mov_b64 exec, 1")
    st.wait(vm="all")
    st.vm(f"buffer_store_dword {v(vT)}, off, {s(R_WS, 4)}, {s(S_T0)} sc1")
    st.e("s_mov_b64 exec, -1")
    stamp("end")
    stamp.flush(vT)
    st.label("L_end")
    st.e("s_endpgm")
    return stamp.names


HEADER = """; gated mix of an S5 state-space branch and a squared-relu MLP branch, one persistent launch.
; @launch grid=(256,1,1) block=(512,1,1) lds={lds}
.amdgcn_target "amdgcn-amd-amdhsa--gfx950"
.text
.globl {name}_kernel
.p2align 8
.type {name}_kernel,@function
{name}_kernel:
"""
FOOTER = """.section .rodata,"a"
.p2align 6
.amdhsa_kernel {name}_kernel
  .amdhsa_next_free_vgpr 256
  .amdhsa_next_free_sgpr 102
  .amdhsa_accum_offset 256
  .amdhsa_group_segment_fixed_size 0
  .amdhsa_kernarg_size 144
  .amdhsa_user_sgpr_count 2
  .amdhsa_user_sgpr_kernarg_segment_ptr 1
  .amdhsa_system_sgpr_workgroup_id_x 1
  .amdhsa_float_denorm_mode_32 3
.end_amdhsa_kernel
"""


def main():
    c = Stream()
    gen_common(c)
    g = Stream()
    g.vm_issued = c.vm_issued
    gn = gen_G(g)
    sst = Stream()
    sst.vm_issued = c.vm_issued
    sn = gen_S(sst)
    text = HEADER.format(lds=LDS_BYTES, name=NAME) + c.text() + g.text() + ".p2align 6\n" + sst.text() + FOOTER.format(name=NAME)
    open(sys.argv[1], "w").write(text)
    if STAMPS:
        import json
        json.dump(dict(G=gn, S=sn), open(sys.argv[1] + ".stamps.json", "w"))


if __name__ == "__main__":
    main()
```

```python
import sys
from asmlib import Regs, Stream, v, s

NAME = "gated_mix__ssm_conv_s5__dense_activation_squared_relu__prompt"
OPT = dict(stamps=0, D=4, spin=1 << 14, pad=0, prioS=3, prioG=2, pf=1, cpf=1, packat=2, npre=20, outpol=0,
           xnt=0, sset=0)
for a in sys.argv[2:]:
    k, val = a.split("=")
    assert k in OPT, k
    OPT[k] = int(val)
STAMPS = bool(OPT["stamps"])
D = OPT["D"]

WS_EPOCH = 0
WS_FP = 0x8000
WS_FM = 0x10000
WS_FS = 0x18000
WS_T = 0x20000
WS_W2P = 0x100000
WS_H = 0x800000
WS_ST = 0x2000000
RTS = 352 * 256
NSS = 88 * 5120
XS, BS, WSZ = 16384, 10368, 12288
O_X = 0
O_B = 4 * XS
O_W1 = O_B + 4 * BS
PS = O_W1 + 3 * WSZ
SY = PS + 16384
GS = SY + 64
GB = GS + 512
LDS_BYTES = GB + 512 + 64
EX1 = PS
EX2 = EX1 + 3072
TS = O_W1
PARTW = 64 * 336
assert LDS_BYTES <= 163840 and 4 * PARTW <= O_W1 and 4 * 24576 <= O_W1 and 4 * 7680 <= 3 * WSZ

DPP = "quad_perm:[1,0,3,2] row_mask:0xf bank_mask:0xf"
LOG2E = "0x3fb8aa3b"
NLOG2E = "0xbfb8aa3b"

P_X, P_LRE, P_LIM, P_BRE, P_BIM, P_CRE, P_CIM, P_LDT = 4, 6, 8, 10, 12, 14, 16, 18
P_DSK, P_BX, P_W1, P_B1, P_W2, P_B2, P_GATE, P_OUT = 20, 22, 24, 26, 28, 30, 32, 34
P_DBG, P_WS = 36, 38
R_WS = 40
S_RB, S_CS, S_HH, S_NS, S_W, S_NONCE, S_T0, S_T1, S_T2, S_T3 = 44, 45, 46, 47, 48, 49, 50, 51, 52, 53
S_SPIN = 3
S_FREE = 54
V_LANE = 1
V_L16 = 2
V_EP = 3


def srd(st, base, ptr, size):
    st.e(f"s_mov_b32 {s(base)}, {s(ptr)}")
    st.e(f"s_mov_b32 {s(base + 1)}, {s(ptr + 1)}")
    st.e(f"s_mov_b32 {s(base + 2)}, {size:#x}")
    st.e(f"s_mov_b32 {s(base + 3)}, 0x20000")


class Stamper:
    def __init__(self, st, sr, role, n):
        self.st, self.role, self.n, self.max = st, role, 0, n
        self.base = sr.alloc("stamps", 2 * n, 2) if STAMPS else None
        self.rt0 = sr.alloc("rt0", 2, 2) if (role == "G" and (STAMPS or OPT["pad"])) else None
        if self.rt0 is not None:
            st.e(f"s_memrealtime {s(self.rt0, 2)}")
        self.names = []

    def __call__(self, name, sets=None):
        if not STAMPS or (sets is not None and OPT["sset"] not in sets):
            return
        assert self.n < self.max, name
        self.st.e(f"s_memtime {s(self.base + 2 * self.n, 2)}")
        self.names.append(name)
        self.n += 1

    def flush(self, vt):
        if not STAMPS:
            return
        st = self.st
        st.e(f"s_memrealtime {s(S_T0, 2)}")
        st.e("s_waitcnt lgkmcnt(0)")
        st.e(f"v_mov_b32 {v(vt)}, 0")
        for i in range(self.n):
            st.e(f"v_writelane_b32 {v(vt)}, {s(self.base + 2 * i)}, {i}")
        st.e(f"v_writelane_b32 {v(vt)}, {s(S_T0)}, 15")
        if self.rt0 is not None:
            st.e(f"v_writelane_b32 {v(vt)}, {s(self.rt0)}, 14")
        st.e(f"s_lshl_b32 {s(S_T0)}, s2, 3")
        st.e(f"s_add_u32 {s(S_T0)}, {s(S_T0)}, {s(S_W)}")
        if self.role == "S":
            st.e(f"s_add_u32 {s(S_T0)}, {s(S_T0)}, 4")
        st.e(f"s_lshl_b32 {s(S_T0)}, {s(S_T0)}, 6")
        st.e(f"s_add_u32 {s(S_T0)}, {s(S_T0)}, {WS_ST:#x}")
        st.e(f"v_lshlrev_b32 {v(vt + 1)}, 2, {v(V_LANE)}")
        st.e("s_mov_b64 exec, 0xffff")
        st.e(f"buffer_store_dword {v(vt)}, {v(vt + 1)}, {s(R_WS, 4)}, {s(S_T0)} offen")
        st.e("s_mov_b64 exec, -1")


_lbl = [0]


def newlabel(p):
    _lbl[0] += 1
    return f"L_{p}_{_lbl[0]}"


def nonce_items():
    return [("e", f"v_readfirstlane_b32 {s(S_NONCE)}, {v(V_EP)}"),
            ("e", "s_nop 3"),
            ("e", f"s_mul_i32 {s(S_NONCE)}, {s(S_NONCE)}, 0x9e3779b1"),
            ("e", f"s_add_u32 {s(S_NONCE)}, {s(S_NONCE)}, 0x7f4a7c15")]


SLOW = []


def flag_check(st, vdata, reload_text, mask=None):
    slow, done = newlabel("slow"), newlabel("ok")

    def test(o):
        o.e(f"v_cmp_ne_u32 vcc, {s(S_NONCE)}, {v(vdata)}")
        o.e("s_nop 1")
        if mask is None:
            o.e("s_cmp_lg_u64 vcc, 0")
        else:
            o.e(f"s_and_b32 {s(S_T3)}, vcc_lo, {mask:#x}")

    test(st)
    st.e(f"s_cbranch_scc1 {slow}")
    st.label(done)
    o = Stream()
    o.label(slow)
    o.e(f"s_mov_b32 {s(S_SPIN)}, {OPT['spin']}")
    top = newlabel("spin")
    o.label(top)
    o.e(reload_text)
    o.e(f"s_sub_u32 {s(S_SPIN)}, {s(S_SPIN)}, 1")
    o.e(f"s_cbranch_scc1 {done}")
    o.e("s_waitcnt vmcnt(0)")
    test(o)
    o.e(f"s_cbranch_scc0 {done}")
    o.e("s_sleep 1")
    o.e(f"s_branch {top}")
    SLOW.append(o)


def lds_flag_wait(st, vaddr, off, vtmp, extra=()):
    top, done = newlabel("lw"), newlabel("lok")
    st.e(f"s_mov_b32 {s(S_SPIN)}, {OPT['spin'] * 8}")
    st.label(top)
    st.e(f"ds_read_b128 {v(vtmp, 4)}, {v(vaddr)} offset:{off}")
    for t in extra:
        st.e(t)
    st.e(f"s_sub_u32 {s(S_SPIN)}, {s(S_SPIN)}, 1")
    st.e(f"s_cbranch_scc1 {done}")
    st.e(f"s_waitcnt lgkmcnt({len(extra)})")
    st.e(f"v_and_b32 {v(vtmp)}, {v(vtmp)}, {v(vtmp + 1)}")
    st.e(f"v_and_b32 {v(vtmp + 2)}, {v(vtmp + 2)}, {v(vtmp + 3)}")
    st.e(f"v_and_b32 {v(vtmp)}, {v(vtmp)}, {v(vtmp + 2)}")
    st.e(f"v_cmp_ne_u32 vcc, -1, {v(vtmp)}")
    st.e("s_nop 1")
    st.e("s_cmp_lg_u64 vcc, 0")
    st.e(f"s_cbranch_scc1 {top}")
    st.label(done)
    st.e("s_waitcnt lgkmcnt(0)")


def pack_flag_addr(st, vd, vt):
    st.e(f"s_mul_i32 {s(S_T0)}, {s(S_NS)}, 5")
    st.e(f"s_lshr_b32 {s(S_T1)}, {s(S_T0)}, 2")
    st.e(f"s_mul_i32 {s(S_T2)}, {s(S_W)}, 120")
    st.e(f"s_add_u32 {s(S_T1)}, {s(S_T1)}, {s(S_T2)}")
    st.e(f"v_lshrrev_b32 {v(vt)}, 1, {v(V_LANE)}")
    st.e(f"v_mul_u32_u24 {v(vt)}, 10, {v(vt)}")
    st.e(f"v_and_b32 {v(vt + 1)}, 1, {v(V_LANE)}")
    st.e(f"v_add3_u32 {v(vd)}, {v(vt)}, {v(vt + 1)}, {s(S_T1)}")
    st.e(f"s_mul_i32 {s(S_T2)}, {s(S_W)}, 10")
    st.e(f"s_lshr_b32 {s(S_T2)}, {s(S_T2)}, 2")
    st.e(f"s_mul_i32 {s(S_T0)}, {s(S_T0)}, 10")
    st.e(f"s_add_u32 {s(S_T0)}, {s(S_T0)}, {s(S_T2)}")
    st.e(f"s_add_u32 {s(S_T0)}, {s(S_T0)}, 480")
    st.e(f"v_subrev_u32 {v(vt)}, 24, {v(V_LANE)}")
    st.e(f"v_min_u32 {v(vt)}, 14, {v(vt)}")
    st.e(f"v_mul_u32_u24 {v(vt + 1)}, 43, {v(vt)}")
    st.e(f"v_lshrrev_b32 {v(vt + 1)}, 7, {v(vt + 1)}")
    st.e(f"v_mul_u32_u24 {v(vt + 2)}, 7, {v(vt + 1)}")
    st.e(f"v_add3_u32 {v(vt)}, {v(vt)}, {v(vt + 2)}, {s(S_T0)}")
    st.e(f"v_cmp_gt_u32 vcc, 24, {v(V_LANE)}")
    st.e("s_nop 1")
    st.e(f"v_cndmask_b32 {v(vd)}, {v(vt)}, {v(vd)}, vcc")
    st.e(f"v_lshrrev_b32 {v(vt)}, 2, {v(vd)}")
    st.e(f"v_and_b32 {v(vd)}, 3, {v(vd)}")
    st.e(f"v_lshlrev_b32 {v(vd)}, 2, {v(vd)}")
    st.e(f"v_lshl_add_u32 {v(vd)}, {v(vt)}, 7, {v(vd)}")
    st.e(f"v_add_u32 {v(vd)}, {WS_FP:#x}, {v(vd)}")


def xread_addrs(st, vX, vt):
    st.e(f"v_and_b32 {v(vt)}, 31, {v(V_LANE)}")
    st.e(f"v_bfe_u32 {v(vt + 1)}, {v(V_LANE)}, 1, 3")
    st.e(f"v_lshrrev_b32 {v(vt + 2)}, 5, {v(V_LANE)}")
    st.e(f"v_xor_b32 {v(vt + 1)}, {v(vt + 1)}, {v(vt + 2)}")
    st.e(f"v_lshlrev_b32 {v(vt + 1)}, 4, {v(vt + 1)}")
    st.e(f"v_lshl_add_u32 {v(vt)}, {v(vt)}, 7, {v(vt + 1)}")
    st.e(f"s_lshl_b32 {s(S_T0)}, {s(S_W)}, 12")
    st.e(f"v_add_u32 {v(vX)}, {s(S_T0)}, {v(vt)}")
    for k in range(1, 4):
        st.e(f"v_xor_b32 {v(vX + k)}, {32 * k}, {v(vX)}")


def put(st, item):
    kind, text = item[0], item[1]
    r = None
    if kind == "vm":
        r = st.vm(text)
    elif kind == "lg":
        r = st.lg(text)
    elif kind == "fn":
        text(st)
    else:
        st.e(text)
    if len(item) > 2:
        item[2][0][item[2][1]] = r
    return r


def puts(st, items):
    for it in items:
        put(st, it)


def interleave(st, mains, sides):
    n, k = len(mains), 0
    for i, m in enumerate(mains):
        put(st, m)
        upto = (len(sides) * (i + 1) + n - 1) // n
        while k < upto:
            put(st, sides[k])
            k += 1


def one_lane_store(vdata, soff):
    return (f"s_mov_b64 exec, 1\n    buffer_store_dword {v(vdata)}, off, {s(R_WS, 4)}, {soff} sc1\n"
            f"    s_mov_b64 exec, -1")


def gen_common(st):
    st.e("s_cmp_ge_u32 s2, 256")
    st.e("s_cbranch_scc1 L_end")
    st.e("s_load_dwordx16 s[4:19], s[0:1], 0")
    st.e("s_load_dwordx16 s[20:35], s[0:1], 64")
    st.e("s_load_dwordx4 s[36:39], s[0:1], 128")
    st.e(f"v_lshrrev_b32 {v(V_EP)}, 6, v0")
    st.e(f"v_and_b32 {v(V_LANE)}, 63, v0")
    st.e(f"v_readfirstlane_b32 {s(S_W)}, {v(V_EP)}")
    st.e(f"v_lshlrev_b32 {v(V_L16)}, 4, {v(V_LANE)}")
    st.e(f"s_lshr_b32 {s(S_T1)}, s2, 3")
    st.e(f"s_bfe_u32 {s(S_RB)}, s2, 0x20001")
    st.e(f"s_lshl_b32 {s(S_RB)}, {s(S_RB)}, 2")
    st.e(f"s_lshr_b32 {s(S_T2)}, {s(S_T1)}, 3")
    st.e(f"s_add_u32 {s(S_RB)}, {s(S_RB)}, {s(S_T2)}")
    st.e(f"s_and_b32 {s(S_T0)}, s2, 1")
    st.e(f"s_lshl_b32 {s(S_CS)}, {s(S_T0)}, 3")
    st.e(f"s_and_b32 {s(S_T2)}, {s(S_T1)}, 7")
    st.e(f"s_add_u32 {s(S_CS)}, {s(S_CS)}, {s(S_T2)}")
    st.e(f"s_and_b32 {s(S_HH)}, {s(S_CS)}, 1")
    st.e(f"s_lshr_b32 {s(S_NS)}, {s(S_CS)}, 1")
    st.e(f"s_cmp_ge_u32 {s(S_W)}, 4")
    st.e("s_cbranch_scc1 L_S")


def gen_G(st):
    sr = Regs("s", S_FREE, 102)
    vr = Regs("v", 4, 256)
    R_X = sr.alloc("R_X", 4, 4)
    R_W1 = sr.alloc("R_W1", 4, 4)
    sOX, sOW, sMX, sMW = [sr.alloc(n) for n in ("sOX", "sOW", "sMX", "sMW")]
    sr2 = Regs("s", P_LRE, P_DSK)
    sW2 = sr2.alloc("sW2")
    sMP = sr2.alloc("sMP")
    sH = sr2.alloc("sH", 4)
    sWg = sr2.alloc("sWg")
    sFS = sr2.alloc("sFS")
    vDX = vr.alloc("vDX", 4)
    vDW = vr.alloc("vDW", 4)
    vX = vr.alloc("vX", 4)
    vW = vr.alloc("vW")
    vL16b = vr.alloc("vL16b")
    vL16c = vr.alloc("vL16c")
    vPF = vr.alloc("vPF")
    vPD = vr.alloc("vPD", 2)
    vHS = vr.alloc("vHS")
    vFM = vr.alloc("vFM")
    vLW = vr.alloc("vLW")
    vG = vDW
    vT = vr.alloc("vT", 4)
    assert vr.next <= 32, vr.next
    BIG = 32
    acc1 = [BIG + 16 * b for b in range(3)]
    fX = [BIG + 48 + 16 * p for p in range(2)]
    fW = [[BIG + 48 + 16 * p + 4 + 4 * b for b in range(3)] for p in range(2)]
    cv = BIG + 80
    bias = BIG + 104
    st.e(f"v_lshrrev_b32 {v(vT)}, 3, {v(V_LANE)}")
    st.e(f"v_and_b32 {v(vT + 1)}, 3, {v(vT)}")
    st.e(f"v_lshrrev_b32 {v(vT)}, 2, {v(vT)}")
    st.e(f"v_lshl_add_u32 {v(vT)}, {v(vT)}, 4, {v(vT + 1)}")
    st.e(f"v_mul_u32_u24 {v(vT)}, 1280, {v(vT)}")
    st.e(f"v_lshrrev_b32 {v(vT + 1)}, 4, {v(V_LANE)}")
    st.e(f"v_and_b32 {v(vT + 2)}, 7, {v(V_LANE)}")
    st.e(f"v_xor_b32 {v(vT + 1)}, {v(vT + 1)}, {v(vT + 2)}")
    st.e(f"v_lshl_add_u32 {v(vDX)}, {v(vT + 1)}, 4, {v(vT)}")
    st.e(f"v_xor_b32 {v(vDX + 1)}, 64, {v(vDX)}")
    st.e(f"v_add_u32 {v(vDX + 1)}, {4096}, {v(vDX + 1)}")
    st.e(f"v_add_u32 {v(vDX + 2)}, {8192}, {v(vDX)}")
    st.e(f"v_add_u32 {v(vDX + 3)}, {8192}, {v(vDX + 1)}")
    st.e(f"s_lshl_b32 {s(S_T0)}, {s(S_RB)}, 2")
    st.e(f"s_add_u32 {s(S_T0)}, {s(S_T0)}, {s(S_W)}")
    st.e(f"s_mul_i32 {s(sOX)}, {s(S_T0)}, {32 * 1280}")
    st.e(f"s_lshl_b32 {s(sMX)}, {s(S_W)}, 12")
    for i in range(3):
        if i:
            st.e(f"v_add_u32 {v(vT)}, {64 * i}, {v(V_LANE)}")
        q = V_LANE if i == 0 else vT
        st.e(f"v_mul_u32_u24 {v(vT + 1)}, 43691, {v(q)}")
        st.e(f"v_lshrrev_b32 {v(vT + 1)}, 19, {v(vT + 1)}")
        st.e(f"v_mul_u32_u24 {v(vT + 1)}, {3072 - 192}, {v(vT + 1)}")
        st.e(f"v_add_u32 {v(vDW + i)}, {v(vT + 1)}, {v(V_L16)}")
    st.e(f"s_mul_i32 {s(sOW)}, {s(S_CS)}, 192")
    st.e(f"s_mul_i32 {s(S_T0)}, {s(S_W)}, {16 * 3072}")
    st.e(f"s_add_u32 {s(sOW)}, {s(sOW)}, {s(S_T0)}")
    st.e(f"s_mul_i32 {s(sMW)}, {s(S_W)}, 3072")
    st.e(f"s_add_u32 {s(sMW)}, {s(sMW)}, {O_W1}")
    st.e("s_waitcnt lgkmcnt(0)")
    stamp = Stamper(st, sr, "G", 14)
    stamp("start")
    srd(st, R_W1, P_W1, 640 * 3072)
    srd(st, R_X, P_X, 2048 * 1280)
    ids = {}
    xpol = " nt" if OPT["xnt"] else ""

    def dma_w(c):
        out = [("e", f"s_add_u32 m0, {s(sMW)}, {(c % 3) * WSZ}"), ("e", "s_nop 0")]
        for i in range(3):
            out.append(("vm", f"buffer_load_dwordx4 {v(vDW + i)}, {s(R_W1, 4)}, {s(sOW)} offen offset:{1024 * i} lds",
                        (ids, ("w", c))))
        out.append(("e", f"s_add_u32 {s(sOW)}, {s(sOW)}, {64 * 3072}"))
        return out

    def dma_x(c):
        out = [("e", f"s_add_u32 m0, {s(sMX)}, {(c % 4) * XS}"), ("e", "s_nop 0")]
        for i in range(4):
            out.append(("vm", f"buffer_load_dwordx4 {v(vDX + i)}, {s(R_X, 4)}, {s(sOX)} offen offset:{1024 * i}{xpol} lds",
                        (ids, ("x", c))))
        out.append(("e", f"s_add_u32 {s(sOX)}, {s(sOX)}, 128"))
        return out

    puts(st, dma_w(0) + dma_x(0))
    xread_addrs(st, vX, vT)
    st.e(f"v_bfe_u32 {v(vT)}, {v(V_LANE)}, 2, 2")
    st.e(f"v_lshrrev_b32 {v(vT + 1)}, 5, {v(V_LANE)}")
    st.e(f"v_lshl_add_u32 {v(vT)}, {v(vT + 1)}, 3, {v(vT)}")
    st.e(f"v_mul_u32_u24 {v(vT)}, 192, {v(vT)}")
    st.e(f"v_and_b32 {v(vT + 1)}, 3, {v(V_LANE)}")
    st.e(f"v_lshl_add_u32 {v(vT)}, {v(vT + 1)}, 3, {v(vT)}")
    st.e(f"v_bfe_u32 {v(vT + 1)}, {v(V_LANE)}, 4, 1")
    st.e(f"v_lshl_add_u32 {v(vT)}, {v(vT + 1)}, 5, {v(vT)}")
    st.e(f"v_add_u32 {v(vW)}, {O_W1}, {v(vT)}")
    puts(st, dma_w(1) + dma_x(1) + dma_w(2) + dma_x(2) + dma_x(3))
    srd(st, R_WS, P_WS, 0x10000000)
    st.vm(f"buffer_load_dword {v(V_EP)}, off, {s(R_WS, 4)}, 0 sc1")
    st.e(f"v_and_b32 {v(vT)}, 31, {v(V_LANE)}")
    st.e(f"s_mul_i32 {s(S_T0)}, {s(S_CS)}, 192")
    st.e(f"v_lshl_add_u32 {v(vT)}, {v(vT)}, 1, {s(S_T0)}")
    for b in range(3):
        idb = st.vm(f"global_load_ushort {v(bias + 4 * b)}, {v(vT)}, {s(P_B1, 2)} offset:{64 * b}")
    st.e(f"v_add_u32 {v(vL16b)}, 3072, {v(V_L16)}")
    st.e(f"v_add_u32 {v(vL16c)}, 4096, {v(V_L16)}")
    pack_flag_addr(st, vPF, vT)
    st.e(f"v_bfe_u32 {v(vT)}, {v(V_LANE)}, 2, 1")
    st.e(f"v_mul_u32_u24 {v(vT)}, {RTS}, {v(vT)}")
    st.e(f"v_lshrrev_b32 {v(vT + 1)}, 5, {v(V_LANE)}")
    st.e(f"v_lshl_add_u32 {v(vT)}, {v(vT + 1)}, 8, {v(vT)}")
    st.e(f"v_bfe_u32 {v(vT + 1)}, {v(V_LANE)}, 3, 2")
    st.e(f"v_lshl_add_u32 {v(vT)}, {v(vT + 1)}, 6, {v(vT)}")
    st.e(f"v_and_b32 {v(vT + 1)}, 3, {v(V_LANE)}")
    st.e(f"v_lshl_add_u32 {v(vHS)}, {v(vT + 1)}, 4, {v(vT)}")
    st.e(f"s_lshl_b32 {s(S_T0)}, {s(S_RB)}, 4")
    st.e(f"s_lshl_b32 {s(S_T1)}, {s(S_W)}, 2")
    st.e(f"s_add_u32 {s(S_T0)}, {s(S_T0)}, {s(S_T1)}")
    st.e(f"s_lshl_b32 {s(S_T0)}, {s(S_T0)}, 7")
    st.e(f"s_lshl_b32 {s(S_T1)}, {s(S_HH)}, 3")
    st.e(f"s_add_u32 {s(S_T0)}, {s(S_T0)}, {s(S_T1)}")
    st.e(f"s_add_u32 {s(S_T0)}, {s(S_T0)}, {WS_FM:#x}")
    st.e(f"v_bfe_u32 {v(vT)}, {v(V_LANE)}, 1, 2")
    st.e(f"v_and_b32 {v(vT + 1)}, 1, {v(V_LANE)}")
    st.e(f"v_lshlrev_b32 {v(vT + 1)}, 2, {v(vT + 1)}")
    st.e(f"v_lshl_add_u32 {v(vT)}, {v(vT)}, 7, {v(vT + 1)}")
    st.e(f"v_add_u32 {v(vFM)}, {s(S_T0)}, {v(vT)}")
    st.e(f"s_mul_i32 {s(sWg)}, {s(S_NS)}, {NSS}")
    st.e(f"s_mul_i32 {s(S_T0)}, {s(S_W)}, {12 * 5120}")
    st.e(f"s_add_u32 {s(sWg)}, {s(sWg)}, {s(S_T0)}")
    st.e(f"s_add_u32 {s(sWg)}, {s(sWg)}, {WS_W2P:#x}")
    st.e(f"s_add_u32 {s(sW2)}, {s(sWg)}, 3072")
    st.e(f"s_mul_i32 {s(sMP)}, {s(S_W)}, 24576")
    st.e(f"v_add_u32 {v(vLW)}, {s(sMP)}, {v(V_L16)}")
    st.e(f"s_mov_b32 {s(sFS)}, {WS_FS - WS_FM:#x}")
    st.e(f"s_lshl_b32 {s(S_T1)}, {s(S_RB)}, 1")
    st.e(f"s_add_u32 {s(S_T1)}, {s(S_T1)}, {s(S_HH)}")
    st.e(f"s_mul_i32 {s(S_T1)}, {s(S_T1)}, {4 * RTS}")
    st.e(f"s_mul_i32 {s(S_T2)}, {s(S_W)}, {12 * 1024}")
    st.e(f"s_add_u32 {s(S_T1)}, {s(S_T1)}, {s(S_T2)}")
    st.e(f"s_add_u32 {s(sH)}, {s(S_T1)}, {WS_H:#x}")
    for mt in range(1, 4):
        st.e(f"s_add_u32 {s(sH + mt)}, {s(sH + mt - 1)}, {RTS}")
    for b in range(3):
        for k in range(1, 4):
            st.e(f"v_mov_b32 {v(bias + 4 * b + k)}, 0")
    st.e(f"v_mov_b32 {v(bias + 12)}, 0x3f80")
    for k in range(1, 4):
        st.e(f"v_mov_b32 {v(bias + 12 + k)}, 0")

    def reads(c, sidx):
        p = sidx & 1
        out = [("lg", f"ds_read_b128 {v(fX[p], 4)}, {v(vX + sidx)} offset:{(c % 4) * XS}")]
        for b in range(3):
            for e2 in range(2):
                off = (c % 3) * WSZ + sidx * 3072 + e2 * 768 + b * 64
                out.append(("lg", f"ds_read_b64_tr_b16 {v(fW[p][b] + 2 * e2, 2)}, {v(vW)} offset:{off}"))
        return out

    def mfmas(c, sidx):
        p = sidx & 1
        first = (c == 0 and sidx == 0)
        return [("e", f"v_mfma_f32_32x32x16_bf16 {v(acc1[b], 16)}, {v(fW[p][b], 4)}, {v(fX[p], 4)}, "
                      + ("0" if first else v(acc1[b], 16))) for b in range(3)]

    st.wait(vm=max(ids["x", 0], ids["w", 0]))
    st.e("s_barrier")
    stamp("B0")
    puts(st, reads(0, 0))
    pfl = f"buffer_load_dword {v(vPD)}, {v(vPF)}, {s(R_WS, 4)}, 0 offen sc1"
    for c in range(10):
        for sidx in range(4):
            if sidx < 3:
                st.wait(lg="all")
                sides = reads(c, sidx + 1)
                if c == 3 and sidx == 0:
                    assert ids["w", 3] > idb
                    sides = sides + [("e", f"v_cmp_gt_u32 vcc, 32, {v(V_LANE)}")] + nonce_items()
                    sides += [("e", f"v_cndmask_b32 {v(bias + 4 * b)}, 0, {v(bias + 4 * b)}, vcc") for b in range(3)]
                mains = mfmas(c, sidx)
                if c == 3 and sidx == 1:
                    mains += [("e", f"v_mfma_f32_32x32x16_bf16 {v(acc1[b], 16)}, {v(bias + 4 * b, 4)}, "
                                    f"{v(bias + 12, 4)}, {v(acc1[b], 16)}") for b in range(3)]
                interleave(st, mains, sides)
            else:
                if c < 9:
                    st.wait(vm=max(ids["x", c + 1], ids["w", c + 1]), lg="all")
                else:
                    st.wait(lg="all")
                st.e("s_barrier")
                if c in (2, 5, 8):
                    stamp(f"B{c + 1}")
                sides = reads(c + 1, 0) if c < 9 else [("vm", pfl, (ids, "pf"))]
                if c + 3 <= 9:
                    sides = sides + dma_w(c + 3)
                if c + 4 <= 9:
                    sides = sides + dma_x(c + 4)
                interleave(st, mfmas(c, sidx), sides)
    stamp("loopend")
    if OPT["prioG"]:
        st.e(f"s_setprio {OPT['prioG']}")
    st.e(f"s_lshl_b32 {s(S_T0)}, {s(S_RB)}, 2")
    st.e(f"s_add_u32 {s(S_T0)}, {s(S_T0)}, {s(S_W)}")
    st.e(f"s_mul_i32 {s(S_T0)}, {s(S_T0)}, {2 * RTS}")
    st.e(f"s_mul_i32 {s(S_T1)}, {s(S_CS)}, {12 * 256}")
    st.e(f"s_add_u32 {s(S_T0)}, {s(S_T0)}, {s(S_T1)}")
    st.e(f"s_add_u32 {s(S_T0)}, {s(S_T0)}, {WS_H:#x}")
    st.nop(6)
    for b in range(3):
        for e2 in range(2):
            a0 = acc1[b] + 8 * e2
            for j in range(8):
                st.e(f"v_max_f32 {v(a0 + j)}, 0, {v(a0 + j)}")
            for j in range(0, 8, 2):
                st.e(f"v_pk_mul_f32 {v(a0 + j, 2)}, {v(a0 + j, 2)}, {v(a0 + j, 2)}")
            for j in range(4):
                st.e(f"v_cvt_pk_bf16_f32 {v(cv + 8 * b + 4 * e2 + j)}, {v(a0 + 2 * j)}, {v(a0 + 2 * j + 1)}")
            hst = st.vm(f"buffer_store_dwordx4 {v(cv + 8 * b + 4 * e2, 4)}, {v(vHS)}, {s(R_WS, 4)}, {s(S_T0)} "
                        f"offen offset:{b * 1024 + e2 * 512} sc1")
    stamp("Hstored")
    acc2 = BIG
    Hb = [BIG + 80 + 16 * d for d in range(D)]
    Wb = [BIG + 80 + 16 * D + 20 * d for d in range(D)]
    assert Wb[-1] + 20 <= 256
    NST = 22
    state = dict(w=0, h=0)
    last = {}

    def w_loads(i):
        out = []
        assert state["w"] == i
        if i == 12:
            out.append(("e", f"s_mul_i32 {s(S_T2)}, {s(S_W)}, {2 * 5120}"))
            out.append(("e", f"s_sub_u32 {s(sWg)}, {s(sWg)}, {s(S_T2)}"))
            out.append(("e", f"s_add_u32 {s(sWg)}, {s(sWg)}, {36 * 5120}"))
        for nt in (range(3) if i < 12 else range(5)):
            va, off = (V_L16, nt * 1024) if nt < 4 else (vL16c, 0)
            out.append(("vm", f"buffer_load_dwordx4 {v(Wb[i % D] + 4 * nt, 4)}, {v(va)}, {s(R_WS, 4)}, {s(sWg)} "
                              f"offen offset:{off} sc1", (last, ("w", i))))
        out.append(("e", f"s_add_u32 {s(sWg)}, {s(sWg)}, 5120"))
        state["w"] += 1
        return out

    def h_loads(i):
        out = []
        assert state["h"] == i
        j = i if i < 12 else i - 12
        if i == 12:
            out.append(("e", f"s_mul_i32 {s(S_T2)}, {s(S_W)}, {2 * 1024}"))
            out.append(("e", f"s_sub_u32 {s(S_T2)}, {36 * 1024 + 4096}, {s(S_T2)}"))
            for mt in range(4):
                out.append(("e", f"s_add_u32 {s(sH + mt)}, {s(sH + mt)}, {s(S_T2)}"))
        elif j % 4 == 0 and j > 0:
            for mt in range(4):
                out.append(("e", f"s_add_u32 {s(sH + mt)}, {s(sH + mt)}, 4096"))
        for mt in range(4):
            out.append(("vm", f"buffer_load_dwordx4 {v(Hb[i % D] + 4 * mt, 4)}, {v(V_L16)}, {s(R_WS, 4)}, {s(sH + mt)} "
                              f"offen offset:{(j % 4) * 1024} sc1", (last, ("h", i))))
        state["h"] += 1
        return out

    def tile_dma(g):
        return [("e", f"s_add_u32 m0, {s(sMP)}, {g * 4096}"),
                ("e", "s_nop 0"),
                ("vm", f"buffer_load_dwordx4 {v(V_L16)}, {s(R_WS, 4)}, {s(sW2)} offen sc1 lds"),
                ("vm", f"buffer_load_dwordx4 {v(V_L16)}, {s(R_WS, 4)}, {s(sW2)} offen offset:1024 sc1 lds"),
                ("vm", f"buffer_load_dwordx4 {v(vL16b)}, {s(R_WS, 4)}, {s(sW2)} offen offset:2048 sc1 lds"),
                ("vm", f"buffer_load_dwordx4 {v(vL16b)}, {s(R_WS, 4)}, {s(sW2)} offen offset:3072 sc1 lds", (last, ("t", g))),
                ("e", f"s_add_u32 {s(sW2)}, {s(sW2)}, {2 * 5120}")]

    def lds_w(i):
        return [("lg", f"ds_read_b128 {v(Wb[i % D] + 12 + 4 * k, 4)}, {v(vLW)} offset:{i * 2048 + k * 1024}")
                for k in range(2)]

    st.wait(vm=ids["pf"])
    flag_check(st, vPD, pfl)
    if OPT["prioG"]:
        st.e("s_setprio 0")
    pre = []
    for g in range(6):
        if 2 * g < D:
            pre += w_loads(2 * g)
        pre += tile_dma(g)
        if 2 * g + 1 < D:
            pre += w_loads(2 * g + 1)
    k, nvm = 0, 0
    while k < len(pre) and (nvm < OPT["npre"] or pre[k][0] != "e" or not pre[k][1].startswith("s_add_u32 m0")):
        put(st, pre[k])
        nvm += pre[k][0] == "vm"
        k += 1
    rest = pre[k:]
    st.e(f"s_lshl_b32 {s(S_T0)}, {s(S_RB)}, 4")
    st.e(f"s_add_u32 {s(S_T0)}, {s(S_T0)}, {s(S_CS)}")
    st.e(f"s_lshl_b32 {s(S_T0)}, {s(S_T0)}, 5")
    st.e(f"s_add_u32 {s(S_T0)}, {s(S_T0)}, {s(S_W)}")
    st.e(f"s_lshl_b32 {s(S_T0)}, {s(S_T0)}, 2")
    st.e(f"s_add_u32 {s(S_T0)}, {s(S_T0)}, {WS_FM:#x}")
    st.e(f"v_mov_b32 {v(vT)}, {s(S_NONCE)}")
    if OPT["prioG"]:
        st.e(f"s_setprio {OPT['prioG']}")
    st.wait(vm=hst)
    st.vm(one_lane_store(vT, s(S_T0)))
    stamp("FMset")

    def poll(reg, fs):
        return f"buffer_load_dword {v(vPD + reg)}, {v(vFM)}, {s(R_WS, 4)}, {s(sFS) if fs else 0} offen sc1"

    pid = st.vm(poll(0, False))
    if OPT["prioG"]:
        st.e("s_setprio 0")
    puts(st, rest)
    st.wait(vm=pid)
    flag_check(st, vPD, poll(0, False), mask=0x3)
    stamp("FMok")
    for i in range(D - 1):
        puts(st, h_loads(i))
    st.wait(vm=last["t", 0])
    puts(st, lds_w(0))
    need = {3: (False, 1), 6: (False, 2), 9: (False, 3), 12: (True, 0), 14: (True, 1), 17: (True, 2), 19: (True, 3)}
    pollreg = {}
    vER = vDX
    epi = {}
    preg = 1
    for i in range(NST):
        p = i % D
        sides = []
        nxt = i + D - 1
        if nxt + 2 in need:
            fs, kk = need[nxt + 2]
            pollreg[nxt + 2] = preg
            sides.append(("vm", poll(preg, fs), (last, ("p", nxt + 2))))
            preg ^= 1
        w_ids = [last["h", i], last["w", i]]
        if i + 1 < 12:
            w_ids.append(last["t", (i + 1) >> 1])
        if nxt in need and ("p", nxt) in last:
            w_ids.append(last["p", nxt])
        st.wait(vm=max(w_ids), lg="all")
        if nxt in need:
            fs, kk = need[nxt]
            r = pollreg.get(nxt, 0)
            flag_check(st, vPD + r, poll(r, fs), mask=0x3 << (2 * kk))
            if nxt == 12:
                stamp("FSok")
        if i == 10:
            st.e(f"v_mov_b32 {v(vW)}, {SY}")
            lds_flag_wait(st, vW, 32, vT)
            st.e(f"v_and_b32 {v(vT)}, 15, {v(V_LANE)}")
            st.e(f"s_lshl_b32 {s(S_T0)}, {s(S_HH)}, 8")
            st.e(f"s_add_u32 {s(S_T0)}, {s(S_T0)}, {GB}")
            st.e(f"v_lshl_add_u32 {v(vT)}, {v(vT)}, 2, {s(S_T0)}")
            for mt in range(4):
                sides.append(("lg", f"ds_read_b32 {v(vG + mt)}, {v(vT)} offset:{64 * mt}"))
        if i == 11:
            for mt in range(4):
                sides.append(("e", f"v_sub_f32 {v(vG + mt)}, 1.0, {v(vG + mt)}"))
        if i == 12:
            stamp("mlpend")
            st.nop(4)
            for mt in range(4):
                for nt in range(5):
                    a0 = acc2 + 20 * mt + 4 * nt
                    for k in range(4):
                        st.e(f"v_mul_f32 {v(a0 + k)}, {v(vG + mt)}, {v(a0 + k)}")
            st.nop(2)
        if i == NST - 2:
            st.e("s_barrier")
        if nxt < NST:
            if nxt >= D:
                sides += w_loads(nxt)
            sides += h_loads(nxt)
        if i + 1 < 12:
            sides += lds_w(i + 1)
        if i == NST - D + 1:
            fr = Hb[(i - 1) % D]
            epi["x"], epi["dsk"], epi["b2"] = fr, fr + 12, fr + 14
            sides.append(("e", f"v_mul_u32_u24 {v(vER)}, 205, {v(V_LANE)}"))
            sides.append(("e", f"v_lshrrev_b32 {v(vER)}, 12, {v(vER)}"))
            sides.append(("e", f"v_mul_u32_u24 {v(vER + 1)}, 20, {v(vER)}"))
            sides.append(("e", f"v_sub_u32 {v(vER + 1)}, {v(V_LANE)}, {v(vER + 1)}"))
            sides.append(("e", f"s_mul_i32 {s(S_T0)}, {s(S_NS)}, 160"))
            sides.append(("e", f"v_lshl_add_u32 {v(vER + 2)}, {v(vER + 1)}, 3, {s(S_T0)}"))
            sides.append(("vm", f"global_load_dwordx2 {v(epi['dsk'], 2)}, {v(vER + 2)}, {s(P_DSK, 2)}"))
            sides.append(("vm", f"global_load_dwordx2 {v(epi['b2'], 2)}, {v(vER + 2)}, {s(P_B2, 2)}"))
            sides.append(("e", f"s_lshl_b32 {s(S_T1)}, {s(S_RB)}, 1"))
            sides.append(("e", f"s_add_u32 {s(S_T1)}, {s(S_T1)}, {s(S_HH)}"))
            sides.append(("e", f"s_lshl_b32 {s(S_T1)}, {s(S_T1)}, 2"))
            sides.append(("e", f"s_add_u32 {s(S_T1)}, {s(S_T1)}, {s(S_W)}"))
            sides.append(("e", f"s_mul_i32 {s(sOW)}, {s(S_T1)}, {16 * 1280}"))
            sides.append(("e", f"v_mul_u32_u24 {v(vER + 3)}, 1280, {v(vER)}"))
            sides.append(("e", f"v_add_u32 {v(vER + 3)}, {v(vER + 3)}, {v(vER + 2)}"))
            for k in range(6):
                sides.append(("vm", f"buffer_load_dwordx2 {v(epi['x'] + 2 * k, 2)}, {v(vER + 3)}, {s(R_X, 4)}, {s(sOW)} offen",
                              (epi, "id")))
                if k < 5:
                    sides.append(("e", f"s_add_u32 {s(sOW)}, {s(sOW)}, {3 * 1280}"))
        mains = []
        for mt in range(4):
            for nt in range(5):
                a0 = acc2 + 20 * mt + 4 * nt
                cin = "0" if i == 0 else v(a0, 4)
                mains.append(("e", f"v_mfma_f32_16x16x32_bf16 {v(a0, 4)}, {v(Wb[p] + 4 * nt, 4)}, {v(Hb[p] + 4 * mt, 4)}, {cin}"))
        interleave(st, mains, sides)
        if i == NST - 2:
            fe = Wb[(i - 1) % D]
            fe2 = Hb[(i - 1) % D]
            E = [fe + 4 * k for k in range(5)] + [fe2]
            un = fe2 + 4
            st.e(f"s_lshl_b32 {s(S_T0)}, {s(S_HH)}, 2")
            st.e(f"s_add_u32 {s(S_T0)}, {s(S_T0)}, {s(S_W)}")
            st.e(f"s_lshl_b32 {s(S_T0)}, {s(S_T0)}, 6")
            st.e(f"s_add_u32 {s(S_T0)}, {s(S_T0)}, {GB}")
            st.e(f"v_lshl_add_u32 {v(vT)}, {v(vER)}, 2, {s(S_T0)}")
            gks = [vX, vX + 1, vX + 2, vX + 3, vG, vG + 1]
            for k in range(6):
                st.lg(f"ds_read_b32 {v(gks[k])}, {v(vT)} offset:{12 * k}")
            st.e(f"v_mov_b32 {v(vT + 1)}, 0xffff0000")
            st.wait(vm=epi["id"], lg="all")
            for q, src in ((0, epi["dsk"]), (4, epi["b2"])):
                st.e(f"v_lshlrev_b32 {v(un + q)}, 16, {v(src)}")
                st.e(f"v_and_b32 {v(un + q + 1)}, {v(vT + 1)}, {v(src)}")
                st.e(f"v_lshlrev_b32 {v(un + q + 2)}, 16, {v(src + 1)}")
                st.e(f"v_and_b32 {v(un + q + 3)}, {v(vT + 1)}, {v(src + 1)}")
            for k in range(6):
                xs = epi["x"] + 2 * k
                st.e(f"v_lshlrev_b32 {v(E[k])}, 16, {v(xs)}")
                st.e(f"v_and_b32 {v(E[k] + 1)}, {v(vT + 1)}, {v(xs)}")
                st.e(f"v_lshlrev_b32 {v(E[k] + 2)}, 16, {v(xs + 1)}")
                st.e(f"v_and_b32 {v(E[k] + 3)}, {v(vT + 1)}, {v(xs + 1)}")
                for q in range(4):
                    st.e(f"v_fma_f32 {v(E[k] + q)}, {v(E[k] + q)}, {v(un + q)}, -{v(un + 4 + q)}")
                for q in range(4):
                    st.e(f"v_fma_f32 {v(E[k] + q)}, {v(E[k] + q)}, {v(gks[k])}, {v(un + 4 + q)}")
            epi["E"] = E
            st.e(f"v_and_b32 {v(vT)}, 15, {v(V_LANE)}")
            st.e(f"v_mul_u32_u24 {v(vT)}, 336, {v(vT)}")
            st.e(f"v_lshrrev_b32 {v(vT + 1)}, 4, {v(V_LANE)}")
            st.e(f"v_lshl_add_u32 {v(vT)}, {v(vT + 1)}, 4, {v(vT)}")
            st.e(f"s_mul_i32 {s(S_T0)}, {s(S_W)}, {PARTW}")
            st.e(f"v_add_u32 {v(vT)}, {s(S_T0)}, {v(vT)}")
            st.e(f"s_mul_i32 {s(S_T0)}, {s(S_W)}, {16 * 336}")
            st.e(f"v_mul_u32_u24 {v(vT + 1)}, 336, {v(vER)}")
            st.e(f"v_lshl_add_u32 {v(vT + 1)}, {v(vER + 1)}, 4, {v(vT + 1)}")
            st.e(f"v_add_u32 {v(vT + 1)}, {s(S_T0)}, {v(vT + 1)}")
            st.e(f"v_add_u32 {v(vT + 2)}, {2 * PARTW}, {v(vT + 1)}")
            srd(st, R_W1, P_OUT, 2048 * 2560)
            st.e(f"v_mul_u32_u24 {v(vER + 3)}, 2560, {v(vER)}")
            st.e(f"v_lshl_add_u32 {v(vER + 3)}, {v(vER + 2)}, 1, {v(vER + 3)}")
            st.e(f"v_cmp_gt_u32 vcc, 60, {v(V_LANE)}")
            st.e(f"v_mov_b32 {v(vER + 2)}, 0x80000000")
            st.e(f"s_mul_i32 {s(sOW)}, {s(S_T1)}, {16 * 2560}")
            st.e(f"v_cndmask_b32 {v(vER + 3)}, {v(vER + 2)}, {v(vER + 3)}, vcc")
            st.e(f"v_cmp_gt_u32 vcc, 20, {v(V_LANE)}")
            st.e("s_nop 1")
            st.e(f"v_cndmask_b32 {v(vER + 2)}, {v(vER + 2)}, {v(vER + 3)}, vcc")
    stamp("kend")
    R_O = R_W1
    for mt in range(4):
        for nt in range(5):
            if mt == 3 and nt == 0:
                st.wait(lg=st.lg_issued - 4)
            st.lg(f"ds_write_b128 {v(vT)}, {v(acc2 + 20 * mt + 4 * nt, 4)} offset:{mt * 16 * 336 + nt * 64}")
    st.wait(lg="all")
    st.e("s_barrier")
    stamp("red")
    E = epi["E"]
    busy = set()
    for r in E:
        busy.update(range(r, r + 4))
    free = [r for r in range(BIG, 256, 4) if not (set(range(r, r + 4)) & busy)]
    rd = {(k, pw): free[4 * k + pw] for k in range(6) for pw in range(4)}
    lgid = {}

    def issue_reads(k):
        for pw in range(4):
            ra = vT + 1 + (pw >> 1)
            lgid[k] = st.lg(f"ds_read_b128 {v(rd[k, pw], 4)}, {v(ra)} offset:{(pw & 1) * PARTW + k * 3 * 336}")

    opol = {0: "", 1: " sc1", 2: " nt", 3: " sc0 sc1", 4: " sc1 nt"}[OPT["outpol"]]
    for k in range(3):
        issue_reads(k)
    for k in range(6):
        st.wait(lg=lgid[k])
        if k + 3 < 6:
            issue_reads(k + 3)
        for q in (0, 2):
            st.e(f"v_pk_add_f32 {v(rd[k, 0] + q, 2)}, {v(rd[k, 0] + q, 2)}, {v(rd[k, 1] + q, 2)}")
            st.e(f"v_pk_add_f32 {v(rd[k, 2] + q, 2)}, {v(rd[k, 2] + q, 2)}, {v(rd[k, 3] + q, 2)}")
        for q in (0, 2):
            st.e(f"v_pk_add_f32 {v(E[k] + q, 2)}, {v(E[k] + q, 2)}, {v(rd[k, 0] + q, 2)}")
        for q in (0, 2):
            st.e(f"v_pk_add_f32 {v(E[k] + q, 2)}, {v(E[k] + q, 2)}, {v(rd[k, 2] + q, 2)}")
        st.vm(f"buffer_store_dwordx4 {v(E[k], 4)}, {v(vER + 3 if k < 5 else vER + 2)}, {s(R_O, 4)}, {s(sOW)} offen{opol}")
        if k < 5:
            st.e(f"s_add_u32 {s(sOW)}, {s(sOW)}, {3 * 2560}")
    skip = newlabel("noep")
    st.e(f"s_lshl_b32 {s(S_T0)}, {s(S_CS)}, 2")
    st.e(f"s_add_u32 {s(S_T0)}, {s(S_T0)}, {s(S_W)}")
    st.e(f"s_lshl_b32 {s(S_T0)}, {s(S_T0)}, 4")
    st.e(f"s_add_u32 {s(S_T0)}, {s(S_T0)}, {s(S_RB)}")
    st.e(f"s_cmp_lg_u32 {s(S_T0)}, 15")
    st.e(f"s_cbranch_scc1 {skip}")
    st.e(f"v_mov_b32 {v(vT)}, {s(S_NONCE)}")
    st.e(one_lane_store(vT, "0"))
    st.label(skip)
    stamp("end")
    stamp.flush(vT)
    if OPT["pad"]:
        st.label("L_pad")
        st.e(f"s_memrealtime {s(S_T0, 2)}")
        st.e("s_waitcnt lgkmcnt(0)")
        st.e(f"s_sub_u32 {s(S_T0)}, {s(S_T0)}, {s(stamp.rt0)}")
        st.e(f"s_cmp_lt_u32 {s(S_T0)}, {OPT['pad'] * 100}")
        st.e("s_cbranch_scc1 L_pad")
    st.e("s_endpgm")
    return stamp.names


def gen_S(st):
    sr = Regs("s", S_FREE, 102)
    vr = Regs("v", 4, 256)
    st.label("L_S")
    R_A = sr.alloc("R_A", 4, 4)
    R_B = sr.alloc("R_B", 4, 4)
    sE5 = sr.alloc("sE5", 2)
    sOA, sOB, sMA, sMB, sTy = [sr.alloc(n) for n in ("sOA", "sOB", "sMA", "sMB", "sTy")]
    sP = sr.alloc("sP", 4)
    sQ = sr.alloc("sQ", 4)
    R_P, R_Q = 20, 4
    sMask = [P_X, P_DSK, P_BX, P_B1, P_B2, P_OUT, P_DBG]
    vDA = vr.alloc("vDA", 3)
    vX = vr.alloc("vX", 4)
    vB = vr.alloc("vB", 4)
    vB2 = vr.alloc("vB2", 4)
    vPK = vr.alloc("vPK")
    vPR = vr.alloc("vPR")
    vSig = vr.alloc("vSig")
    vSgn = vr.alloc("vSgn")
    vDum = vr.alloc("vDum")
    vA = vr.alloc("vA", 6)
    vC = vr.alloc("vC", 4)
    vT = vr.alloc("vT", 4, 4)
    acc = [vr.alloc(f"acc{b}", 16, 4) for b in range(3)]
    frag = vr.alloc("frag", 32, 4)
    fX = [frag + 16 * p for p in range(2)]
    fB = [[frag + 16 * p + 4 + 4 * b for b in range(3)] for p in range(2)]
    names = ["lr", "li", "l16r", "l16i", "psr", "psi", "qr", "qi", "r8r", "r8i", "A", "Bc"]
    K = {n: [vr.alloc(f"{n}{b}") for b in range(3)] for n in names}
    tn = ["Lr", "Li", "dt", "la", "rv", "m", "an", "cs", "liu"]
    Tm = {n: [vr.alloc(f"t{n}{b}") for b in range(3)] for n in tn}
    big = vr.alloc("big", 48, 4)

    st.e(f"s_sub_u32 {s(S_W)}, {s(S_W)}, 4")
    ncp = 0
    if OPT["cpf"]:
        skip = newlabel("nocp")
        st.e(f"s_cmp_lg_u32 {s(S_W)}, 3")
        st.e(f"s_cbranch_scc1 {skip}")
        st.e(f"s_getpc_b64 {s(S_T2, 2)}")
        st.label("L_pc")
        st.e(f"s_sub_u32 {s(S_T2)}, {s(S_T2)}, L_pc-{NAME}_kernel")
        st.e(f"s_subb_u32 {s(S_T3)}, {s(S_T3)}, 0")
        st.e(f"v_and_b32 {v(vT)}, 7, {v(V_LANE)}")
        st.e(f"v_lshl_add_u32 {v(vT)}, {v(vT)}, 5, {s(S_T1)}")
        st.e(f"v_min_u32 {v(vT)}, (L_end-{NAME}_kernel)/128, {v(vT)}")
        st.e(f"v_lshlrev_b32 {v(vT)}, 7, {v(vT)}")
        st.e("s_mov_b64 exec, 0xff")
        st.e(f"global_load_dword {v(vDum)}, {v(vT)}, {s(S_T2, 2)}")
        st.e("s_mov_b64 exec, -1")
        st.label(skip)
    st.e(f"v_lshrrev_b32 {v(vT)}, 3, {v(V_LANE)}")
    st.e(f"v_mul_u32_u24 {v(vT)}, 1280, {v(vT)}")
    st.e(f"v_and_b32 {v(vT + 1)}, 7, {v(V_LANE)}")
    st.e(f"v_lshl_add_u32 {v(vPK)}, {v(vT + 1)}, 4, {v(vT)}")
    st.e(f"s_lshr_b32 {s(S_T0)}, {s(S_W)}, 1")
    st.e(f"s_and_b32 {s(S_T1)}, {s(S_W)}, 1")
    st.e(f"s_xor_b32 {s(S_T2)}, {s(S_T0)}, {s(S_T1)}")
    st.e(f"s_lshl_b32 {s(S_T2)}, {s(S_T2)}, 2")
    st.e(f"v_lshrrev_b32 {v(vT + 1)}, 4, {v(V_LANE)}")
    st.e(f"v_xor_b32 {v(vT + 1)}, {s(S_T2)}, {v(vT + 1)}")
    st.e(f"v_lshlrev_b32 {v(vT + 1)}, 4, {v(vT + 1)}")
    st.e(f"v_xor_b32 {v(vDA)}, {v(vT + 1)}, {v(vPK)}")
    st.e(f"v_xor_b32 {v(vDA + 1)}, 64, {v(vDA)}")
    st.e(f"v_add_u32 {v(vDA + 1)}, {10240 - 1024}, {v(vDA + 1)}")
    st.e(f"v_add_u32 {v(vDA + 2)}, {2 * 10240}, {v(vDA)}")
    st.e(f"s_mul_i32 {s(sOA)}, {s(S_CS)}, {40 * 1280}")
    st.e(f"s_mul_i32 {s(S_T2)}, {s(S_T1)}, {24 * 1280}")
    st.e(f"s_add_u32 {s(sOA)}, {s(sOA)}, {s(S_T2)}")
    st.e(f"s_mul_i32 {s(sMA)}, {s(S_T0)}, 5120")
    st.e(f"s_mul_i32 {s(S_T2)}, {s(S_T1)}, 3072")
    st.e(f"s_add_u32 {s(sMA)}, {s(sMA)}, {s(S_T2)}")
    st.e(f"s_add_u32 {s(sMA)}, {s(sMA)}, {O_B}")
    st.e(f"s_add_u32 {s(sMB)}, {s(sMA)}, 2048")
    st.e(f"s_cmp_eq_u32 {s(S_T1)}, 0")
    st.e(f"s_cselect_b64 vcc, -1, 0")
    st.e(f"s_cselect_b32 {s(sOB)}, {s(sOA)}, 0")
    st.e(f"s_cselect_b32 {s(sMB)}, {s(sMB)}, {O_B + 10240}")
    st.e(f"s_cselect_b64 {s(sE5, 2)}, -1, 0xff")
    st.e(f"v_cndmask_b32 {v(vDA + 2)}, {v(V_L16)}, {v(vDA + 2)}, vcc")
    st.e("s_waitcnt lgkmcnt(0)")
    stamp = Stamper(st, sr, "S", 11)
    stamp("start")
    st.e(f"s_cmp_eq_u32 {s(S_T0)}, 0")
    st.e(f"s_cselect_b32 {s(R_A)}, {s(P_BRE)}, {s(P_BIM)}")
    st.e(f"s_cselect_b32 {s(R_A + 1)}, {s(P_BRE + 1)}, {s(P_BIM + 1)}")
    st.e(f"s_mov_b32 {s(R_A + 2)}, {640 * 1280:#x}")
    st.e(f"s_mov_b32 {s(R_A + 3)}, 0x20000")
    st.e(f"s_cmp_eq_u32 {s(S_T1)}, 0")
    st.e(f"s_cselect_b32 {s(R_B)}, {s(R_A)}, {s(P_GATE)}")
    st.e(f"s_cselect_b32 {s(R_B + 1)}, {s(R_A + 1)}, {s(P_GATE + 1)}")
    st.e(f"s_cselect_b32 {s(R_B + 2)}, {s(R_A + 2)}, 1280")
    st.e(f"s_mov_b32 {s(R_B + 3)}, 0x20000")
    ids = {}

    def dma_b(c):
        so = (c % 4) * BS
        return [("e", f"s_add_u32 m0, {s(sMA)}, {so}"),
                ("e", "s_nop 0"),
                ("vm", f"buffer_load_dwordx4 {v(vDA)}, {s(R_A, 4)}, {s(sOA)} offen lds"),
                ("vm", f"buffer_load_dwordx4 {v(vDA + 1)}, {s(R_A, 4)}, {s(sOA)} offen offset:1024 lds"),
                ("e", f"s_add_u32 m0, {s(sMB)}, {so}"),
                ("e", f"s_add_u32 {s(sOA)}, {s(sOA)}, 128"),
                ("vm", f"s_mov_b64 exec, {s(sE5, 2)}\n"
                       f"    buffer_load_dwordx4 {v(vDA + 2)}, {s(R_B, 4)}, {s(sOB)} offen lds\n"
                       f"    s_mov_b64 exec, -1", (ids, ("b", c))),
                ("e", f"s_add_u32 {s(sOB)}, {s(sOB)}, 128")]

    puts(st, dma_b(0))
    xread_addrs(st, vX, vT)
    st.e(f"v_and_b32 {v(vT)}, 1, {v(V_LANE)}")
    st.e(f"v_bfe_u32 {v(vT + 1)}, {v(V_LANE)}, 1, 4")
    st.e(f"v_mad_u32_u24 {v(vT + 1)}, {v(vT)}, 40, {v(vT + 1)}")
    st.e(f"v_bfe_u32 {v(vT + 2)}, {v(vT + 1)}, 1, 3")
    st.e(f"v_lshrrev_b32 {v(vT + 3)}, 5, {v(V_LANE)}")
    st.e(f"v_xor_b32 {v(vT + 2)}, {v(vT + 2)}, {v(vT + 3)}")
    st.e(f"v_lshlrev_b32 {v(vT + 2)}, 4, {v(vT + 2)}")
    st.e(f"v_lshl_add_u32 {v(vT + 1)}, {v(vT + 1)}, 7, {v(vT + 2)}")
    st.e(f"v_add_u32 {v(vB)}, {O_B}, {v(vT + 1)}")
    st.e(f"v_add_u32 {v(vB2)}, 4096, {v(vB)}")
    st.e(f"v_lshlrev_b32 {v(vT + 1)}, 4, {v(vT + 3)}")
    st.e(f"v_add_u32 {v(vT + 1)}, {O_B + 10240}, {v(vT + 1)}")
    st.e(f"v_and_b32 {v(vT + 2)}, 16, {v(V_LANE)}")
    st.e(f"v_cmp_eq_u32 vcc, 0, {v(vT + 2)}")
    st.e(f"s_lshl_b32 {s(S_T0)}, {s(S_W)}, 1")
    st.e(f"v_add_u32 {v(vSig)}, {s(S_T0)}, {v(vT + 3)}")
    st.e(f"v_cndmask_b32 {v(vB2)}, {v(vT + 1)}, {v(vB2)}, vcc")
    for base in (vB, vB2):
        for k in range(1, 4):
            st.e(f"v_xor_b32 {v(base + k)}, {32 * k}, {v(base)}")
    st.e(f"v_cvt_f32_u32 {v(vT)}, {v(vT)}")
    st.e(f"v_fma_f32 {v(vSgn)}, {v(vT)}, 2.0, -1.0")
    puts(st, dma_b(1) + dma_b(2) + dma_b(3))
    if OPT["pf"]:
        l1, l2, le = newlabel("pf"), newlabel("pf"), newlabel("pfe")
        st.e(f"v_mul_u32_u24 {v(vT)}, 43, {v(V_LANE)}")
        st.e(f"v_lshrrev_b32 {v(vT)}, 8, {v(vT)}")
        st.e(f"v_mul_u32_u24 {v(vT + 1)}, {1280 - 6 * 128}, {v(vT)}")
        st.e(f"v_lshl_add_u32 {v(vT + 1)}, {v(V_LANE)}, 7, {v(vT + 1)}")
        st.e(f"s_cmp_eq_u32 {s(S_W)}, 1")
        st.e(f"s_cbranch_scc1 {l1}")
        st.e(f"s_cmp_ge_u32 {s(S_W)}, 2")
        st.e(f"s_cbranch_scc1 {l2}")
        st.e(f"s_lshl_b32 {s(S_T0)}, {s(S_RB)}, 4")
        st.e(f"s_add_u32 {s(S_T0)}, {s(S_T0)}, {s(S_CS)}")
        st.e(f"s_mul_i32 {s(S_T0)}, {s(S_T0)}, {8 * 1280}")
        st.e(f"s_add_u32 {s(S_T0)}, {s(S_T0)}, 512")
        st.e(f"v_add_u32 {v(vT + 1)}, {s(S_T0)}, {v(vT + 1)}")
        st.e(f"s_mov_b64 {s(S_T2, 2)}, {s(P_X, 2)}")
        st.e("s_mov_b32 exec_hi, 0xffff")
        st.e(f"s_branch {le}")
        st.label(l1)
        st.e(f"s_and_b32 {s(S_T0)}, {s(S_RB)}, 7")
        st.e(f"s_mul_i32 {s(S_T0)}, {s(S_T0)}, 5")
        st.e(f"s_mul_i32 {s(S_T1)}, {s(S_CS)}, 40")
        st.e(f"s_add_u32 {s(S_T0)}, {s(S_T0)}, {s(S_T1)}")
        st.e(f"s_mul_i32 {s(S_T0)}, {s(S_T0)}, 1280")
        st.e(f"s_add_u32 {s(S_T0)}, {s(S_T0)}, 512")
        st.e(f"v_add_u32 {v(vT + 1)}, {s(S_T0)}, {v(vT + 1)}")
        st.e(f"s_cmp_lt_u32 {s(S_RB)}, 8")
        st.e(f"s_cselect_b64 {s(S_T2, 2)}, {s(P_BRE, 2)}, {s(P_BIM, 2)}")
        st.e("s_mov_b64 exec, 0x3fffffff")
        st.e(f"s_branch {le}")
        st.label(l2)
        st.e(f"s_lshl_b32 {s(S_T0)}, s2, 1")
        st.e(f"s_add_u32 {s(S_T0)}, {s(S_T0)}, {s(S_W)}")
        st.e(f"s_mul_i32 {s(S_T0)}, {s(S_T0)}, {21 * 128}")
        st.e(f"s_add_u32 {s(S_T0)}, {s(S_T0)}, {192 * 3072 - 2 * 21 * 128}")
        st.e(f"v_lshl_add_u32 {v(vT + 1)}, {v(V_LANE)}, 7, {s(S_T0)}")
        st.e(f"s_mov_b64 {s(S_T2, 2)}, {s(P_W1, 2)}")
        st.e("s_mov_b64 exec, 0x1fffff")
        st.label(le)
        st.vm(f"global_load_dword {v(vDum)}, {v(vT + 1)}, {s(S_T2, 2)}")
        st.e("s_mov_b64 exec, -1")
    srd(st, R_WS, P_WS, 0x10000000)
    st.vm(f"buffer_load_dword {v(V_EP)}, off, {s(R_WS, 4)}, 0 sc1")
    st.e(f"v_bfe_u32 {v(vT)}, {v(V_LANE)}, 1, 4")
    st.e(f"s_mul_i32 {s(S_T0)}, {s(S_CS)}, 40")
    st.e(f"v_add_u32 {v(vT)}, {s(S_T0)}, {v(vT)}")
    st.e(f"v_add_u32 {v(vT + 1)}, 32, {v(vT)}")
    st.e(f"v_min_u32 {v(vT + 1)}, 639, {v(vT + 1)}")
    st.e(f"v_lshlrev_b32 {v(vT)}, 1, {v(vT)}")
    st.e(f"v_lshlrev_b32 {v(vT + 1)}, 1, {v(vT + 1)}")
    for n, ptr in (("Lr", P_LRE), ("Li", P_LIM), ("dt", P_LDT)):
        st.vm(f"global_load_ushort {v(Tm[n][0])}, {v(vT)}, {s(ptr, 2)}")
        st.vm(f"global_load_ushort {v(Tm[n][1])}, {v(vT)}, {s(ptr, 2)} offset:32")
        par_id = st.vm(f"global_load_ushort {v(Tm[n][2])}, {v(vT + 1)}, {s(ptr, 2)}")
    st.e(f"v_mov_b32 {v(vT + 1)}, {SY}")
    st.e(f"v_lshl_add_u32 {v(vT + 1)}, {v(V_LANE)}, 2, {v(vT + 1)}")
    st.e(f"v_mov_b32 {v(vT + 2)}, 0")
    st.e("s_mov_b64 exec, 0xffff")
    st.lg(f"ds_write_b32 {v(vT + 1)}, {v(vT + 2)}")
    st.e("s_mov_b64 exec, -1")
    lC, lJ = newlabel("packC"), newlabel("packJ")
    st.e(f"s_lshl_b32 {s(S_T0)}, s2, 2")
    st.e(f"s_add_u32 {s(S_T0)}, {s(S_T0)}, {s(S_W)}")
    st.e(f"s_sub_u32 {s(S_T1)}, {s(S_T0)}, 880")
    st.e(f"s_cselect_b32 {s(S_T0)}, {s(S_T0)}, {s(S_T1)}")
    st.e(f"s_sub_u32 {s(S_T1)}, {s(S_T0)}, 480")
    st.e(f"s_cselect_b32 {s(sTy)}, 0, 1")
    st.e(f"s_cselect_b32 {s(S_T1)}, {s(S_T0)}, {s(S_T1)}")
    st.e(f"s_mul_i32 {s(S_T2)}, {s(S_T1)}, 6554")
    st.e(f"s_lshr_b32 {s(S_T2)}, {s(S_T2)}, 16")
    st.e(f"s_mul_i32 {s(S_T3)}, {s(S_T2)}, 10")
    st.e(f"s_sub_u32 {s(S_T3)}, {s(S_T1)}, {s(S_T3)}")
    st.e(f"s_lshl_b32 {s(S_T0)}, {s(S_W)}, 12")
    st.e(f"s_add_u32 {s(S_T0)}, {s(S_T0)}, {PS}")
    st.e(f"v_lshrrev_b32 {v(vT + 1)}, 5, {v(V_LANE)}")
    st.e(f"s_cmp_eq_u32 {s(sTy)}, 1")
    st.e(f"s_cbranch_scc1 {lC}")
    st.e(f"v_bfe_u32 {v(vT)}, {v(V_LANE)}, 2, 3")
    st.e(f"v_lshl_add_u32 {v(vT)}, {v(vT + 1)}, 4, {v(vT)}")
    st.e(f"v_and_b32 {v(vT + 1)}, 3, {v(V_LANE)}")
    st.e(f"v_lshlrev_b32 {v(vT + 1)}, 3, {v(vT + 1)}")
    st.e(f"v_lshl_add_u32 {v(vT)}, {v(vT)}, 7, {v(vT + 1)}")
    st.e(f"v_add_u32 {v(vPR)}, {s(S_T0)}, {v(vT)}")
    srd(st, R_P, P_W2, 1536 * 1280)
    srd(st, R_Q, P_W2, 1536 * 1280)
    st.e(f"s_mul_i32 {s(sQ)}, {s(S_T2)}, {32 * 1280}")
    st.e(f"s_lshl_b32 {s(S_T0)}, {s(S_T3)}, 7")
    st.e(f"s_add_u32 {s(sQ)}, {s(sQ)}, {s(S_T0)}")
    st.e(f"s_add_u32 {s(sQ + 1)}, {s(sQ)}, {10240 - 1024}")
    st.e(f"s_add_u32 {s(sQ + 2)}, {s(sQ)}, {2 * 10240}")
    st.e(f"s_add_u32 {s(sQ + 3)}, {s(sQ)}, {3 * 10240 - 1024}")
    st.e(f"s_mul_i32 {s(S_T2)}, {s(S_T2)}, 5120")
    st.e(f"s_add_u32 {s(S_T2)}, {s(S_T2)}, {WS_W2P:#x}")
    st.e(f"s_lshl_b32 {s(S_T3)}, {s(S_T3)}, 2")
    for k in range(4):
        st.e(f"s_add_u32 {s(S_T0)}, {s(S_T3)}, {k}")
        st.e(f"s_mul_i32 {s(S_T1)}, {s(S_T0)}, 205")
        st.e(f"s_lshr_b32 {s(S_T1)}, {s(S_T1)}, 10")
        st.e(f"s_mul_i32 {s(S_T1)}, {s(S_T1)}, {NSS - 5 * 1024}")
        st.e(f"s_lshl_b32 {s(S_T0)}, {s(S_T0)}, 10")
        st.e(f"s_add_u32 {s(S_T0)}, {s(S_T0)}, {s(S_T1)}")
        st.e(f"s_add_u32 {s(sP + k)}, {s(S_T0)}, {s(S_T2)}")
    st.e(f"s_branch {lJ}")
    st.label(lC)
    st.e(f"v_and_b32 {v(vT)}, 31, {v(V_LANE)}")
    st.e(f"v_lshlrev_b32 {v(vT + 1)}, 4, {v(vT + 1)}")
    st.e(f"v_lshl_add_u32 {v(vT)}, {v(vT)}, 7, {v(vT + 1)}")
    st.e(f"v_add_u32 {v(vPR)}, {s(S_T0)}, {v(vT)}")
    srd(st, R_P, P_CRE, 640 * 1280)
    srd(st, R_Q, P_CIM, 640 * 1280)
    st.e(f"s_mul_i32 {s(sQ)}, {s(S_T2)}, {16 * 1280}")
    st.e(f"s_lshl_b32 {s(S_T0)}, {s(S_T3)}, 7")
    st.e(f"s_add_u32 {s(sQ)}, {s(sQ)}, {s(S_T0)}")
    st.e(f"s_add_u32 {s(sQ + 1)}, {s(sQ)}, {10240 - 1024}")
    st.e(f"s_mov_b32 {s(sQ + 2)}, {s(sQ)}")
    st.e(f"s_mov_b32 {s(sQ + 3)}, {s(sQ + 1)}")
    st.e(f"s_mul_i32 {s(S_T1)}, {s(S_T2)}, 205")
    st.e(f"s_lshr_b32 {s(S_T1)}, {s(S_T1)}, 10")
    st.e(f"s_mul_i32 {s(S_T1)}, {s(S_T1)}, {NSS - 5 * 1024}")
    st.e(f"s_lshl_b32 {s(S_T2)}, {s(S_T2)}, 10")
    st.e(f"s_add_u32 {s(S_T1)}, {s(S_T1)}, {s(S_T2)}")
    st.e(f"s_mul_i32 {s(S_T3)}, {s(S_T3)}, {4 * 5120}")
    st.e(f"s_add_u32 {s(S_T1)}, {s(S_T1)}, {s(S_T3)}")
    st.e(f"s_add_u32 {s(sP)}, {s(S_T1)}, {WS_W2P + 48 * 5120:#x}")
    for k in range(1, 4):
        st.e(f"s_add_u32 {s(sP + k)}, {s(sP + k - 1)}, 5120")
    st.label(lJ)

    def pack_loads():
        return [("e", f"s_lshl_b32 {s(S_T0)}, {s(S_W)}, 12"),
                ("e", f"s_add_u32 m0, {s(S_T0)}, {PS}"),
                ("e", "s_nop 0"),
                ("vm", f"buffer_load_dwordx4 {v(vPK)}, {s(R_P, 4)}, {s(sQ)} offen nt lds"),
                ("vm", f"buffer_load_dwordx4 {v(vPK)}, {s(R_P, 4)}, {s(sQ + 1)} offen offset:1024 nt lds"),
                ("e", f"s_add_u32 m0, {s(S_T0)}, {PS + 2048}"),
                ("e", "s_nop 0"),
                ("vm", f"buffer_load_dwordx4 {v(vPK)}, {s(R_Q, 4)}, {s(sQ + 2)} offen nt lds"),
                ("vm", f"buffer_load_dwordx4 {v(vPK)}, {s(R_Q, 4)}, {s(sQ + 3)} offen offset:1024 nt lds", (ids, "pl"))]

    def pack_reads(o):
        a, b = newlabel("prC"), newlabel("prJ")
        o.e(f"s_cmp_eq_u32 {s(sTy)}, 1")
        o.e(f"s_cbranch_scc1 {a}")
        for k in range(4):
            for e2 in range(2):
                o.e(f"ds_read_b64_tr_b16 {v(big + 4 * k + 2 * e2, 2)}, {v(vPR)} offset:{e2 * 1024 + k * 32}")
        o.e(f"s_branch {b}")
        o.label(a)
        for k in range(4):
            o.e(f"ds_read_b128 {v(big + 4 * k, 4)}, {v(vPR)} offset:{k * 32}")
        o.label(b)

    def pack_stores():
        return [("vm", f"buffer_store_dwordx4 {v(big + 4 * k, 4)}, {v(V_L16)}, {s(R_WS, 4)}, {s(sP + k)} offen sc1",
                 (ids, "ps")) for k in range(4)]

    fill = []

    def f3(fmt):
        for b in range(3):
            m = {k: v(val[b]) for k, val in {**K, **Tm}.items()}
            fill.append(("e", fmt.format(**m)))

    sg, sig = v(vSgn), v(vSig)
    fill += nonce_items()
    f3("v_lshlrev_b32 {dt}, 16, {dt}")
    f3("v_lshlrev_b32 {Lr}, 16, {Lr}")
    f3("v_lshlrev_b32 {Li}, 16, {Li}")
    f3("v_mul_f32 {dt}, " + LOG2E + ", {dt}")
    f3("v_exp_f32 {dt}, {dt}")
    f3("v_cvt_pk_bf16_f32 {dt}, {dt}, {dt}")
    f3("v_lshlrev_b32 {dt}, 16, {dt}")
    f3("v_mul_f32 {la}, {dt}, {Lr}")
    f3("v_mul_f32 {rv}, {dt}, {Li}")
    f3("v_mul_f32 {la}, " + LOG2E + ", {la}")
    f3("v_mul_f32 {rv}, 0.15915494, {rv}")

    def powr(nop, r, i, keep=False):
        if nop is None:
            f3("v_exp_f32 {m}, {la}")
            f3("v_fract_f32 {an}, {rv}")
        else:
            f3("v_mul_f32 {m}, " + nop + ", {la}")
            f3("v_mul_f32 {an}, " + nop + ", {rv}")
            f3("v_exp_f32 {m}, {m}")
            f3("v_fract_f32 {an}, {an}")
        f3("v_cos_f32 {cs}, {an}")
        f3("v_sin_f32 {an}, {an}")
        f3("v_mul_f32 {" + r + "}, {m}, {cs}")
        if keep:
            f3("v_mul_f32 {liu}, {m}, {an}")
            f3("v_mul_f32 {" + i + "}, " + sg + ", {liu}")
        else:
            f3("v_mul_f32 {m}, " + sg + ", {m}")
            f3("v_mul_f32 {" + i + "}, {m}, {an}")

    powr(None, "lr", "li", keep=True)
    f3("v_add_f32 {cs}, -1.0, {lr}")
    f3("v_mul_f32 {m}, {Lr}, {Lr}")
    f3("v_fmac_f32 {m}, {Li}, {Li}")
    f3("v_rcp_f32 {m}, {m}")
    f3("v_mul_f32 {A}, {cs}, {Lr}")
    f3("v_fmac_f32 {A}, {liu}, {Li}")
    f3("v_mul_f32 {Bc}, {liu}, {Lr}")
    f3("v_fma_f32 {Bc}, -{cs}, {Li}, {Bc}")
    f3("v_mul_f32 {m}, -2.0, {m}")
    f3("v_mul_f32 {A}, {m}, {A}")
    f3("v_mul_f32 {Bc}, {m}, {Bc}")
    f3("v_mul_f32 {A}, " + sg + ", {A}")
    powr("0x41800000", "l16r", "l16i")
    fill.append(("e", f"v_cvt_f32_u32 {v(vT + 2)}, {sig}"))
    fill.append(("e", f"v_mul_f32 {v(vT + 2)}, 0x41800000, {v(vT + 2)}"))
    fill.append(("e", f"v_mul_f32 {v(vT + 3)}, 0x41000000, {v(vT + 2)}"))
    powr(v(vT + 2), "psr", "psi")
    powr(v(vT + 3), "qr", "qi")
    powr("0x44800000", "r8r", "r8i")
    for j in range(1, 8):
        fill.append(("e", f"v_cmp_eq_u32 {s(sMask[j - 1], 2)}, {j}, {sig}"))
    vEXr, vEXw, vSYa, vSYw, vM1, vTo = [vA + k for k in range(6)]
    fill += [("e", t) for t in (
        f"v_and_b32 {v(vT + 2)}, 31, {v(V_LANE)}",
        f"v_lshlrev_b32 {v(vT + 2)}, 5, {v(vT + 2)}",
        f"v_add_u32 {v(vEXr)}, {EX1}, {v(vT + 2)}",
        f"v_lshl_add_u32 {v(vEXw)}, {v(vSig)}, 2, {v(vEXr)}",
        f"v_mov_b32 {v(vSYa)}, {SY}",
        f"v_lshl_add_u32 {v(vSYw)}, {s(S_W)}, 2, {v(vSYa)}",
        f"v_mov_b32 {v(vM1)}, -1",
        f"s_cmp_eq_u32 {s(S_W)}, 0\n    s_cselect_b32 {s(sQ)}, 0, 0x80000000",
        f"v_lshl_add_u32 {v(vTo)}, {v(V_LANE)}, 3, {s(sQ)}",
        f"s_lshl_b32 {s(sQ + 1)}, {s(S_RB)}, 4",
        f"s_add_u32 {s(sQ + 1)}, {s(sQ + 1)}, {s(S_CS)}",
        f"s_mul_i32 {s(sQ + 1)}, {s(sQ + 1)}, 768",
        f"s_add_u32 {s(sQ + 1)}, {s(sQ + 1)}, {WS_T:#x}")]
    F0 = 4 * 4
    per = -(-len(fill) // (39 - F0))

    def reads(c, sidx):
        p = sidx & 1
        out = [("lg", f"ds_read_b128 {v(fX[p], 4)}, {v(vX + sidx)} offset:{(c % 4) * XS}")]
        for b in range(3):
            base = vB if b < 2 else vB2
            off = (c % 4) * BS + (2048 * b if b < 2 else 0)
            out.append(("lg", f"ds_read_b128 {v(fB[p][b], 4)}, {v(base + sidx)} offset:{off}"))
        return out

    def mfmas(c, sidx):
        p = sidx & 1
        first = (c == 0 and sidx == 0)
        return [("e", f"v_mfma_f32_32x32x16_bf16 {v(acc[b], 16)}, {v(fX[p], 4)}, {v(fB[p][b], 4)}, "
                      + ("0" if first else v(acc[b], 16))) for b in range(3)]

    st.wait(vm=ids["b", 0], lg="all")
    st.e("s_barrier")
    stamp("B0", (0,))
    puts(st, reads(0, 0))
    PA = OPT["packat"]
    assert PA + 3 <= 6
    for c in range(10):
        for sidx in range(4):
            fl = []
            if 4 * c + sidx >= F0:
                assert ids["b", 4] > par_id
                fl, fill = fill[:per], fill[per:]
            if sidx < 3:
                st.wait(lg="all")
                sides = reads(c, sidx + 1)
                if c == PA + 3 and sidx == 0:
                    sides = sides + pack_stores() + (dma_b(c + 3) if c + 3 <= 9 else [])
                interleave(st, mfmas(c, sidx), sides + fl)
            else:
                if c < 9:
                    wid = ids["b", c + 1]
                    if c + 1 == PA + 6:
                        wid = max(wid, ids["ps"])
                    st.wait(vm=wid, lg="all")
                else:
                    st.wait(lg="all")
                st.e("s_barrier")
                sides = reads(c + 1, 0) if c < 9 else []
                if c + 1 == PA:
                    sides = sides + pack_loads()
                if c + 1 == PA + 3:
                    assert ids["b", c + 1] > ids["pl"]
                    sides = sides + [("fn", pack_reads)]
                elif c + 4 <= 9:
                    sides = sides + dma_b(c + 4)
                if c + 1 == PA + 6:
                    sides = sides + [
                        ("e", f"s_lshl_b32 {s(S_T0)}, s2, 5"),
                        ("e", f"s_add_u32 {s(S_T0)}, {s(S_T0)}, {s(S_W)}"),
                        ("e", f"s_lshl_b32 {s(S_T0)}, {s(S_T0)}, 2"),
                        ("e", f"s_add_u32 {s(S_T0)}, {s(S_T0)}, {WS_FP:#x}"),
                        ("e", f"v_mov_b32 {v(vT)}, {s(S_NONCE)}"),
                        ("vm", one_lane_store(vT, s(S_T0)))]
                interleave(st, mfmas(c, sidx), sides + fl)
    assert not fill
    stamp("loopend")
    if OPT["prioS"]:
        st.e(f"s_setprio {OPT['prioS']}")
    hA = [frag + b for b in range(3)]
    hB = [frag + 3 + b for b in range(3)]
    Pv = [frag + 6 + b for b in range(3)]
    Tv = [frag + 10 + 2 * b for b in range(3)]
    st.nop(6)
    for b in range(3):
        st.e(f"v_mov_b32 {v(Pv[b])}, 0")
        st.e(f"v_mov_b32 {v(Tv[b] + 1)}, {s(S_NONCE)}")
    cur = [acc[b] for b in range(3)]
    for j in range(1, 16):
        dst = hA if j & 1 else hB
        for b in range(3):
            st.e(f"v_fma_f32 {v(dst[b])}, {v(K['lr'][b])}, {v(cur[b])}, {v(acc[b] + j)}")
        for b in range(3):
            st.e(f"v_fmac_f32_dpp {v(dst[b])}, {v(cur[b])}, {v(K['li'][b])} {DPP}")
        cur = dst
    stamp("pass1", (1,))
    for b in range(3):
        st.lg(f"ds_write_b32 {v(vEXw)}, {v(cur[b])} offset:{1024 * b}")
    st.lg(f"ds_write_b32 {v(vSYw)}, {v(vM1)}")
    Ev = [big + 8 * b for b in range(3)]

    def ex_reads(base):
        return [f"ds_read_b128 {v(Ev[b] + 4 * q, 4)}, {v(vEXr)} offset:{base + 1024 * b + 16 * q}"
                for b in range(3) for q in range(2)]

    lds_flag_wait(st, vSYa, 0, vT, ex_reads(0))
    stamp("sync1", (1,))
    cur = [Ev[b] for b in range(3)]
    for j in range(1, 8):
        dst = Tv if j == 7 else (hA if j & 1 else hB)
        for b in range(3):
            st.e(f"v_fma_f32 {v(dst[b])}, {v(K['l16r'][b])}, {v(cur[b])}, {v(Ev[b] + j)}")
        for b in range(3):
            st.e(f"v_fmac_f32_dpp {v(dst[b])}, {v(cur[b])}, {v(K['l16i'][b])} {DPP}")
        if j < 7:
            for b in range(3):
                st.e(f"v_cndmask_b32 {v(Pv[b])}, {v(Pv[b])}, {v(cur[b])}, {s(sMask[j - 1], 2)}")
        prev, cur = cur, dst
    st.e("s_mov_b32 exec_hi, 0")
    for b in range(3):
        st.vm(f"buffer_store_dwordx2 {v(Tv[b], 2)}, {v(vTo)}, {s(R_WS, 4)}, {s(sQ + 1)} offen offset:{256 * b} sc1")
    st.e("s_mov_b32 exec_hi, -1")
    for b in range(3):
        st.e(f"v_cndmask_b32 {v(Pv[b])}, {v(Pv[b])}, {v(prev[b])}, {s(sMask[6], 2)}")
    stamp("Tpub")
    gv = big + 24
    st.e(f"v_lshlrev_b32 {v(vT)}, 6, {v(vSig)}")
    st.e(f"v_add_u32 {v(vX)}, {GS}, {v(vT)}")
    st.e("s_mov_b32 exec_lo, 0x10000")
    st.e("s_mov_b32 exec_hi, 0x10000")
    for q in range(4):
        st.lg(f"ds_write_b128 {v(vX)}, {v(acc[2] + 4 * q, 4)} offset:{16 * q}")
    st.e("s_mov_b64 exec, -1")
    st.e(f"v_and_b32 {v(vT)}, 31, {v(V_LANE)}")
    st.e(f"s_lshl_b32 {s(S_T0)}, {s(S_W)}, 7")
    st.e(f"s_add_u32 {s(S_T0)}, {s(S_T0)}, {GS}")
    st.e(f"v_lshl_add_u32 {v(vX + 1)}, {v(vT)}, 2, {s(S_T0)}")
    st.lg(f"ds_read_b32 {v(vX + 2)}, {v(vX + 1)}")
    mk = [P_BRE, P_BIM, P_CRE, P_CIM]
    st.e(f"s_sub_u32 {s(S_T0)}, {s(S_RB)}, 1")
    st.e(f"v_sub_u32 {v(vT)}, {s(S_T0)}, {v(vSig)}")
    st.e(f"v_and_b32 {v(vT + 1)}, 31, {v(V_LANE)}")
    st.e(f"s_mul_i32 {s(S_T1)}, {s(S_CS)}, 768")
    st.e(f"s_add_u32 {s(S_T1)}, {s(S_T1)}, {WS_T:#x}")
    st.e(f"v_lshl_add_u32 {v(vT + 1)}, {v(vT + 1)}, 3, {s(S_T1)}")
    st.e(f"v_mov_b32 {v(vT + 3)}, 0x80000000")
    st.e(f"s_mov_b32 {s(S_T2)}, 0xffff0000")
    st.e(f"s_mov_b32 {s(S_T3)}, 0xffff0000")
    for dl in range(2):
        if dl:
            st.e(f"v_subrev_u32 {v(vT)}, 8, {v(vT)}")
        st.e(f"v_cmp_gt_i32 {s(mk[2 * dl], 2)}, 0, {v(vT)}")
        st.e(f"v_mul_i32_i24 {v(vT + 2)}, {16 * 768}, {v(vT)}")
        st.e(f"v_add_u32 {v(vT + 2)}, {v(vT + 2)}, {v(vT + 1)}")
        st.e(f"s_or_b64 {s(mk[2 * dl + 1], 2)}, {s(mk[2 * dl], 2)}, {s(S_T2, 2)}")
        st.e(f"v_cndmask_b32 {v(vC + 2 * dl)}, {v(vT + 2)}, {v(vT + 3)}, {s(mk[2 * dl], 2)}")
        st.e(f"v_cndmask_b32 {v(vC + 2 * dl + 1)}, {v(vT + 2)}, {v(vT + 3)}, {s(mk[2 * dl + 1], 2)}")
    st.wait(lg="all")
    st.e(f"v_mul_f32 {v(vX + 2)}, {NLOG2E}, {v(vX + 2)}")
    st.e(f"v_exp_f32 {v(vX + 2)}, {v(vX + 2)}")
    st.e("s_nop 0")
    st.e(f"v_add_f32 {v(vX + 2)}, 1.0, {v(vX + 2)}")
    st.e(f"v_rcp_f32 {v(vX + 2)}, {v(vX + 2)}")
    st.e("s_nop 0")
    st.lg(f"ds_write_b32 {v(vX + 1)}, {v(vX + 2)} offset:512")
    st.lg(f"ds_write_b32 {v(vSYw)}, {v(vM1)} offset:32")
    for q in range(4):
        st.lg(f"ds_read_b128 {v(gv + 4 * q, 4)}, {v(vX)} offset:{512 + 16 * q}")
    Cv = [[big + 4 * b + 2 * dl for dl in range(2)] for b in range(3)]
    tt = [frag + 16 + k for k in range(6)]
    for j in range(16):
        for b in range(3):
            st.e(f"v_mul_f32_dpp {v(tt[3 * (j & 1) + b])}, {v(acc[b] + j)}, {v(K['Bc'][b])} {DPP}")
        for b in range(3):
            st.e(f"v_fma_f32 {v(acc[b] + j)}, {v(K['A'][b])}, {v(acc[b] + j)}, {v(tt[3 * (j & 1) + b])}")
    st.e(f"s_mul_i32 {s(S_T0)}, {s(S_W)}, 7680")
    st.e(f"s_add_u32 {s(S_T0)}, {s(S_T0)}, {TS}")
    st.e(f"v_and_b32 {v(vT)}, 31, {v(V_LANE)}")
    st.e(f"v_mul_u32_u24 {v(vT)}, 80, {v(vT)}")
    st.e(f"v_and_b32 {v(vT + 1)}, 32, {v(V_LANE)}")
    st.e(f"v_add3_u32 {v(vB2)}, {v(vT)}, {v(vT + 1)}, {s(S_T0)}")
    st.e(f"v_bfe_u32 {v(vT)}, {v(V_LANE)}, 2, 2")
    st.e(f"v_bfe_u32 {v(vT + 2)}, {v(V_LANE)}, 4, 1")
    st.e(f"v_lshl_add_u32 {v(vT)}, {v(vT)}, 1, {v(vT + 2)}")
    st.e(f"v_mul_u32_u24 {v(vT)}, 80, {v(vT)}")
    st.e(f"v_and_b32 {v(vT + 3)}, 3, {v(V_LANE)}")
    st.e(f"v_lshl_add_u32 {v(vT)}, {v(vT + 3)}, 3, {v(vT)}")
    st.e(f"v_add3_u32 {v(vB2 + 1)}, {v(vT)}, {v(vT + 1)}, {s(S_T0)}")
    st.e(f"v_lshrrev_b32 {v(vT)}, 5, {v(V_LANE)}")
    st.e(f"v_mul_u32_u24 {v(vT)}, {RTS - 512}, {v(vT)}")
    st.e(f"v_add_u32 {v(vB2 + 2)}, {v(vT)}, {v(V_L16)}")
    st.e(f"s_lshl_b32 {s(sP)}, {s(S_RB)}, 2")
    st.e(f"s_add_u32 {s(sP)}, {s(sP)}, {s(S_W)}")
    st.e(f"s_mul_i32 {s(sP)}, {s(sP)}, {2 * RTS}")
    st.e(f"s_mul_i32 {s(S_T1)}, {s(S_CS)}, 2560")
    st.e(f"s_add_u32 {s(sP)}, {s(sP)}, {s(S_T1)}")
    st.e(f"s_add_u32 {s(sP)}, {s(sP)}, {WS_H + 192 * 256:#x}")
    st.e(f"s_lshl_b32 {s(sP + 1)}, {s(S_RB)}, 4")
    st.e(f"s_add_u32 {s(sP + 1)}, {s(sP + 1)}, {s(S_CS)}")
    st.e(f"s_lshl_b32 {s(sP + 1)}, {s(sP + 1)}, 5")
    st.e(f"s_add_u32 {s(sP + 1)}, {s(sP + 1)}, {s(S_W)}")
    st.e(f"s_lshl_b32 {s(sP + 1)}, {s(sP + 1)}, 2")
    st.e(f"s_add_u32 {s(sP + 1)}, {s(sP + 1)}, {WS_FS:#x}")
    st.e(f"v_mov_b32 {v(vB2 + 3)}, {s(S_NONCE)}")
    stamp("win")
    top, done = newlabel("cp"), newlabel("cok")
    st.e(f"s_mov_b32 {s(S_SPIN)}, {OPT['spin']}")
    st.label(top)
    for dl in range(2):
        for b in range(3):
            ra = vC + 2 * dl + (1 if b == 2 else 0)
            st.e(f"buffer_load_dwordx2 {v(Cv[b][dl], 2)}, {v(ra)}, {s(R_WS, 4)}, 0 offen offset:{256 * b} sc1")
    st.e(f"s_mov_b64 {s(S_T0, 2)}, -1")
    st.e("s_waitcnt vmcnt(0)")
    for dl in range(2):
        for b in range(3):
            st.e(f"v_cmp_eq_u32 vcc, {s(S_NONCE)}, {v(Cv[b][dl] + 1)}")
            st.e("s_nop 0")
            st.e(f"s_or_b64 vcc, vcc, {s(mk[2 * dl + (1 if b == 2 else 0)], 2)}")
            st.e(f"s_and_b64 {s(S_T0, 2)}, {s(S_T0, 2)}, vcc")
    st.e(f"s_cmp_eq_u64 {s(S_T0, 2)}, -1")
    st.e(f"s_cbranch_scc1 {done}")
    st.e("s_sleep 1")
    st.e(f"s_sub_u32 {s(S_SPIN)}, {s(S_SPIN)}, 1")
    st.e(f"s_cbranch_scc0 {top}")
    st.label(done)
    stamp("carry")
    for b in range(3):
        st.e(f"v_fma_f32 {v(hA[b])}, {v(K['r8r'][b])}, {v(Cv[b][1])}, {v(Cv[b][0])}")
    for b in range(3):
        st.e(f"v_fmac_f32_dpp {v(hA[b])}, {v(Cv[b][1])}, {v(K['r8i'][b])} {DPP}")
    for b in range(3):
        st.e(f"v_mul_f32 {v(hB[b])}, {v(K['qr'][b])}, {v(hA[b])}")
    for b in range(3):
        st.e(f"v_fmac_f32_dpp {v(hB[b])}, {v(hA[b])}, {v(K['qi'][b])} {DPP}")
    for b in range(3):
        st.lg(f"ds_write_b32 {v(vEXw)}, {v(hB[b])} offset:{3072 + 1024 * b}")
    st.lg(f"ds_write_b32 {v(vSYw)}, {v(vM1)} offset:16")
    lds_flag_wait(st, vSYa, 16, vT, ex_reads(3072))
    stamp("sync2")
    for q in (0, 2):
        for b in range(3):
            st.e(f"v_pk_add_f32 {v(Ev[b] + q, 2)}, {v(Ev[b] + q, 2)}, {v(Ev[b] + 4 + q, 2)}")
    for b in range(3):
        st.e(f"v_pk_add_f32 {v(Ev[b], 2)}, {v(Ev[b], 2)}, {v(Ev[b] + 2, 2)}")
    for b in range(3):
        st.e(f"v_add_f32 {v(hA[b])}, {v(Ev[b])}, {v(Ev[b] + 1)}")
    for b in range(3):
        st.e(f"v_fmac_f32 {v(Pv[b])}, {v(K['psr'][b])}, {v(hA[b])}")
    for b in range(3):
        st.e(f"v_fmac_f32_dpp {v(Pv[b])}, {v(hA[b])}, {v(K['psi'][b])} {DPP}")
    for b in range(3):
        st.e(f"v_mul_f32 {v(hB[b])}, {v(K['A'][b])}, {v(Pv[b])}")
    for b in range(3):
        st.e(f"v_fmac_f32_dpp {v(hB[b])}, {v(Pv[b])}, {v(K['Bc'][b])} {DPP}")
    pk = [big + 8 * b for b in range(3)]
    sc = [frag + 16 + 2 * b for b in range(3)]
    for j in range(16):
        prev = [hB[b] if j == 0 else acc[b] + j - 1 for b in range(3)]
        for b in range(3):
            st.e(f"v_fmac_f32 {v(acc[b] + j)}, {v(K['lr'][b])}, {v(prev[b])}")
        for b in range(3):
            st.e(f"v_fmac_f32_dpp {v(acc[b] + j)}, -{v(prev[b])}, {v(K['li'][b])} {DPP}")
        if j & 1:
            for b in range(3):
                st.e(f"v_pk_mul_f32 {v(sc[b], 2)}, {v(acc[b] + j - 1, 2)}, {v(gv + j - 1, 2)}")
            for b in range(3):
                st.e(f"v_cvt_pk_bf16_f32 {v(pk[b] + (j >> 1))}, {v(sc[b])}, {v(sc[b] + 1)}")
        if j in (7, 15):
            for b in range(3):
                st.lg(f"ds_write_b128 {v(vB2)}, {v(pk[b] + (4 if j == 15 else 0), 4)} "
                      f"offset:{2560 * b + (16 if j == 15 else 0)}")
    stamp("pass2", (1,))
    rid = []
    for k in range(5):
        for e2 in range(2):
            r = st.lg(f"ds_read_b64_tr_b16 {v(acc[0] + 4 * k + 2 * e2, 2)}, {v(vB2 + 1)} offset:{k * 1280 + e2 * 640}")
        rid.append(r)
    for k in range(5):
        st.wait(lg=rid[k])
        st.vm(f"buffer_store_dwordx4 {v(acc[0] + 4 * k, 4)}, {v(vB2 + 2)}, {s(R_WS, 4)}, {s(sP)} offen offset:{512 * k} sc1")
    stamp("hst")
    st.wait(vm="all")
    st.vm(one_lane_store(vB2 + 3, s(sP + 1)))
    stamp("end")
    stamp.flush(vT)
    st.e("s_endpgm")
    return stamp.names


HEADER = """; gated mix of an S5 state-space branch and a squared-relu MLP branch, one persistent launch.
; @launch grid=(256,1,1) block=(512,1,1) lds={lds}
.amdgcn_target "amdgcn-amd-amdhsa--gfx950"
.text
.globl {name}_kernel
.p2align 8
.type {name}_kernel,@function
{name}_kernel:
"""
FOOTER = """.section .rodata,"a"
.p2align 6
.amdhsa_kernel {name}_kernel
  .amdhsa_next_free_vgpr 256
  .amdhsa_next_free_sgpr 102
  .amdhsa_accum_offset 256
  .amdhsa_group_segment_fixed_size 0
  .amdhsa_kernarg_size 144
  .amdhsa_user_sgpr_count 2
  .amdhsa_user_sgpr_kernarg_segment_ptr 1
  .amdhsa_system_sgpr_workgroup_id_x 1
  .amdhsa_float_denorm_mode_32 3
.end_amdhsa_kernel
"""


def main():
    c = Stream()
    gen_common(c)
    g = Stream()
    gn = gen_G(g)
    sst = Stream()
    sn = gen_S(sst)
    slow = "".join(o.text() for o in SLOW)
    text = (HEADER.format(lds=LDS_BYTES, name=NAME) + c.text() + g.text() + slow + ".p2align 6\n" + sst.text()
            + "L_end:\n    s_endpgm\n" + FOOTER.format(name=NAME))
    open(sys.argv[1], "w").write(text)
    if STAMPS:
        import json
        json.dump(dict(G=gn, S=sn), open(sys.argv[1] + ".stamps.json", "w"))


if __name__ == "__main__":
    main()
```

```python
import sys
from asmlib import Regs, Stream, v, s

NAME = "gated_mix__ssm_conv_s5__dense_activation_squared_relu__prompt"
OPT = dict(stamps=0, D=4, spin=1 << 14, pad=0, prioS=3, prioG=2, pf=1, cpf=1, packat=2, npre=20, outpol=0,
           xnt=0, sset=0)
OPT["padat"] = "start"
for a in sys.argv[2:]:
    k, val = a.split("=")
    assert k in OPT, k
    OPT[k] = val if k == "padat" else int(val)
STAMPS = bool(OPT["stamps"])
D = OPT["D"]

WS_EPOCH = 0
WS_FP = 0x8000
WS_FM = 0x10000
WS_FS = 0x18000
WS_T = 0x20000
WS_W2P = 0x100000
WS_H = 0x800000
WS_ST = 0x2000000
RTS = 352 * 256
NSS = 88 * 5120
XS, BS, WSZ = 16384, 10368, 12288
O_X = 0
O_B = 4 * XS
O_W1 = O_B + 4 * BS
PS = O_W1 + 3 * WSZ
SY = PS + 16384
GS = SY + 64
GB = GS + 512
LDS_BYTES = GB + 512 + 64
EX1 = PS
EX2 = EX1 + 3072
TS = O_W1
PARTW = 64 * 336
assert LDS_BYTES <= 163840 and 4 * PARTW <= O_W1 and 4 * 24576 <= O_W1 and 4 * 7680 <= 3 * WSZ

DPP = "quad_perm:[1,0,3,2] row_mask:0xf bank_mask:0xf"
LOG2E = "0x3fb8aa3b"
NLOG2E = "0xbfb8aa3b"

P_X, P_LRE, P_LIM, P_BRE, P_BIM, P_CRE, P_CIM, P_LDT = 4, 6, 8, 10, 12, 14, 16, 18
P_DSK, P_BX, P_W1, P_B1, P_W2, P_B2, P_GATE, P_OUT = 20, 22, 24, 26, 28, 30, 32, 34
P_DBG, P_WS = 36, 38
R_WS = 40
S_RB, S_CS, S_HH, S_NS, S_W, S_NONCE, S_T0, S_T1, S_T2, S_T3 = 44, 45, 46, 47, 48, 49, 50, 51, 52, 53
S_SPIN = 3
S_FREE = 54
V_LANE = 1
V_L16 = 2
V_EP = 3


def srd(st, base, ptr, size):
    st.e(f"s_mov_b32 {s(base)}, {s(ptr)}")
    st.e(f"s_mov_b32 {s(base + 1)}, {s(ptr + 1)}")
    st.e(f"s_mov_b32 {s(base + 2)}, {size:#x}")
    st.e(f"s_mov_b32 {s(base + 3)}, 0x20000")


class Stamper:
    def __init__(self, st, sr, role, n):
        self.st, self.role, self.n, self.max = st, role, 0, n
        self.base = sr.alloc("stamps", 2 * n, 2) if STAMPS else None
        self.rt0 = sr.alloc("rt0", 2, 2) if (role == "G" and (STAMPS or OPT["pad"])) else None
        self.names = []

    def __call__(self, name, sets=None):
        if self.rt0 is not None and name == OPT["padat"]:
            self.st.e(f"s_memrealtime {s(self.rt0, 2)}")
        if not STAMPS or (sets is not None and OPT["sset"] not in sets):
            return
        assert self.n < self.max, name
        self.st.e(f"s_memtime {s(self.base + 2 * self.n, 2)}")
        self.names.append(name)
        self.n += 1

    def flush(self, vt):
        if not STAMPS:
            return
        st = self.st
        st.e(f"s_memrealtime {s(S_T0, 2)}")
        st.e("s_waitcnt lgkmcnt(0)")
        st.e(f"v_mov_b32 {v(vt)}, 0")
        for i in range(self.n):
            st.e(f"v_writelane_b32 {v(vt)}, {s(self.base + 2 * i)}, {i}")
        st.e(f"v_writelane_b32 {v(vt)}, {s(S_T0)}, 15")
        if self.rt0 is not None:
            st.e(f"v_writelane_b32 {v(vt)}, {s(self.rt0)}, 14")
        st.e(f"s_lshl_b32 {s(S_T0)}, s2, 3")
        st.e(f"s_add_u32 {s(S_T0)}, {s(S_T0)}, {s(S_W)}")
        if self.role == "S":
            st.e(f"s_add_u32 {s(S_T0)}, {s(S_T0)}, 4")
        st.e(f"s_lshl_b32 {s(S_T0)}, {s(S_T0)}, 6")
        st.e(f"s_add_u32 {s(S_T0)}, {s(S_T0)}, {WS_ST:#x}")
        st.e(f"v_lshlrev_b32 {v(vt + 1)}, 2, {v(V_LANE)}")
        st.e("s_mov_b64 exec, 0xffff")
        st.e(f"buffer_store_dword {v(vt)}, {v(vt + 1)}, {s(R_WS, 4)}, {s(S_T0)} offen")
        st.e("s_mov_b64 exec, -1")


_lbl = [0]


def newlabel(p):
    _lbl[0] += 1
    return f"L_{p}_{_lbl[0]}"


def nonce_items():
    return [("e", f"v_readfirstlane_b32 {s(S_NONCE)}, {v(V_EP)}"),
            ("e", "s_nop 3"),
            ("e", f"s_mul_i32 {s(S_NONCE)}, {s(S_NONCE)}, 0x9e3779b1"),
            ("e", f"s_add_u32 {s(S_NONCE)}, {s(S_NONCE)}, 0x7f4a7c15")]


SLOW = []


def flag_check(st, vdata, reload_text, mask=None):
    slow, done = newlabel("slow"), newlabel("ok")

    def test(o):
        o.e(f"v_cmp_ne_u32 vcc, {s(S_NONCE)}, {v(vdata)}")
        o.e("s_nop 1")
        if mask is None:
            o.e("s_cmp_lg_u64 vcc, 0")
        else:
            o.e(f"s_and_b32 {s(S_T3)}, vcc_lo, {mask:#x}")

    test(st)
    st.e(f"s_cbranch_scc1 {slow}")
    st.label(done)
    o = Stream()
    o.label(slow)
    o.e(f"s_mov_b32 {s(S_SPIN)}, {OPT['spin']}")
    top = newlabel("spin")
    o.label(top)
    o.e(reload_text)
    o.e(f"s_sub_u32 {s(S_SPIN)}, {s(S_SPIN)}, 1")
    o.e(f"s_cbranch_scc1 {done}")
    o.e("s_waitcnt vmcnt(0)")
    test(o)
    o.e(f"s_cbranch_scc0 {done}")
    o.e("s_sleep 1")
    o.e(f"s_branch {top}")
    SLOW.append(o)


def lds_flag_wait(st, vaddr, off, vtmp, extra=()):
    top, done = newlabel("lw"), newlabel("lok")
    st.e(f"s_mov_b32 {s(S_SPIN)}, {OPT['spin'] * 8}")
    st.label(top)
    st.e(f"ds_read_b128 {v(vtmp, 4)}, {v(vaddr)} offset:{off}")
    for t in extra:
        st.e(t)
    st.e(f"s_sub_u32 {s(S_SPIN)}, {s(S_SPIN)}, 1")
    st.e(f"s_cbranch_scc1 {done}")
    st.e(f"s_waitcnt lgkmcnt({len(extra)})")
    st.e(f"v_and_b32 {v(vtmp)}, {v(vtmp)}, {v(vtmp + 1)}")
    st.e(f"v_and_b32 {v(vtmp + 2)}, {v(vtmp + 2)}, {v(vtmp + 3)}")
    st.e(f"v_and_b32 {v(vtmp)}, {v(vtmp)}, {v(vtmp + 2)}")
    st.e(f"v_cmp_ne_u32 vcc, -1, {v(vtmp)}")
    st.e("s_nop 1")
    st.e("s_cmp_lg_u64 vcc, 0")
    st.e(f"s_cbranch_scc1 {top}")
    st.label(done)
    st.e("s_waitcnt lgkmcnt(0)")


def pack_flag_addr(st, vd, vt):
    st.e(f"s_mul_i32 {s(S_T0)}, {s(S_NS)}, 5")
    st.e(f"s_lshr_b32 {s(S_T1)}, {s(S_T0)}, 2")
    st.e(f"s_mul_i32 {s(S_T2)}, {s(S_W)}, 120")
    st.e(f"s_add_u32 {s(S_T1)}, {s(S_T1)}, {s(S_T2)}")
    st.e(f"v_lshrrev_b32 {v(vt)}, 1, {v(V_LANE)}")
    st.e(f"v_mul_u32_u24 {v(vt)}, 10, {v(vt)}")
    st.e(f"v_and_b32 {v(vt + 1)}, 1, {v(V_LANE)}")
    st.e(f"v_add3_u32 {v(vd)}, {v(vt)}, {v(vt + 1)}, {s(S_T1)}")
    st.e(f"s_mul_i32 {s(S_T2)}, {s(S_W)}, 10")
    st.e(f"s_lshr_b32 {s(S_T2)}, {s(S_T2)}, 2")
    st.e(f"s_mul_i32 {s(S_T0)}, {s(S_T0)}, 10")
    st.e(f"s_add_u32 {s(S_T0)}, {s(S_T0)}, {s(S_T2)}")
    st.e(f"s_add_u32 {s(S_T0)}, {s(S_T0)}, 480")
    st.e(f"v_subrev_u32 {v(vt)}, 24, {v(V_LANE)}")
    st.e(f"v_min_u32 {v(vt)}, 14, {v(vt)}")
    st.e(f"v_mul_u32_u24 {v(vt + 1)}, 43, {v(vt)}")
    st.e(f"v_lshrrev_b32 {v(vt + 1)}, 7, {v(vt + 1)}")
    st.e(f"v_mul_u32_u24 {v(vt + 2)}, 7, {v(vt + 1)}")
    st.e(f"v_add3_u32 {v(vt)}, {v(vt)}, {v(vt + 2)}, {s(S_T0)}")
    st.e(f"v_cmp_gt_u32 vcc, 24, {v(V_LANE)}")
    st.e("s_nop 1")
    st.e(f"v_cndmask_b32 {v(vd)}, {v(vt)}, {v(vd)}, vcc")
    st.e(f"v_lshrrev_b32 {v(vt)}, 2, {v(vd)}")
    st.e(f"v_and_b32 {v(vd)}, 3, {v(vd)}")
    st.e(f"v_lshlrev_b32 {v(vd)}, 2, {v(vd)}")
    st.e(f"v_lshl_add_u32 {v(vd)}, {v(vt)}, 7, {v(vd)}")
    st.e(f"v_add_u32 {v(vd)}, {WS_FP:#x}, {v(vd)}")


def xread_addrs(st, vX, vt):
    st.e(f"v_and_b32 {v(vt)}, 31, {v(V_LANE)}")
    st.e(f"v_bfe_u32 {v(vt + 1)}, {v(V_LANE)}, 1, 3")
    st.e(f"v_lshrrev_b32 {v(vt + 2)}, 5, {v(V_LANE)}")
    st.e(f"v_xor_b32 {v(vt + 1)}, {v(vt + 1)}, {v(vt + 2)}")
    st.e(f"v_lshlrev_b32 {v(vt + 1)}, 4, {v(vt + 1)}")
    st.e(f"v_lshl_add_u32 {v(vt)}, {v(vt)}, 7, {v(vt + 1)}")
    st.e(f"s_lshl_b32 {s(S_T0)}, {s(S_W)}, 12")
    st.e(f"v_add_u32 {v(vX)}, {s(S_T0)}, {v(vt)}")
    for k in range(1, 4):
        st.e(f"v_xor_b32 {v(vX + k)}, {32 * k}, {v(vX)}")


def put(st, item):
    kind, text = item[0], item[1]
    r = None
    if kind == "vm":
        r = st.vm(text)
    elif kind == "lg":
        r = st.lg(text)
    elif kind == "fn":
        text(st)
    else:
        st.e(text)
    if len(item) > 2:
        item[2][0][item[2][1]] = r
    return r


def puts(st, items):
    for it in items:
        put(st, it)


def interleave(st, mains, sides):
    n, k = len(mains), 0
    for i, m in enumerate(mains):
        put(st, m)
        upto = (len(sides) * (i + 1) + n - 1) // n
        while k < upto:
            put(st, sides[k])
            k += 1


def one_lane_store(vdata, soff):
    return (f"s_mov_b64 exec, 1\n    buffer_store_dword {v(vdata)}, off, {s(R_WS, 4)}, {soff} sc1\n"
            f"    s_mov_b64 exec, -1")


def gen_common(st):
    st.e("s_cmp_ge_u32 s2, 256")
    st.e("s_cbranch_scc1 L_end")
    st.e("s_load_dwordx16 s[4:19], s[0:1], 0")
    st.e("s_load_dwordx16 s[20:35], s[0:1], 64")
    st.e("s_load_dwordx4 s[36:39], s[0:1], 128")
    st.e(f"v_lshrrev_b32 {v(V_EP)}, 6, v0")
    st.e(f"v_and_b32 {v(V_LANE)}, 63, v0")
    st.e(f"v_readfirstlane_b32 {s(S_W)}, {v(V_EP)}")
    st.e(f"v_lshlrev_b32 {v(V_L16)}, 4, {v(V_LANE)}")
    st.e(f"s_lshr_b32 {s(S_T1)}, s2, 3")
    st.e(f"s_bfe_u32 {s(S_RB)}, s2, 0x20001")
    st.e(f"s_lshl_b32 {s(S_RB)}, {s(S_RB)}, 2")
    st.e(f"s_lshr_b32 {s(S_T2)}, {s(S_T1)}, 3")
    st.e(f"s_add_u32 {s(S_RB)}, {s(S_RB)}, {s(S_T2)}")
    st.e(f"s_and_b32 {s(S_T0)}, s2, 1")
    st.e(f"s_lshl_b32 {s(S_CS)}, {s(S_T0)}, 3")
    st.e(f"s_and_b32 {s(S_T2)}, {s(S_T1)}, 7")
    st.e(f"s_add_u32 {s(S_CS)}, {s(S_CS)}, {s(S_T2)}")
    st.e(f"s_and_b32 {s(S_HH)}, {s(S_CS)}, 1")
    st.e(f"s_lshr_b32 {s(S_NS)}, {s(S_CS)}, 1")
    st.e(f"s_cmp_ge_u32 {s(S_W)}, 4")
    st.e("s_cbranch_scc1 L_S")


def gen_G(st):
    sr = Regs("s", S_FREE, 102)
    vr = Regs("v", 4, 256)
    R_X = sr.alloc("R_X", 4, 4)
    R_W1 = sr.alloc("R_W1", 4, 4)
    sOX, sOW, sMX, sMW = [sr.alloc(n) for n in ("sOX", "sOW", "sMX", "sMW")]
    sr2 = Regs("s", P_LRE, P_DSK)
    sW2 = sr2.alloc("sW2")
    sMP = sr2.alloc("sMP")
    sH = sr2.alloc("sH", 4)
    sWg = sr2.alloc("sWg")
    sFS = sr2.alloc("sFS")
    vDX = vr.alloc("vDX", 4)
    vDW = vr.alloc("vDW", 4)
    vX = vr.alloc("vX", 4)
    vW = vr.alloc("vW")
    vL16b = vr.alloc("vL16b")
    vL16c = vr.alloc("vL16c")
    vPF = vr.alloc("vPF")
    vPD = vr.alloc("vPD", 2)
    vHS = vr.alloc("vHS")
    vFM = vr.alloc("vFM")
    vLW = vr.alloc("vLW")
    vG = vDW
    vT = vr.alloc("vT", 4)
    assert vr.next <= 32, vr.next
    BIG = 32
    acc1 = [BIG + 16 * b for b in range(3)]
    fX = [BIG + 48 + 16 * p for p in range(2)]
    fW = [[BIG + 48 + 16 * p + 4 + 4 * b for b in range(3)] for p in range(2)]
    cv = BIG + 80
    bias = BIG + 104
    st.e(f"v_lshrrev_b32 {v(vT)}, 3, {v(V_LANE)}")
    st.e(f"v_and_b32 {v(vT + 1)}, 3, {v(vT)}")
    st.e(f"v_lshrrev_b32 {v(vT)}, 2, {v(vT)}")
    st.e(f"v_lshl_add_u32 {v(vT)}, {v(vT)}, 4, {v(vT + 1)}")
    st.e(f"v_mul_u32_u24 {v(vT)}, 1280, {v(vT)}")
    st.e(f"v_lshrrev_b32 {v(vT + 1)}, 4, {v(V_LANE)}")
    st.e(f"v_and_b32 {v(vT + 2)}, 7, {v(V_LANE)}")
    st.e(f"v_xor_b32 {v(vT + 1)}, {v(vT + 1)}, {v(vT + 2)}")
    st.e(f"v_lshl_add_u32 {v(vDX)}, {v(vT + 1)}, 4, {v(vT)}")
    st.e(f"v_xor_b32 {v(vDX + 1)}, 64, {v(vDX)}")
    st.e(f"v_add_u32 {v(vDX + 1)}, {4096}, {v(vDX + 1)}")
    st.e(f"v_add_u32 {v(vDX + 2)}, {8192}, {v(vDX)}")
    st.e(f"v_add_u32 {v(vDX + 3)}, {8192}, {v(vDX + 1)}")
    st.e(f"s_lshl_b32 {s(S_T0)}, {s(S_RB)}, 2")
    st.e(f"s_add_u32 {s(S_T0)}, {s(S_T0)}, {s(S_W)}")
    st.e(f"s_mul_i32 {s(sOX)}, {s(S_T0)}, {32 * 1280}")
    st.e(f"s_lshl_b32 {s(sMX)}, {s(S_W)}, 12")
    for i in range(3):
        if i:
            st.e(f"v_add_u32 {v(vT)}, {64 * i}, {v(V_LANE)}")
        q = V_LANE if i == 0 else vT
        st.e(f"v_mul_u32_u24 {v(vT + 1)}, 43691, {v(q)}")
        st.e(f"v_lshrrev_b32 {v(vT + 1)}, 19, {v(vT + 1)}")
        st.e(f"v_mul_u32_u24 {v(vT + 1)}, {3072 - 192}, {v(vT + 1)}")
        st.e(f"v_add_u32 {v(vDW + i)}, {v(vT + 1)}, {v(V_L16)}")
    st.e(f"s_mul_i32 {s(sOW)}, {s(S_CS)}, 192")
    st.e(f"s_mul_i32 {s(S_T0)}, {s(S_W)}, {16 * 3072}")
    st.e(f"s_add_u32 {s(sOW)}, {s(sOW)}, {s(S_T0)}")
    st.e(f"s_mul_i32 {s(sMW)}, {s(S_W)}, 3072")
    st.e(f"s_add_u32 {s(sMW)}, {s(sMW)}, {O_W1}")
    st.e("s_waitcnt lgkmcnt(0)")
    stamp = Stamper(st, sr, "G", 14)
    stamp("start")
    srd(st, R_W1, P_W1, 640 * 3072)
    srd(st, R_X, P_X, 2048 * 1280)
    ids = {}
    xpol = " nt" if OPT["xnt"] else ""

    def dma_w(c):
        out = [("e", f"s_add_u32 m0, {s(sMW)}, {(c % 3) * WSZ}"), ("e", "s_nop 0")]
        for i in range(3):
            out.append(("vm", f"buffer_load_dwordx4 {v(vDW + i)}, {s(R_W1, 4)}, {s(sOW)} offen offset:{1024 * i} lds",
                        (ids, ("w", c))))
        out.append(("e", f"s_add_u32 {s(sOW)}, {s(sOW)}, {64 * 3072}"))
        return out

    def dma_x(c):
        out = [("e", f"s_add_u32 m0, {s(sMX)}, {(c % 4) * XS}"), ("e", "s_nop 0")]
        for i in range(4):
            out.append(("vm", f"buffer_load_dwordx4 {v(vDX + i)}, {s(R_X, 4)}, {s(sOX)} offen offset:{1024 * i}{xpol} lds",
                        (ids, ("x", c))))
        out.append(("e", f"s_add_u32 {s(sOX)}, {s(sOX)}, 128"))
        return out

    puts(st, dma_w(0) + dma_x(0))
    xread_addrs(st, vX, vT)
    st.e(f"v_bfe_u32 {v(vT)}, {v(V_LANE)}, 2, 2")
    st.e(f"v_lshrrev_b32 {v(vT + 1)}, 5, {v(V_LANE)}")
    st.e(f"v_lshl_add_u32 {v(vT)}, {v(vT + 1)}, 3, {v(vT)}")
    st.e(f"v_mul_u32_u24 {v(vT)}, 192, {v(vT)}")
    st.e(f"v_and_b32 {v(vT + 1)}, 3, {v(V_LANE)}")
    st.e(f"v_lshl_add_u32 {v(vT)}, {v(vT + 1)}, 3, {v(vT)}")
    st.e(f"v_bfe_u32 {v(vT + 1)}, {v(V_LANE)}, 4, 1")
    st.e(f"v_lshl_add_u32 {v(vT)}, {v(vT + 1)}, 5, {v(vT)}")
    st.e(f"v_add_u32 {v(vW)}, {O_W1}, {v(vT)}")
    puts(st, dma_w(1) + dma_x(1) + dma_w(2) + dma_x(2) + dma_x(3))
    srd(st, R_WS, P_WS, 0x10000000)
    st.vm(f"buffer_load_dword {v(V_EP)}, off, {s(R_WS, 4)}, 0 sc1")
    st.e(f"v_and_b32 {v(vT)}, 31, {v(V_LANE)}")
    st.e(f"s_mul_i32 {s(S_T0)}, {s(S_CS)}, 192")
    st.e(f"v_lshl_add_u32 {v(vT)}, {v(vT)}, 1, {s(S_T0)}")
    for b in range(3):
        idb = st.vm(f"global_load_ushort {v(bias + 4 * b)}, {v(vT)}, {s(P_B1, 2)} offset:{64 * b}")
    st.e(f"v_add_u32 {v(vL16b)}, 3072, {v(V_L16)}")
    st.e(f"v_add_u32 {v(vL16c)}, 4096, {v(V_L16)}")
    pack_flag_addr(st, vPF, vT)
    st.e(f"v_bfe_u32 {v(vT)}, {v(V_LANE)}, 2, 1")
    st.e(f"v_mul_u32_u24 {v(vT)}, {RTS}, {v(vT)}")
    st.e(f"v_lshrrev_b32 {v(vT + 1)}, 5, {v(V_LANE)}")
    st.e(f"v_lshl_add_u32 {v(vT)}, {v(vT + 1)}, 8, {v(vT)}")
    st.e(f"v_bfe_u32 {v(vT + 1)}, {v(V_LANE)}, 3, 2")
    st.e(f"v_lshl_add_u32 {v(vT)}, {v(vT + 1)}, 6, {v(vT)}")
    st.e(f"v_and_b32 {v(vT + 1)}, 3, {v(V_LANE)}")
    st.e(f"v_lshl_add_u32 {v(vHS)}, {v(vT + 1)}, 4, {v(vT)}")
    st.e(f"s_lshl_b32 {s(S_T0)}, {s(S_RB)}, 4")
    st.e(f"s_lshl_b32 {s(S_T1)}, {s(S_W)}, 2")
    st.e(f"s_add_u32 {s(S_T0)}, {s(S_T0)}, {s(S_T1)}")
    st.e(f"s_lshl_b32 {s(S_T0)}, {s(S_T0)}, 7")
    st.e(f"s_lshl_b32 {s(S_T1)}, {s(S_HH)}, 3")
    st.e(f"s_add_u32 {s(S_T0)}, {s(S_T0)}, {s(S_T1)}")
    st.e(f"s_add_u32 {s(S_T0)}, {s(S_T0)}, {WS_FM:#x}")
    st.e(f"v_bfe_u32 {v(vT)}, {v(V_LANE)}, 1, 2")
    st.e(f"v_and_b32 {v(vT + 1)}, 1, {v(V_LANE)}")
    st.e(f"v_lshlrev_b32 {v(vT + 1)}, 2, {v(vT + 1)}")
    st.e(f"v_lshl_add_u32 {v(vT)}, {v(vT)}, 7, {v(vT + 1)}")
    st.e(f"v_add_u32 {v(vFM)}, {s(S_T0)}, {v(vT)}")
    st.e(f"s_mul_i32 {s(sWg)}, {s(S_NS)}, {NSS}")
    st.e(f"s_mul_i32 {s(S_T0)}, {s(S_W)}, {12 * 5120}")
    st.e(f"s_add_u32 {s(sWg)}, {s(sWg)}, {s(S_T0)}")
    st.e(f"s_add_u32 {s(sWg)}, {s(sWg)}, {WS_W2P:#x}")
    st.e(f"s_add_u32 {s(sW2)}, {s(sWg)}, 3072")
    st.e(f"s_mul_i32 {s(sMP)}, {s(S_W)}, 24576")
    st.e(f"v_add_u32 {v(vLW)}, {s(sMP)}, {v(V_L16)}")
    st.e(f"s_mov_b32 {s(sFS)}, {WS_FS - WS_FM:#x}")
    st.e(f"s_lshl_b32 {s(S_T1)}, {s(S_RB)}, 1")
    st.e(f"s_add_u32 {s(S_T1)}, {s(S_T1)}, {s(S_HH)}")
    st.e(f"s_mul_i32 {s(S_T1)}, {s(S_T1)}, {4 * RTS}")
    st.e(f"s_mul_i32 {s(S_T2)}, {s(S_W)}, {12 * 1024}")
    st.e(f"s_add_u32 {s(S_T1)}, {s(S_T1)}, {s(S_T2)}")
    st.e(f"s_add_u32 {s(sH)}, {s(S_T1)}, {WS_H:#x}")
    for mt in range(1, 4):
        st.e(f"s_add_u32 {s(sH + mt)}, {s(sH + mt - 1)}, {RTS}")
    for b in range(3):
        for k in range(1, 4):
            st.e(f"v_mov_b32 {v(bias + 4 * b + k)}, 0")
    st.e(f"v_mov_b32 {v(bias + 12)}, 0x3f80")
    for k in range(1, 4):
        st.e(f"v_mov_b32 {v(bias + 12 + k)}, 0")

    def reads(c, sidx):
        p = sidx & 1
        out = [("lg", f"ds_read_b128 {v(fX[p], 4)}, {v(vX + sidx)} offset:{(c % 4) * XS}")]
        for b in range(3):
            for e2 in range(2):
                off = (c % 3) * WSZ + sidx * 3072 + e2 * 768 + b * 64
                out.append(("lg", f"ds_read_b64_tr_b16 {v(fW[p][b] + 2 * e2, 2)}, {v(vW)} offset:{off}"))
        return out

    def mfmas(c, sidx):
        p = sidx & 1
        first = (c == 0 and sidx == 0)
        return [("e", f"v_mfma_f32_32x32x16_bf16 {v(acc1[b], 16)}, {v(fW[p][b], 4)}, {v(fX[p], 4)}, "
                      + ("0" if first else v(acc1[b], 16))) for b in range(3)]

    st.wait(vm=max(ids["x", 0], ids["w", 0]))
    st.e("s_barrier")
    stamp("B0")
    puts(st, reads(0, 0))
    pfl = f"buffer_load_dword {v(vPD)}, {v(vPF)}, {s(R_WS, 4)}, 0 offen sc1"
    for c in range(10):
        for sidx in range(4):
            if sidx < 3:
                st.wait(lg="all")
                sides = reads(c, sidx + 1)
                if c == 3 and sidx == 0:
                    assert ids["w", 3] > idb
                    sides = sides + [("e", f"v_cmp_gt_u32 vcc, 32, {v(V_LANE)}")] + nonce_items()
                    sides += [("e", f"v_cndmask_b32 {v(bias + 4 * b)}, 0, {v(bias + 4 * b)}, vcc") for b in range(3)]
                mains = mfmas(c, sidx)
                if c == 3 and sidx == 1:
                    mains += [("e", f"v_mfma_f32_32x32x16_bf16 {v(acc1[b], 16)}, {v(bias + 4 * b, 4)}, "
                                    f"{v(bias + 12, 4)}, {v(acc1[b], 16)}") for b in range(3)]
                interleave(st, mains, sides)
            else:
                if c < 9:
                    st.wait(vm=max(ids["x", c + 1], ids["w", c + 1]), lg="all")
                else:
                    st.wait(lg="all")
                st.e("s_barrier")
                if c in (2, 5, 8):
                    stamp(f"B{c + 1}")
                sides = reads(c + 1, 0) if c < 9 else [("vm", pfl, (ids, "pf"))]
                if c + 3 <= 9:
                    sides = sides + dma_w(c + 3)
                if c + 4 <= 9:
                    sides = sides + dma_x(c + 4)
                interleave(st, mfmas(c, sidx), sides)
    stamp("loopend")
    if OPT["prioG"]:
        st.e(f"s_setprio {OPT['prioG']}")
    st.e(f"s_lshl_b32 {s(S_T0)}, {s(S_RB)}, 2")
    st.e(f"s_add_u32 {s(S_T0)}, {s(S_T0)}, {s(S_W)}")
    st.e(f"s_mul_i32 {s(S_T0)}, {s(S_T0)}, {2 * RTS}")
    st.e(f"s_mul_i32 {s(S_T1)}, {s(S_CS)}, {12 * 256}")
    st.e(f"s_add_u32 {s(S_T0)}, {s(S_T0)}, {s(S_T1)}")
    st.e(f"s_add_u32 {s(S_T0)}, {s(S_T0)}, {WS_H:#x}")
    st.nop(6)
    for b in range(3):
        for e2 in range(2):
            a0 = acc1[b] + 8 * e2
            for j in range(8):
                st.e(f"v_max_f32 {v(a0 + j)}, 0, {v(a0 + j)}")
            for j in range(0, 8, 2):
                st.e(f"v_pk_mul_f32 {v(a0 + j, 2)}, {v(a0 + j, 2)}, {v(a0 + j, 2)}")
            for j in range(4):
                st.e(f"v_cvt_pk_bf16_f32 {v(cv + 8 * b + 4 * e2 + j)}, {v(a0 + 2 * j)}, {v(a0 + 2 * j + 1)}")
            hst = st.vm(f"buffer_store_dwordx4 {v(cv + 8 * b + 4 * e2, 4)}, {v(vHS)}, {s(R_WS, 4)}, {s(S_T0)} "
                        f"offen offset:{b * 1024 + e2 * 512} sc1")
    stamp("Hstored")
    acc2 = BIG
    Hb = [BIG + 80 + 16 * d for d in range(D)]
    Wb = [BIG + 80 + 16 * D + 20 * d for d in range(D)]
    assert Wb[-1] + 20 <= 256
    NST = 22
    state = dict(w=0, h=0)
    last = {}

    def w_loads(i):
        out = []
        assert state["w"] == i
        if i == 12:
            out.append(("e", f"s_mul_i32 {s(S_T2)}, {s(S_W)}, {2 * 5120}"))
            out.append(("e", f"s_sub_u32 {s(sWg)}, {s(sWg)}, {s(S_T2)}"))
            out.append(("e", f"s_add_u32 {s(sWg)}, {s(sWg)}, {36 * 5120}"))
        for nt in (range(3) if i < 12 else range(5)):
            va, off = (V_L16, nt * 1024) if nt < 4 else (vL16c, 0)
            out.append(("vm", f"buffer_load_dwordx4 {v(Wb[i % D] + 4 * nt, 4)}, {v(va)}, {s(R_WS, 4)}, {s(sWg)} "
                              f"offen offset:{off} sc1", (last, ("w", i))))
        out.append(("e", f"s_add_u32 {s(sWg)}, {s(sWg)}, 5120"))
        state["w"] += 1
        return out

    def h_loads(i):
        out = []
        assert state["h"] == i
        j = i if i < 12 else i - 12
        if i == 12:
            out.append(("e", f"s_mul_i32 {s(S_T2)}, {s(S_W)}, {2 * 1024}"))
            out.append(("e", f"s_sub_u32 {s(S_T2)}, {36 * 1024 + 4096}, {s(S_T2)}"))
            for mt in range(4):
                out.append(("e", f"s_add_u32 {s(sH + mt)}, {s(sH + mt)}, {s(S_T2)}"))
        elif j % 4 == 0 and j > 0:
            for mt in range(4):
                out.append(("e", f"s_add_u32 {s(sH + mt)}, {s(sH + mt)}, 4096"))
        for mt in range(4):
            out.append(("vm", f"buffer_load_dwordx4 {v(Hb[i % D] + 4 * mt, 4)}, {v(V_L16)}, {s(R_WS, 4)}, {s(sH + mt)} "
                              f"offen offset:{(j % 4) * 1024} sc1", (last, ("h", i))))
        state["h"] += 1
        return out

    def tile_dma(g):
        return [("e", f"s_add_u32 m0, {s(sMP)}, {g * 4096}"),
                ("e", "s_nop 0"),
                ("vm", f"buffer_load_dwordx4 {v(V_L16)}, {s(R_WS, 4)}, {s(sW2)} offen sc1 lds"),
                ("vm", f"buffer_load_dwordx4 {v(V_L16)}, {s(R_WS, 4)}, {s(sW2)} offen offset:1024 sc1 lds"),
                ("vm", f"buffer_load_dwordx4 {v(vL16b)}, {s(R_WS, 4)}, {s(sW2)} offen offset:2048 sc1 lds"),
                ("vm", f"buffer_load_dwordx4 {v(vL16b)}, {s(R_WS, 4)}, {s(sW2)} offen offset:3072 sc1 lds", (last, ("t", g))),
                ("e", f"s_add_u32 {s(sW2)}, {s(sW2)}, {2 * 5120}")]

    def lds_w(i):
        return [("lg", f"ds_read_b128 {v(Wb[i % D] + 12 + 4 * k, 4)}, {v(vLW)} offset:{i * 2048 + k * 1024}")
                for k in range(2)]

    st.wait(vm=ids["pf"])
    flag_check(st, vPD, pfl)
    if OPT["prioG"]:
        st.e("s_setprio 0")
    pre = []
    for g in range(6):
        if 2 * g < D:
            pre += w_loads(2 * g)
        pre += tile_dma(g)
        if 2 * g + 1 < D:
            pre += w_loads(2 * g + 1)
    k, nvm = 0, 0
    while k < len(pre) and (nvm < OPT["npre"] or pre[k][0] != "e" or not pre[k][1].startswith("s_add_u32 m0")):
        put(st, pre[k])
        nvm += pre[k][0] == "vm"
        k += 1
    rest = pre[k:]
    st.e(f"s_lshl_b32 {s(S_T0)}, {s(S_RB)}, 4")
    st.e(f"s_add_u32 {s(S_T0)}, {s(S_T0)}, {s(S_CS)}")
    st.e(f"s_lshl_b32 {s(S_T0)}, {s(S_T0)}, 5")
    st.e(f"s_add_u32 {s(S_T0)}, {s(S_T0)}, {s(S_W)}")
    st.e(f"s_lshl_b32 {s(S_T0)}, {s(S_T0)}, 2")
    st.e(f"s_add_u32 {s(S_T0)}, {s(S_T0)}, {WS_FM:#x}")
    st.e(f"v_mov_b32 {v(vT)}, {s(S_NONCE)}")
    if OPT["prioG"]:
        st.e(f"s_setprio {OPT['prioG']}")
    st.wait(vm=hst)
    st.vm(one_lane_store(vT, s(S_T0)))
    stamp("FMset")

    def poll(reg, fs):
        return f"buffer_load_dword {v(vPD + reg)}, {v(vFM)}, {s(R_WS, 4)}, {s(sFS) if fs else 0} offen sc1"

    pid = st.vm(poll(0, False))
    if OPT["prioG"]:
        st.e("s_setprio 0")
    puts(st, rest)
    st.wait(vm=pid)
    flag_check(st, vPD, poll(0, False), mask=0x3)
    stamp("FMok")
    for i in range(D - 1):
        puts(st, h_loads(i))
    st.wait(vm=last["t", 0])
    puts(st, lds_w(0))
    need = {3: (False, 1), 6: (False, 2), 9: (False, 3), 12: (True, 0), 14: (True, 1), 17: (True, 2), 19: (True, 3)}
    pollreg = {}
    vER = vDX
    epi = {}
    preg = 1
    for i in range(NST):
        p = i % D
        sides = []
        nxt = i + D - 1
        if nxt + 2 in need:
            fs, kk = need[nxt + 2]
            pollreg[nxt + 2] = preg
            sides.append(("vm", poll(preg, fs), (last, ("p", nxt + 2))))
            preg ^= 1
        w_ids = [last["h", i], last["w", i]]
        if i + 1 < 12:
            w_ids.append(last["t", (i + 1) >> 1])
        if nxt in need and ("p", nxt) in last:
            w_ids.append(last["p", nxt])
        st.wait(vm=max(w_ids), lg="all")
        if nxt in need:
            fs, kk = need[nxt]
            r = pollreg.get(nxt, 0)
            flag_check(st, vPD + r, poll(r, fs), mask=0x3 << (2 * kk))
            if nxt == 12:
                stamp("FSok")
        if i == 10:
            st.e(f"v_mov_b32 {v(vW)}, {SY}")
            lds_flag_wait(st, vW, 32, vT)
            st.e(f"v_and_b32 {v(vT)}, 15, {v(V_LANE)}")
            st.e(f"s_lshl_b32 {s(S_T0)}, {s(S_HH)}, 8")
            st.e(f"s_add_u32 {s(S_T0)}, {s(S_T0)}, {GB}")
            st.e(f"v_lshl_add_u32 {v(vT)}, {v(vT)}, 2, {s(S_T0)}")
            for mt in range(4):
                sides.append(("lg", f"ds_read_b32 {v(vG + mt)}, {v(vT)} offset:{64 * mt}"))
        if i == 11:
            for mt in range(4):
                sides.append(("e", f"v_sub_f32 {v(vG + mt)}, 1.0, {v(vG + mt)}"))
        if i == 12:
            stamp("mlpend")
            st.nop(4)
            for mt in range(4):
                for nt in range(5):
                    a0 = acc2 + 20 * mt + 4 * nt
                    for k in range(4):
                        st.e(f"v_mul_f32 {v(a0 + k)}, {v(vG + mt)}, {v(a0 + k)}")
            st.nop(2)
        if i == NST - 2:
            st.e("s_barrier")
        if nxt < NST:
            if nxt >= D:
                sides += w_loads(nxt)
            sides += h_loads(nxt)
        if i + 1 < 12:
            sides += lds_w(i + 1)
        if i == NST - D + 1:
            fr = Hb[(i - 1) % D]
            epi["x"], epi["dsk"], epi["b2"] = fr, fr + 12, fr + 14
            sides.append(("e", f"v_mul_u32_u24 {v(vER)}, 205, {v(V_LANE)}"))
            sides.append(("e", f"v_lshrrev_b32 {v(vER)}, 12, {v(vER)}"))
            sides.append(("e", f"v_mul_u32_u24 {v(vER + 1)}, 20, {v(vER)}"))
            sides.append(("e", f"v_sub_u32 {v(vER + 1)}, {v(V_LANE)}, {v(vER + 1)}"))
            sides.append(("e", f"s_mul_i32 {s(S_T0)}, {s(S_NS)}, 160"))
            sides.append(("e", f"v_lshl_add_u32 {v(vER + 2)}, {v(vER + 1)}, 3, {s(S_T0)}"))
            sides.append(("vm", f"global_load_dwordx2 {v(epi['dsk'], 2)}, {v(vER + 2)}, {s(P_DSK, 2)}"))
            sides.append(("vm", f"global_load_dwordx2 {v(epi['b2'], 2)}, {v(vER + 2)}, {s(P_B2, 2)}"))
            sides.append(("e", f"s_lshl_b32 {s(S_T1)}, {s(S_RB)}, 1"))
            sides.append(("e", f"s_add_u32 {s(S_T1)}, {s(S_T1)}, {s(S_HH)}"))
            sides.append(("e", f"s_lshl_b32 {s(S_T1)}, {s(S_T1)}, 2"))
            sides.append(("e", f"s_add_u32 {s(S_T1)}, {s(S_T1)}, {s(S_W)}"))
            sides.append(("e", f"s_mul_i32 {s(sOW)}, {s(S_T1)}, {16 * 1280}"))
            sides.append(("e", f"v_mul_u32_u24 {v(vER + 3)}, 1280, {v(vER)}"))
            sides.append(("e", f"v_add_u32 {v(vER + 3)}, {v(vER + 3)}, {v(vER + 2)}"))
            for k in range(6):
                sides.append(("vm", f"buffer_load_dwordx2 {v(epi['x'] + 2 * k, 2)}, {v(vER + 3)}, {s(R_X, 4)}, {s(sOW)} offen",
                              (epi, "id")))
                if k < 5:
                    sides.append(("e", f"s_add_u32 {s(sOW)}, {s(sOW)}, {3 * 1280}"))
        mains = []
        for mt in range(4):
            for nt in range(5):
                a0 = acc2 + 20 * mt + 4 * nt
                cin = "0" if i == 0 else v(a0, 4)
                mains.append(("e", f"v_mfma_f32_16x16x32_bf16 {v(a0, 4)}, {v(Wb[p] + 4 * nt, 4)}, {v(Hb[p] + 4 * mt, 4)}, {cin}"))
        interleave(st, mains, sides)
        if i == NST - 2:
            fe = Wb[(i - 1) % D]
            fe2 = Hb[(i - 1) % D]
            E = [fe + 4 * k for k in range(5)] + [fe2]
            un = fe2 + 4
            st.e(f"s_lshl_b32 {s(S_T0)}, {s(S_HH)}, 2")
            st.e(f"s_add_u32 {s(S_T0)}, {s(S_T0)}, {s(S_W)}")
            st.e(f"s_lshl_b32 {s(S_T0)}, {s(S_T0)}, 6")
            st.e(f"s_add_u32 {s(S_T0)}, {s(S_T0)}, {GB}")
            st.e(f"v_lshl_add_u32 {v(vT)}, {v(vER)}, 2, {s(S_T0)}")
            gks = [vX, vX + 1, vX + 2, vX + 3, vG, vG + 1]
            for k in range(6):
                st.lg(f"ds_read_b32 {v(gks[k])}, {v(vT)} offset:{12 * k}")
            st.e(f"v_mov_b32 {v(vT + 1)}, 0xffff0000")
            st.wait(vm=epi["id"], lg="all")
            for q, src in ((0, epi["dsk"]), (4, epi["b2"])):
                st.e(f"v_lshlrev_b32 {v(un + q)}, 16, {v(src)}")
                st.e(f"v_and_b32 {v(un + q + 1)}, {v(vT + 1)}, {v(src)}")
                st.e(f"v_lshlrev_b32 {v(un + q + 2)}, 16, {v(src + 1)}")
                st.e(f"v_and_b32 {v(un + q + 3)}, {v(vT + 1)}, {v(src + 1)}")
            for k in range(6):
                xs = epi["x"] + 2 * k
                st.e(f"v_lshlrev_b32 {v(E[k])}, 16, {v(xs)}")
                st.e(f"v_and_b32 {v(E[k] + 1)}, {v(vT + 1)}, {v(xs)}")
                st.e(f"v_lshlrev_b32 {v(E[k] + 2)}, 16, {v(xs + 1)}")
                st.e(f"v_and_b32 {v(E[k] + 3)}, {v(vT + 1)}, {v(xs + 1)}")
                for q in range(4):
                    st.e(f"v_fma_f32 {v(E[k] + q)}, {v(E[k] + q)}, {v(un + q)}, -{v(un + 4 + q)}")
                for q in range(4):
                    st.e(f"v_fma_f32 {v(E[k] + q)}, {v(E[k] + q)}, {v(gks[k])}, {v(un + 4 + q)}")
            epi["E"] = E
            st.e(f"v_and_b32 {v(vT)}, 15, {v(V_LANE)}")
            st.e(f"v_mul_u32_u24 {v(vT)}, 336, {v(vT)}")
            st.e(f"v_lshrrev_b32 {v(vT + 1)}, 4, {v(V_LANE)}")
            st.e(f"v_lshl_add_u32 {v(vT)}, {v(vT + 1)}, 4, {v(vT)}")
            st.e(f"s_mul_i32 {s(S_T0)}, {s(S_W)}, {PARTW}")
            st.e(f"v_add_u32 {v(vT)}, {s(S_T0)}, {v(vT)}")
            st.e(f"s_mul_i32 {s(S_T0)}, {s(S_W)}, {16 * 336}")
            st.e(f"v_mul_u32_u24 {v(vT + 1)}, 336, {v(vER)}")
            st.e(f"v_lshl_add_u32 {v(vT + 1)}, {v(vER + 1)}, 4, {v(vT + 1)}")
            st.e(f"v_add_u32 {v(vT + 1)}, {s(S_T0)}, {v(vT + 1)}")
            st.e(f"v_add_u32 {v(vT + 2)}, {2 * PARTW}, {v(vT + 1)}")
            srd(st, R_W1, P_OUT, 2048 * 2560)
            st.e(f"v_mul_u32_u24 {v(vER + 3)}, 2560, {v(vER)}")
            st.e(f"v_lshl_add_u32 {v(vER + 3)}, {v(vER + 2)}, 1, {v(vER + 3)}")
            st.e(f"v_cmp_gt_u32 vcc, 60, {v(V_LANE)}")
            st.e(f"v_mov_b32 {v(vER + 2)}, 0x80000000")
            st.e(f"s_mul_i32 {s(sOW)}, {s(S_T1)}, {16 * 2560}")
            st.e(f"v_cndmask_b32 {v(vER + 3)}, {v(vER + 2)}, {v(vER + 3)}, vcc")
            st.e(f"v_cmp_gt_u32 vcc, 20, {v(V_LANE)}")
            st.e("s_nop 1")
            st.e(f"v_cndmask_b32 {v(vER + 2)}, {v(vER + 2)}, {v(vER + 3)}, vcc")
    stamp("kend")
    R_O = R_W1
    for mt in range(4):
        for nt in range(5):
            if mt == 3 and nt == 0:
                st.wait(lg=st.lg_issued - 4)
            st.lg(f"ds_write_b128 {v(vT)}, {v(acc2 + 20 * mt + 4 * nt, 4)} offset:{mt * 16 * 336 + nt * 64}")
    st.wait(lg="all")
    st.e("s_barrier")
    stamp("red")
    E = epi["E"]
    busy = set()
    for r in E:
        busy.update(range(r, r + 4))
    free = [r for r in range(BIG, 256, 4) if not (set(range(r, r + 4)) & busy)]
    rd = {(k, pw): free[4 * k + pw] for k in range(6) for pw in range(4)}
    lgid = {}

    def issue_reads(k):
        for pw in range(4):
            ra = vT + 1 + (pw >> 1)
            lgid[k] = st.lg(f"ds_read_b128 {v(rd[k, pw], 4)}, {v(ra)} offset:{(pw & 1) * PARTW + k * 3 * 336}")

    opol = {0: "", 1: " sc1", 2: " nt", 3: " sc0 sc1", 4: " sc1 nt"}[OPT["outpol"]]
    for k in range(3):
        issue_reads(k)
    for k in range(6):
        st.wait(lg=lgid[k])
        if k + 3 < 6:
            issue_reads(k + 3)
        for q in (0, 2):
            st.e(f"v_pk_add_f32 {v(rd[k, 0] + q, 2)}, {v(rd[k, 0] + q, 2)}, {v(rd[k, 1] + q, 2)}")
            st.e(f"v_pk_add_f32 {v(rd[k, 2] + q, 2)}, {v(rd[k, 2] + q, 2)}, {v(rd[k, 3] + q, 2)}")
        for q in (0, 2):
            st.e(f"v_pk_add_f32 {v(E[k] + q, 2)}, {v(E[k] + q, 2)}, {v(rd[k, 0] + q, 2)}")
        for q in (0, 2):
            st.e(f"v_pk_add_f32 {v(E[k] + q, 2)}, {v(E[k] + q, 2)}, {v(rd[k, 2] + q, 2)}")
        st.vm(f"buffer_store_dwordx4 {v(E[k], 4)}, {v(vER + 3 if k < 5 else vER + 2)}, {s(R_O, 4)}, {s(sOW)} offen{opol}")
        if k < 5:
            st.e(f"s_add_u32 {s(sOW)}, {s(sOW)}, {3 * 2560}")
    skip = newlabel("noep")
    st.e(f"s_lshl_b32 {s(S_T0)}, {s(S_CS)}, 2")
    st.e(f"s_add_u32 {s(S_T0)}, {s(S_T0)}, {s(S_W)}")
    st.e(f"s_lshl_b32 {s(S_T0)}, {s(S_T0)}, 4")
    st.e(f"s_add_u32 {s(S_T0)}, {s(S_T0)}, {s(S_RB)}")
    st.e(f"s_cmp_lg_u32 {s(S_T0)}, 15")
    st.e(f"s_cbranch_scc1 {skip}")
    st.e(f"v_mov_b32 {v(vT)}, {s(S_NONCE)}")
    st.e(one_lane_store(vT, "0"))
    st.label(skip)
    stamp("end")
    stamp.flush(vT)
    if OPT["pad"]:
        st.label("L_pad")
        st.e(f"s_memrealtime {s(S_T0, 2)}")
        st.e("s_waitcnt lgkmcnt(0)")
        st.e(f"s_sub_u32 {s(S_T0)}, {s(S_T0)}, {s(stamp.rt0)}")
        st.e(f"s_cmp_lt_u32 {s(S_T0)}, {OPT['pad'] * 100}")
        st.e("s_cbranch_scc1 L_pad")
    st.e("s_endpgm")
    return stamp.names


def gen_S(st):
    sr = Regs("s", S_FREE, 102)
    vr = Regs("v", 4, 256)
    st.label("L_S")
    R_A = sr.alloc("R_A", 4, 4)
    R_B = sr.alloc("R_B", 4, 4)
    sE5 = sr.alloc("sE5", 2)
    sOA, sOB, sMA, sMB, sTy = [sr.alloc(n) for n in ("sOA", "sOB", "sMA", "sMB", "sTy")]
    sP = sr.alloc("sP", 4)
    sQ = sr.alloc("sQ", 4)
    R_P, R_Q = 20, 4
    sMask = [P_X, P_DSK, P_BX, P_B1, P_B2, P_OUT, P_DBG]
    vDA = vr.alloc("vDA", 3)
    vX = vr.alloc("vX", 4)
    vB = vr.alloc("vB", 4)
    vB2 = vr.alloc("vB2", 4)
    vPK = vr.alloc("vPK")
    vPR = vr.alloc("vPR")
    vSig = vr.alloc("vSig")
    vSgn = vr.alloc("vSgn")
    vDum = vr.alloc("vDum")
    vA = vr.alloc("vA", 6)
    vC = vr.alloc("vC", 4)
    vT = vr.alloc("vT", 4, 4)
    acc = [vr.alloc(f"acc{b}", 16, 4) for b in range(3)]
    frag = vr.alloc("frag", 32, 4)
    fX = [frag + 16 * p for p in range(2)]
    fB = [[frag + 16 * p + 4 + 4 * b for b in range(3)] for p in range(2)]
    names = ["lr", "li", "l16r", "l16i", "psr", "psi", "qr", "qi", "r8r", "r8i", "A", "Bc"]
    K = {n: [vr.alloc(f"{n}{b}") for b in range(3)] for n in names}
    tn = ["Lr", "Li", "dt", "la", "rv", "m", "an", "cs", "liu"]
    Tm = {n: [vr.alloc(f"t{n}{b}") for b in range(3)] for n in tn}
    big = vr.alloc("big", 48, 4)

    st.e(f"s_sub_u32 {s(S_W)}, {s(S_W)}, 4")
    ncp = 0
    if OPT["cpf"]:
        skip = newlabel("nocp")
        st.e(f"s_cmp_lg_u32 {s(S_W)}, 3")
        st.e(f"s_cbranch_scc1 {skip}")
        st.e(f"s_getpc_b64 {s(S_T2, 2)}")
        st.label("L_pc")
        st.e(f"s_sub_u32 {s(S_T2)}, {s(S_T2)}, L_pc-{NAME}_kernel")
        st.e(f"s_subb_u32 {s(S_T3)}, {s(S_T3)}, 0")
        st.e(f"v_and_b32 {v(vT)}, 7, {v(V_LANE)}")
        st.e(f"v_lshl_add_u32 {v(vT)}, {v(vT)}, 5, {s(S_T1)}")
        st.e(f"v_min_u32 {v(vT)}, (L_end-{NAME}_kernel)/128, {v(vT)}")
        st.e(f"v_lshlrev_b32 {v(vT)}, 7, {v(vT)}")
        st.e("s_mov_b64 exec, 0xff")
        st.e(f"global_load_dword {v(vDum)}, {v(vT)}, {s(S_T2, 2)}")
        st.e("s_mov_b64 exec, -1")
        st.label(skip)
    st.e(f"v_lshrrev_b32 {v(vT)}, 3, {v(V_LANE)}")
    st.e(f"v_mul_u32_u24 {v(vT)}, 1280, {v(vT)}")
    st.e(f"v_and_b32 {v(vT + 1)}, 7, {v(V_LANE)}")
    st.e(f"v_lshl_add_u32 {v(vPK)}, {v(vT + 1)}, 4, {v(vT)}")
    st.e(f"s_lshr_b32 {s(S_T0)}, {s(S_W)}, 1")
    st.e(f"s_and_b32 {s(S_T1)}, {s(S_W)}, 1")
    st.e(f"s_xor_b32 {s(S_T2)}, {s(S_T0)}, {s(S_T1)}")
    st.e(f"s_lshl_b32 {s(S_T2)}, {s(S_T2)}, 2")
    st.e(f"v_lshrrev_b32 {v(vT + 1)}, 4, {v(V_LANE)}")
    st.e(f"v_xor_b32 {v(vT + 1)}, {s(S_T2)}, {v(vT + 1)}")
    st.e(f"v_lshlrev_b32 {v(vT + 1)}, 4, {v(vT + 1)}")
    st.e(f"v_xor_b32 {v(vDA)}, {v(vT + 1)}, {v(vPK)}")
    st.e(f"v_xor_b32 {v(vDA + 1)}, 64, {v(vDA)}")
    st.e(f"v_add_u32 {v(vDA + 1)}, {10240 - 1024}, {v(vDA + 1)}")
    st.e(f"v_add_u32 {v(vDA + 2)}, {2 * 10240}, {v(vDA)}")
    st.e(f"s_mul_i32 {s(sOA)}, {s(S_CS)}, {40 * 1280}")
    st.e(f"s_mul_i32 {s(S_T2)}, {s(S_T1)}, {24 * 1280}")
    st.e(f"s_add_u32 {s(sOA)}, {s(sOA)}, {s(S_T2)}")
    st.e(f"s_mul_i32 {s(sMA)}, {s(S_T0)}, 5120")
    st.e(f"s_mul_i32 {s(S_T2)}, {s(S_T1)}, 3072")
    st.e(f"s_add_u32 {s(sMA)}, {s(sMA)}, {s(S_T2)}")
    st.e(f"s_add_u32 {s(sMA)}, {s(sMA)}, {O_B}")
    st.e(f"s_add_u32 {s(sMB)}, {s(sMA)}, 2048")
    st.e(f"s_cmp_eq_u32 {s(S_T1)}, 0")
    st.e(f"s_cselect_b64 vcc, -1, 0")
    st.e(f"s_cselect_b32 {s(sOB)}, {s(sOA)}, 0")
    st.e(f"s_cselect_b32 {s(sMB)}, {s(sMB)}, {O_B + 10240}")
    st.e(f"s_cselect_b64 {s(sE5, 2)}, -1, 0xff")
    st.e(f"v_cndmask_b32 {v(vDA + 2)}, {v(V_L16)}, {v(vDA + 2)}, vcc")
    st.e("s_waitcnt lgkmcnt(0)")
    stamp = Stamper(st, sr, "S", 11)
    stamp("start")
    st.e(f"s_cmp_eq_u32 {s(S_T0)}, 0")
    st.e(f"s_cselect_b32 {s(R_A)}, {s(P_BRE)}, {s(P_BIM)}")
    st.e(f"s_cselect_b32 {s(R_A + 1)}, {s(P_BRE + 1)}, {s(P_BIM + 1)}")
    st.e(f"s_mov_b32 {s(R_A + 2)}, {640 * 1280:#x}")
    st.e(f"s_mov_b32 {s(R_A + 3)}, 0x20000")
    st.e(f"s_cmp_eq_u32 {s(S_T1)}, 0")
    st.e(f"s_cselect_b32 {s(R_B)}, {s(R_A)}, {s(P_GATE)}")
    st.e(f"s_cselect_b32 {s(R_B + 1)}, {s(R_A + 1)}, {s(P_GATE + 1)}")
    st.e(f"s_cselect_b32 {s(R_B + 2)}, {s(R_A + 2)}, 1280")
    st.e(f"s_mov_b32 {s(R_B + 3)}, 0x20000")
    ids = {}

    def dma_b(c):
        so = (c % 4) * BS
        return [("e", f"s_add_u32 m0, {s(sMA)}, {so}"),
                ("e", "s_nop 0"),
                ("vm", f"buffer_load_dwordx4 {v(vDA)}, {s(R_A, 4)}, {s(sOA)} offen lds"),
                ("vm", f"buffer_load_dwordx4 {v(vDA + 1)}, {s(R_A, 4)}, {s(sOA)} offen offset:1024 lds"),
                ("e", f"s_add_u32 m0, {s(sMB)}, {so}"),
                ("e", f"s_add_u32 {s(sOA)}, {s(sOA)}, 128"),
                ("vm", f"s_mov_b64 exec, {s(sE5, 2)}\n"
                       f"    buffer_load_dwordx4 {v(vDA + 2)}, {s(R_B, 4)}, {s(sOB)} offen lds\n"
                       f"    s_mov_b64 exec, -1", (ids, ("b", c))),
                ("e", f"s_add_u32 {s(sOB)}, {s(sOB)}, 128")]

    puts(st, dma_b(0))
    xread_addrs(st, vX, vT)
    st.e(f"v_and_b32 {v(vT)}, 1, {v(V_LANE)}")
    st.e(f"v_bfe_u32 {v(vT + 1)}, {v(V_LANE)}, 1, 4")
    st.e(f"v_mad_u32_u24 {v(vT + 1)}, {v(vT)}, 40, {v(vT + 1)}")
    st.e(f"v_bfe_u32 {v(vT + 2)}, {v(vT + 1)}, 1, 3")
    st.e(f"v_lshrrev_b32 {v(vT + 3)}, 5, {v(V_LANE)}")
    st.e(f"v_xor_b32 {v(vT + 2)}, {v(vT + 2)}, {v(vT + 3)}")
    st.e(f"v_lshlrev_b32 {v(vT + 2)}, 4, {v(vT + 2)}")
    st.e(f"v_lshl_add_u32 {v(vT + 1)}, {v(vT + 1)}, 7, {v(vT + 2)}")
    st.e(f"v_add_u32 {v(vB)}, {O_B}, {v(vT + 1)}")
    st.e(f"v_add_u32 {v(vB2)}, 4096, {v(vB)}")
    st.e(f"v_lshlrev_b32 {v(vT + 1)}, 4, {v(vT + 3)}")
    st.e(f"v_add_u32 {v(vT + 1)}, {O_B + 10240}, {v(vT + 1)}")
    st.e(f"v_and_b32 {v(vT + 2)}, 16, {v(V_LANE)}")
    st.e(f"v_cmp_eq_u32 vcc, 0, {v(vT + 2)}")
    st.e(f"s_lshl_b32 {s(S_T0)}, {s(S_W)}, 1")
    st.e(f"v_add_u32 {v(vSig)}, {s(S_T0)}, {v(vT + 3)}")
    st.e(f"v_cndmask_b32 {v(vB2)}, {v(vT + 1)}, {v(vB2)}, vcc")
    for base in (vB, vB2):
        for k in range(1, 4):
            st.e(f"v_xor_b32 {v(base + k)}, {32 * k}, {v(base)}")
    st.e(f"v_cvt_f32_u32 {v(vT)}, {v(vT)}")
    st.e(f"v_fma_f32 {v(vSgn)}, {v(vT)}, 2.0, -1.0")
    puts(st, dma_b(1) + dma_b(2) + dma_b(3))
    if OPT["pf"]:
        l1, l2, le = newlabel("pf"), newlabel("pf"), newlabel("pfe")
        st.e(f"v_mul_u32_u24 {v(vT)}, 43, {v(V_LANE)}")
        st.e(f"v_lshrrev_b32 {v(vT)}, 8, {v(vT)}")
        st.e(f"v_mul_u32_u24 {v(vT + 1)}, {1280 - 6 * 128}, {v(vT)}")
        st.e(f"v_lshl_add_u32 {v(vT + 1)}, {v(V_LANE)}, 7, {v(vT + 1)}")
        st.e(f"s_cmp_eq_u32 {s(S_W)}, 1")
        st.e(f"s_cbranch_scc1 {l1}")
        st.e(f"s_cmp_ge_u32 {s(S_W)}, 2")
        st.e(f"s_cbranch_scc1 {l2}")
        st.e(f"s_lshl_b32 {s(S_T0)}, {s(S_RB)}, 4")
        st.e(f"s_add_u32 {s(S_T0)}, {s(S_T0)}, {s(S_CS)}")
        st.e(f"s_mul_i32 {s(S_T0)}, {s(S_T0)}, {8 * 1280}")
        st.e(f"s_add_u32 {s(S_T0)}, {s(S_T0)}, 512")
        st.e(f"v_add_u32 {v(vT + 1)}, {s(S_T0)}, {v(vT + 1)}")
        st.e(f"s_mov_b64 {s(S_T2, 2)}, {s(P_X, 2)}")
        st.e("s_mov_b32 exec_hi, 0xffff")
        st.e(f"s_branch {le}")
        st.label(l1)
        st.e(f"s_and_b32 {s(S_T0)}, {s(S_RB)}, 7")
        st.e(f"s_mul_i32 {s(S_T0)}, {s(S_T0)}, 5")
        st.e(f"s_mul_i32 {s(S_T1)}, {s(S_CS)}, 40")
        st.e(f"s_add_u32 {s(S_T0)}, {s(S_T0)}, {s(S_T1)}")
        st.e(f"s_mul_i32 {s(S_T0)}, {s(S_T0)}, 1280")
        st.e(f"s_add_u32 {s(S_T0)}, {s(S_T0)}, 512")
        st.e(f"v_add_u32 {v(vT + 1)}, {s(S_T0)}, {v(vT + 1)}")
        st.e(f"s_cmp_lt_u32 {s(S_RB)}, 8")
        st.e(f"s_cselect_b64 {s(S_T2, 2)}, {s(P_BRE, 2)}, {s(P_BIM, 2)}")
        st.e("s_mov_b64 exec, 0x3fffffff")
        st.e(f"s_branch {le}")
        st.label(l2)
        st.e(f"s_lshl_b32 {s(S_T0)}, s2, 1")
        st.e(f"s_add_u32 {s(S_T0)}, {s(S_T0)}, {s(S_W)}")
        st.e(f"s_mul_i32 {s(S_T0)}, {s(S_T0)}, {21 * 128}")
        st.e(f"s_add_u32 {s(S_T0)}, {s(S_T0)}, {192 * 3072 - 2 * 21 * 128}")
        st.e(f"v_lshl_add_u32 {v(vT + 1)}, {v(V_LANE)}, 7, {s(S_T0)}")
        st.e(f"s_mov_b64 {s(S_T2, 2)}, {s(P_W1, 2)}")
        st.e("s_mov_b64 exec, 0x1fffff")
        st.label(le)
        st.vm(f"global_load_dword {v(vDum)}, {v(vT + 1)}, {s(S_T2, 2)}")
        st.e("s_mov_b64 exec, -1")
    srd(st, R_WS, P_WS, 0x10000000)
    st.vm(f"buffer_load_dword {v(V_EP)}, off, {s(R_WS, 4)}, 0 sc1")
    st.e(f"v_bfe_u32 {v(vT)}, {v(V_LANE)}, 1, 4")
    st.e(f"s_mul_i32 {s(S_T0)}, {s(S_CS)}, 40")
    st.e(f"v_add_u32 {v(vT)}, {s(S_T0)}, {v(vT)}")
    st.e(f"v_add_u32 {v(vT + 1)}, 32, {v(vT)}")
    st.e(f"v_min_u32 {v(vT + 1)}, 639, {v(vT + 1)}")
    st.e(f"v_lshlrev_b32 {v(vT)}, 1, {v(vT)}")
    st.e(f"v_lshlrev_b32 {v(vT + 1)}, 1, {v(vT + 1)}")
    for n, ptr in (("Lr", P_LRE), ("Li", P_LIM), ("dt", P_LDT)):
        st.vm(f"global_load_ushort {v(Tm[n][0])}, {v(vT)}, {s(ptr, 2)}")
        st.vm(f"global_load_ushort {v(Tm[n][1])}, {v(vT)}, {s(ptr, 2)} offset:32")
        par_id = st.vm(f"global_load_ushort {v(Tm[n][2])}, {v(vT + 1)}, {s(ptr, 2)}")
    st.e(f"v_mov_b32 {v(vT + 1)}, {SY}")
    st.e(f"v_lshl_add_u32 {v(vT + 1)}, {v(V_LANE)}, 2, {v(vT + 1)}")
    st.e(f"v_mov_b32 {v(vT + 2)}, 0")
    st.e("s_mov_b64 exec, 0xffff")
    st.lg(f"ds_write_b32 {v(vT + 1)}, {v(vT + 2)}")
    st.e("s_mov_b64 exec, -1")
    lC, lJ = newlabel("packC"), newlabel("packJ")
    st.e(f"s_lshl_b32 {s(S_T0)}, s2, 2")
    st.e(f"s_add_u32 {s(S_T0)}, {s(S_T0)}, {s(S_W)}")
    st.e(f"s_sub_u32 {s(S_T1)}, {s(S_T0)}, 880")
    st.e(f"s_cselect_b32 {s(S_T0)}, {s(S_T0)}, {s(S_T1)}")
    st.e(f"s_sub_u32 {s(S_T1)}, {s(S_T0)}, 480")
    st.e(f"s_cselect_b32 {s(sTy)}, 0, 1")
    st.e(f"s_cselect_b32 {s(S_T1)}, {s(S_T0)}, {s(S_T1)}")
    st.e(f"s_mul_i32 {s(S_T2)}, {s(S_T1)}, 6554")
    st.e(f"s_lshr_b32 {s(S_T2)}, {s(S_T2)}, 16")
    st.e(f"s_mul_i32 {s(S_T3)}, {s(S_T2)}, 10")
    st.e(f"s_sub_u32 {s(S_T3)}, {s(S_T1)}, {s(S_T3)}")
    st.e(f"s_lshl_b32 {s(S_T0)}, {s(S_W)}, 12")
    st.e(f"s_add_u32 {s(S_T0)}, {s(S_T0)}, {PS}")
    st.e(f"v_lshrrev_b32 {v(vT + 1)}, 5, {v(V_LANE)}")
    st.e(f"s_cmp_eq_u32 {s(sTy)}, 1")
    st.e(f"s_cbranch_scc1 {lC}")
    st.e(f"v_bfe_u32 {v(vT)}, {v(V_LANE)}, 2, 3")
    st.e(f"v_lshl_add_u32 {v(vT)}, {v(vT + 1)}, 4, {v(vT)}")
    st.e(f"v_and_b32 {v(vT + 1)}, 3, {v(V_LANE)}")
    st.e(f"v_lshlrev_b32 {v(vT + 1)}, 3, {v(vT + 1)}")
    st.e(f"v_lshl_add_u32 {v(vT)}, {v(vT)}, 7, {v(vT + 1)}")
    st.e(f"v_add_u32 {v(vPR)}, {s(S_T0)}, {v(vT)}")
    srd(st, R_P, P_W2, 1536 * 1280)
    srd(st, R_Q, P_W2, 1536 * 1280)
    st.e(f"s_mul_i32 {s(sQ)}, {s(S_T2)}, {32 * 1280}")
    st.e(f"s_lshl_b32 {s(S_T0)}, {s(S_T3)}, 7")
    st.e(f"s_add_u32 {s(sQ)}, {s(sQ)}, {s(S_T0)}")
    st.e(f"s_add_u32 {s(sQ + 1)}, {s(sQ)}, {10240 - 1024}")
    st.e(f"s_add_u32 {s(sQ + 2)}, {s(sQ)}, {2 * 10240}")
    st.e(f"s_add_u32 {s(sQ + 3)}, {s(sQ)}, {3 * 10240 - 1024}")
    st.e(f"s_mul_i32 {s(S_T2)}, {s(S_T2)}, 5120")
    st.e(f"s_add_u32 {s(S_T2)}, {s(S_T2)}, {WS_W2P:#x}")
    st.e(f"s_lshl_b32 {s(S_T3)}, {s(S_T3)}, 2")
    for k in range(4):
        st.e(f"s_add_u32 {s(S_T0)}, {s(S_T3)}, {k}")
        st.e(f"s_mul_i32 {s(S_T1)}, {s(S_T0)}, 205")
        st.e(f"s_lshr_b32 {s(S_T1)}, {s(S_T1)}, 10")
        st.e(f"s_mul_i32 {s(S_T1)}, {s(S_T1)}, {NSS - 5 * 1024}")
        st.e(f"s_lshl_b32 {s(S_T0)}, {s(S_T0)}, 10")
        st.e(f"s_add_u32 {s(S_T0)}, {s(S_T0)}, {s(S_T1)}")
        st.e(f"s_add_u32 {s(sP + k)}, {s(S_T0)}, {s(S_T2)}")
    st.e(f"s_branch {lJ}")
    st.label(lC)
    st.e(f"v_and_b32 {v(vT)}, 31, {v(V_LANE)}")
    st.e(f"v_lshlrev_b32 {v(vT + 1)}, 4, {v(vT + 1)}")
    st.e(f"v_lshl_add_u32 {v(vT)}, {v(vT)}, 7, {v(vT + 1)}")
    st.e(f"v_add_u32 {v(vPR)}, {s(S_T0)}, {v(vT)}")
    srd(st, R_P, P_CRE, 640 * 1280)
    srd(st, R_Q, P_CIM, 640 * 1280)
    st.e(f"s_mul_i32 {s(sQ)}, {s(S_T2)}, {16 * 1280}")
    st.e(f"s_lshl_b32 {s(S_T0)}, {s(S_T3)}, 7")
    st.e(f"s_add_u32 {s(sQ)}, {s(sQ)}, {s(S_T0)}")
    st.e(f"s_add_u32 {s(sQ + 1)}, {s(sQ)}, {10240 - 1024}")
    st.e(f"s_mov_b32 {s(sQ + 2)}, {s(sQ)}")
    st.e(f"s_mov_b32 {s(sQ + 3)}, {s(sQ + 1)}")
    st.e(f"s_mul_i32 {s(S_T1)}, {s(S_T2)}, 205")
    st.e(f"s_lshr_b32 {s(S_T1)}, {s(S_T1)}, 10")
    st.e(f"s_mul_i32 {s(S_T1)}, {s(S_T1)}, {NSS - 5 * 1024}")
    st.e(f"s_lshl_b32 {s(S_T2)}, {s(S_T2)}, 10")
    st.e(f"s_add_u32 {s(S_T1)}, {s(S_T1)}, {s(S_T2)}")
    st.e(f"s_mul_i32 {s(S_T3)}, {s(S_T3)}, {4 * 5120}")
    st.e(f"s_add_u32 {s(S_T1)}, {s(S_T1)}, {s(S_T3)}")
    st.e(f"s_add_u32 {s(sP)}, {s(S_T1)}, {WS_W2P + 48 * 5120:#x}")
    for k in range(1, 4):
        st.e(f"s_add_u32 {s(sP + k)}, {s(sP + k - 1)}, 5120")
    st.label(lJ)

    def pack_loads():
        return [("e", f"s_lshl_b32 {s(S_T0)}, {s(S_W)}, 12"),
                ("e", f"s_add_u32 m0, {s(S_T0)}, {PS}"),
                ("e", "s_nop 0"),
                ("vm", f"buffer_load_dwordx4 {v(vPK)}, {s(R_P, 4)}, {s(sQ)} offen nt lds"),
                ("vm", f"buffer_load_dwordx4 {v(vPK)}, {s(R_P, 4)}, {s(sQ + 1)} offen offset:1024 nt lds"),
                ("e", f"s_add_u32 m0, {s(S_T0)}, {PS + 2048}"),
                ("e", "s_nop 0"),
                ("vm", f"buffer_load_dwordx4 {v(vPK)}, {s(R_Q, 4)}, {s(sQ + 2)} offen nt lds"),
                ("vm", f"buffer_load_dwordx4 {v(vPK)}, {s(R_Q, 4)}, {s(sQ + 3)} offen offset:1024 nt lds", (ids, "pl"))]

    def pack_reads(o):
        a, b = newlabel("prC"), newlabel("prJ")
        o.e(f"s_cmp_eq_u32 {s(sTy)}, 1")
        o.e(f"s_cbranch_scc1 {a}")
        for k in range(4):
            for e2 in range(2):
                o.e(f"ds_read_b64_tr_b16 {v(big + 4 * k + 2 * e2, 2)}, {v(vPR)} offset:{e2 * 1024 + k * 32}")
        o.e(f"s_branch {b}")
        o.label(a)
        for k in range(4):
            o.e(f"ds_read_b128 {v(big + 4 * k, 4)}, {v(vPR)} offset:{k * 32}")
        o.label(b)

    def pack_stores():
        return [("vm", f"buffer_store_dwordx4 {v(big + 4 * k, 4)}, {v(V_L16)}, {s(R_WS, 4)}, {s(sP + k)} offen sc1",
                 (ids, "ps")) for k in range(4)]

    fill = []

    def f3(fmt):
        for b in range(3):
            m = {k: v(val[b]) for k, val in {**K, **Tm}.items()}
            fill.append(("e", fmt.format(**m)))

    sg, sig = v(vSgn), v(vSig)
    fill += nonce_items()
    f3("v_lshlrev_b32 {dt}, 16, {dt}")
    f3("v_lshlrev_b32 {Lr}, 16, {Lr}")
    f3("v_lshlrev_b32 {Li}, 16, {Li}")
    f3("v_mul_f32 {dt}, " + LOG2E + ", {dt}")
    f3("v_exp_f32 {dt}, {dt}")
    f3("v_cvt_pk_bf16_f32 {dt}, {dt}, {dt}")
    f3("v_lshlrev_b32 {dt}, 16, {dt}")
    f3("v_mul_f32 {la}, {dt}, {Lr}")
    f3("v_mul_f32 {rv}, {dt}, {Li}")
    f3("v_mul_f32 {la}, " + LOG2E + ", {la}")
    f3("v_mul_f32 {rv}, 0.15915494, {rv}")

    def powr(nop, r, i, keep=False):
        if nop is None:
            f3("v_exp_f32 {m}, {la}")
            f3("v_fract_f32 {an}, {rv}")
        else:
            f3("v_mul_f32 {m}, " + nop + ", {la}")
            f3("v_mul_f32 {an}, " + nop + ", {rv}")
            f3("v_exp_f32 {m}, {m}")
            f3("v_fract_f32 {an}, {an}")
        f3("v_cos_f32 {cs}, {an}")
        f3("v_sin_f32 {an}, {an}")
        f3("v_mul_f32 {" + r + "}, {m}, {cs}")
        if keep:
            f3("v_mul_f32 {liu}, {m}, {an}")
            f3("v_mul_f32 {" + i + "}, " + sg + ", {liu}")
        else:
            f3("v_mul_f32 {m}, " + sg + ", {m}")
            f3("v_mul_f32 {" + i + "}, {m}, {an}")

    powr(None, "lr", "li", keep=True)
    f3("v_add_f32 {cs}, -1.0, {lr}")
    f3("v_mul_f32 {m}, {Lr}, {Lr}")
    f3("v_fmac_f32 {m}, {Li}, {Li}")
    f3("v_rcp_f32 {m}, {m}")
    f3("v_mul_f32 {A}, {cs}, {Lr}")
    f3("v_fmac_f32 {A}, {liu}, {Li}")
    f3("v_mul_f32 {Bc}, {liu}, {Lr}")
    f3("v_fma_f32 {Bc}, -{cs}, {Li}, {Bc}")
    f3("v_mul_f32 {m}, -2.0, {m}")
    f3("v_mul_f32 {A}, {m}, {A}")
    f3("v_mul_f32 {Bc}, {m}, {Bc}")
    f3("v_mul_f32 {A}, " + sg + ", {A}")
    powr("0x41800000", "l16r", "l16i")
    fill.append(("e", f"v_cvt_f32_u32 {v(vT + 2)}, {sig}"))
    fill.append(("e", f"v_mul_f32 {v(vT + 2)}, 0x41800000, {v(vT + 2)}"))
    fill.append(("e", f"v_mul_f32 {v(vT + 3)}, 0x41000000, {v(vT + 2)}"))
    powr(v(vT + 2), "psr", "psi")
    powr(v(vT + 3), "qr", "qi")
    powr("0x44800000", "r8r", "r8i")
    for j in range(1, 8):
        fill.append(("e", f"v_cmp_eq_u32 {s(sMask[j - 1], 2)}, {j}, {sig}"))
    vEXr, vEXw, vSYa, vSYw, vM1, vTo = [vA + k for k in range(6)]
    fill += [("e", t) for t in (
        f"v_and_b32 {v(vT + 2)}, 31, {v(V_LANE)}",
        f"v_lshlrev_b32 {v(vT + 2)}, 5, {v(vT + 2)}",
        f"v_add_u32 {v(vEXr)}, {EX1}, {v(vT + 2)}",
        f"v_lshl_add_u32 {v(vEXw)}, {v(vSig)}, 2, {v(vEXr)}",
        f"v_mov_b32 {v(vSYa)}, {SY}",
        f"v_lshl_add_u32 {v(vSYw)}, {s(S_W)}, 2, {v(vSYa)}",
        f"v_mov_b32 {v(vM1)}, -1",
        f"s_cmp_eq_u32 {s(S_W)}, 0\n    s_cselect_b32 {s(sQ)}, 0, 0x80000000",
        f"v_lshl_add_u32 {v(vTo)}, {v(V_LANE)}, 3, {s(sQ)}",
        f"s_lshl_b32 {s(sQ + 1)}, {s(S_RB)}, 4",
        f"s_add_u32 {s(sQ + 1)}, {s(sQ + 1)}, {s(S_CS)}",
        f"s_mul_i32 {s(sQ + 1)}, {s(sQ + 1)}, 768",
        f"s_add_u32 {s(sQ + 1)}, {s(sQ + 1)}, {WS_T:#x}")]
    F0 = 4 * 4
    per = -(-len(fill) // (39 - F0))

    def reads(c, sidx):
        p = sidx & 1
        out = [("lg", f"ds_read_b128 {v(fX[p], 4)}, {v(vX + sidx)} offset:{(c % 4) * XS}")]
        for b in range(3):
            base = vB if b < 2 else vB2
            off = (c % 4) * BS + (2048 * b if b < 2 else 0)
            out.append(("lg", f"ds_read_b128 {v(fB[p][b], 4)}, {v(base + sidx)} offset:{off}"))
        return out

    def mfmas(c, sidx):
        p = sidx & 1
        first = (c == 0 and sidx == 0)
        return [("e", f"v_mfma_f32_32x32x16_bf16 {v(acc[b], 16)}, {v(fX[p], 4)}, {v(fB[p][b], 4)}, "
                      + ("0" if first else v(acc[b], 16))) for b in range(3)]

    st.wait(vm=ids["b", 0], lg="all")
    st.e("s_barrier")
    stamp("B0", (0,))
    puts(st, reads(0, 0))
    PA = OPT["packat"]
    assert PA + 3 <= 6
    for c in range(10):
        for sidx in range(4):
            fl = []
            if 4 * c + sidx >= F0:
                assert ids["b", 4] > par_id
                fl, fill = fill[:per], fill[per:]
            if sidx < 3:
                st.wait(lg="all")
                sides = reads(c, sidx + 1)
                if c == PA + 3 and sidx == 0:
                    sides = sides + pack_stores() + (dma_b(c + 3) if c + 3 <= 9 else [])
                interleave(st, mfmas(c, sidx), sides + fl)
            else:
                if c < 9:
                    wid = ids["b", c + 1]
                    if c + 1 == PA + 6:
                        wid = max(wid, ids["ps"])
                    st.wait(vm=wid, lg="all")
                else:
                    st.wait(lg="all")
                st.e("s_barrier")
                sides = reads(c + 1, 0) if c < 9 else []
                if c + 1 == PA:
                    sides = sides + pack_loads()
                if c + 1 == PA + 3:
                    assert ids["b", c + 1] > ids["pl"]
                    sides = sides + [("fn", pack_reads)]
                elif c + 4 <= 9:
                    sides = sides + dma_b(c + 4)
                if c + 1 == PA + 6:
                    sides = sides + [
                        ("e", f"s_lshl_b32 {s(S_T0)}, s2, 5"),
                        ("e", f"s_add_u32 {s(S_T0)}, {s(S_T0)}, {s(S_W)}"),
                        ("e", f"s_lshl_b32 {s(S_T0)}, {s(S_T0)}, 2"),
                        ("e", f"s_add_u32 {s(S_T0)}, {s(S_T0)}, {WS_FP:#x}"),
                        ("e", f"v_mov_b32 {v(vT)}, {s(S_NONCE)}"),
                        ("vm", one_lane_store(vT, s(S_T0)))]
                interleave(st, mfmas(c, sidx), sides + fl)
    assert not fill
    stamp("loopend")
    if OPT["prioS"]:
        st.e(f"s_setprio {OPT['prioS']}")
    hA = [frag + b for b in range(3)]
    hB = [frag + 3 + b for b in range(3)]
    Pv = [frag + 6 + b for b in range(3)]
    Tv = [frag + 10 + 2 * b for b in range(3)]
    st.nop(6)
    for b in range(3):
        st.e(f"v_mov_b32 {v(Pv[b])}, 0")
        st.e(f"v_mov_b32 {v(Tv[b] + 1)}, {s(S_NONCE)}")
    cur = [acc[b] for b in range(3)]
    for j in range(1, 16):
        dst = hA if j & 1 else hB
        for b in range(3):
            st.e(f"v_fma_f32 {v(dst[b])}, {v(K['lr'][b])}, {v(cur[b])}, {v(acc[b] + j)}")
        for b in range(3):
            st.e(f"v_fmac_f32_dpp {v(dst[b])}, {v(cur[b])}, {v(K['li'][b])} {DPP}")
        cur = dst
    stamp("pass1", (1,))
    for b in range(3):
        st.lg(f"ds_write_b32 {v(vEXw)}, {v(cur[b])} offset:{1024 * b}")
    st.lg(f"ds_write_b32 {v(vSYw)}, {v(vM1)}")
    Ev = [big + 8 * b for b in range(3)]

    def ex_reads(base):
        return [f"ds_read_b128 {v(Ev[b] + 4 * q, 4)}, {v(vEXr)} offset:{base + 1024 * b + 16 * q}"
                for b in range(3) for q in range(2)]

    lds_flag_wait(st, vSYa, 0, vT, ex_reads(0))
    stamp("sync1", (1,))
    cur = [Ev[b] for b in range(3)]
    for j in range(1, 8):
        dst = Tv if j == 7 else (hA if j & 1 else hB)
        for b in range(3):
            st.e(f"v_fma_f32 {v(dst[b])}, {v(K['l16r'][b])}, {v(cur[b])}, {v(Ev[b] + j)}")
        for b in range(3):
            st.e(f"v_fmac_f32_dpp {v(dst[b])}, {v(cur[b])}, {v(K['l16i'][b])} {DPP}")
        if j < 7:
            for b in range(3):
                st.e(f"v_cndmask_b32 {v(Pv[b])}, {v(Pv[b])}, {v(cur[b])}, {s(sMask[j - 1], 2)}")
        prev, cur = cur, dst
    st.e("s_mov_b32 exec_hi, 0")
    for b in range(3):
        st.vm(f"buffer_store_dwordx2 {v(Tv[b], 2)}, {v(vTo)}, {s(R_WS, 4)}, {s(sQ + 1)} offen offset:{256 * b} sc1")
    st.e("s_mov_b32 exec_hi, -1")
    for b in range(3):
        st.e(f"v_cndmask_b32 {v(Pv[b])}, {v(Pv[b])}, {v(prev[b])}, {s(sMask[6], 2)}")
    stamp("Tpub")
    gv = big + 24
    st.e(f"v_lshlrev_b32 {v(vT)}, 6, {v(vSig)}")
    st.e(f"v_add_u32 {v(vX)}, {GS}, {v(vT)}")
    st.e("s_mov_b32 exec_lo, 0x10000")
    st.e("s_mov_b32 exec_hi, 0x10000")
    for q in range(4):
        st.lg(f"ds_write_b128 {v(vX)}, {v(acc[2] + 4 * q, 4)} offset:{16 * q}")
    st.e("s_mov_b64 exec, -1")
    st.e(f"v_and_b32 {v(vT)}, 31, {v(V_LANE)}")
    st.e(f"s_lshl_b32 {s(S_T0)}, {s(S_W)}, 7")
    st.e(f"s_add_u32 {s(S_T0)}, {s(S_T0)}, {GS}")
    st.e(f"v_lshl_add_u32 {v(vX + 1)}, {v(vT)}, 2, {s(S_T0)}")
    st.lg(f"ds_read_b32 {v(vX + 2)}, {v(vX + 1)}")
    mk = [P_BRE, P_BIM, P_CRE, P_CIM]
    st.e(f"s_sub_u32 {s(S_T0)}, {s(S_RB)}, 1")
    st.e(f"v_sub_u32 {v(vT)}, {s(S_T0)}, {v(vSig)}")
    st.e(f"v_and_b32 {v(vT + 1)}, 31, {v(V_LANE)}")
    st.e(f"s_mul_i32 {s(S_T1)}, {s(S_CS)}, 768")
    st.e(f"s_add_u32 {s(S_T1)}, {s(S_T1)}, {WS_T:#x}")
    st.e(f"v_lshl_add_u32 {v(vT + 1)}, {v(vT + 1)}, 3, {s(S_T1)}")
    st.e(f"v_mov_b32 {v(vT + 3)}, 0x80000000")
    st.e(f"s_mov_b32 {s(S_T2)}, 0xffff0000")
    st.e(f"s_mov_b32 {s(S_T3)}, 0xffff0000")
    for dl in range(2):
        if dl:
            st.e(f"v_subrev_u32 {v(vT)}, 8, {v(vT)}")
        st.e(f"v_cmp_gt_i32 {s(mk[2 * dl], 2)}, 0, {v(vT)}")
        st.e(f"v_mul_i32_i24 {v(vT + 2)}, {16 * 768}, {v(vT)}")
        st.e(f"v_add_u32 {v(vT + 2)}, {v(vT + 2)}, {v(vT + 1)}")
        st.e(f"s_or_b64 {s(mk[2 * dl + 1], 2)}, {s(mk[2 * dl], 2)}, {s(S_T2, 2)}")
        st.e(f"v_cndmask_b32 {v(vC + 2 * dl)}, {v(vT + 2)}, {v(vT + 3)}, {s(mk[2 * dl], 2)}")
        st.e(f"v_cndmask_b32 {v(vC + 2 * dl + 1)}, {v(vT + 2)}, {v(vT + 3)}, {s(mk[2 * dl + 1], 2)}")
    st.wait(lg="all")
    st.e(f"v_mul_f32 {v(vX + 2)}, {NLOG2E}, {v(vX + 2)}")
    st.e(f"v_exp_f32 {v(vX + 2)}, {v(vX + 2)}")
    st.e("s_nop 0")
    st.e(f"v_add_f32 {v(vX + 2)}, 1.0, {v(vX + 2)}")
    st.e(f"v_rcp_f32 {v(vX + 2)}, {v(vX + 2)}")
    st.e("s_nop 0")
    st.lg(f"ds_write_b32 {v(vX + 1)}, {v(vX + 2)} offset:512")
    st.lg(f"ds_write_b32 {v(vSYw)}, {v(vM1)} offset:32")
    for q in range(4):
        st.lg(f"ds_read_b128 {v(gv + 4 * q, 4)}, {v(vX)} offset:{512 + 16 * q}")
    Cv = [[big + 4 * b + 2 * dl for dl in range(2)] for b in range(3)]
    tt = [frag + 16 + k for k in range(6)]
    for j in range(16):
        for b in range(3):
            st.e(f"v_mul_f32_dpp {v(tt[3 * (j & 1) + b])}, {v(acc[b] + j)}, {v(K['Bc'][b])} {DPP}")
        for b in range(3):
            st.e(f"v_fma_f32 {v(acc[b] + j)}, {v(K['A'][b])}, {v(acc[b] + j)}, {v(tt[3 * (j & 1) + b])}")
    st.e(f"s_mul_i32 {s(S_T0)}, {s(S_W)}, 7680")
    st.e(f"s_add_u32 {s(S_T0)}, {s(S_T0)}, {TS}")
    st.e(f"v_and_b32 {v(vT)}, 31, {v(V_LANE)}")
    st.e(f"v_mul_u32_u24 {v(vT)}, 80, {v(vT)}")
    st.e(f"v_and_b32 {v(vT + 1)}, 32, {v(V_LANE)}")
    st.e(f"v_add3_u32 {v(vB2)}, {v(vT)}, {v(vT + 1)}, {s(S_T0)}")
    st.e(f"v_bfe_u32 {v(vT)}, {v(V_LANE)}, 2, 2")
    st.e(f"v_bfe_u32 {v(vT + 2)}, {v(V_LANE)}, 4, 1")
    st.e(f"v_lshl_add_u32 {v(vT)}, {v(vT)}, 1, {v(vT + 2)}")
    st.e(f"v_mul_u32_u24 {v(vT)}, 80, {v(vT)}")
    st.e(f"v_and_b32 {v(vT + 3)}, 3, {v(V_LANE)}")
    st.e(f"v_lshl_add_u32 {v(vT)}, {v(vT + 3)}, 3, {v(vT)}")
    st.e(f"v_add3_u32 {v(vB2 + 1)}, {v(vT)}, {v(vT + 1)}, {s(S_T0)}")
    st.e(f"v_lshrrev_b32 {v(vT)}, 5, {v(V_LANE)}")
    st.e(f"v_mul_u32_u24 {v(vT)}, {RTS - 512}, {v(vT)}")
    st.e(f"v_add_u32 {v(vB2 + 2)}, {v(vT)}, {v(V_L16)}")
    st.e(f"s_lshl_b32 {s(sP)}, {s(S_RB)}, 2")
    st.e(f"s_add_u32 {s(sP)}, {s(sP)}, {s(S_W)}")
    st.e(f"s_mul_i32 {s(sP)}, {s(sP)}, {2 * RTS}")
    st.e(f"s_mul_i32 {s(S_T1)}, {s(S_CS)}, 2560")
    st.e(f"s_add_u32 {s(sP)}, {s(sP)}, {s(S_T1)}")
    st.e(f"s_add_u32 {s(sP)}, {s(sP)}, {WS_H + 192 * 256:#x}")
    st.e(f"s_lshl_b32 {s(sP + 1)}, {s(S_RB)}, 4")
    st.e(f"s_add_u32 {s(sP + 1)}, {s(sP + 1)}, {s(S_CS)}")
    st.e(f"s_lshl_b32 {s(sP + 1)}, {s(sP + 1)}, 5")
    st.e(f"s_add_u32 {s(sP + 1)}, {s(sP + 1)}, {s(S_W)}")
    st.e(f"s_lshl_b32 {s(sP + 1)}, {s(sP + 1)}, 2")
    st.e(f"s_add_u32 {s(sP + 1)}, {s(sP + 1)}, {WS_FS:#x}")
    st.e(f"v_mov_b32 {v(vB2 + 3)}, {s(S_NONCE)}")
    stamp("win")
    top, done = newlabel("cp"), newlabel("cok")
    st.e(f"s_mov_b32 {s(S_SPIN)}, {OPT['spin']}")
    st.label(top)
    for dl in range(2):
        for b in range(3):
            ra = vC + 2 * dl + (1 if b == 2 else 0)
            st.e(f"buffer_load_dwordx2 {v(Cv[b][dl], 2)}, {v(ra)}, {s(R_WS, 4)}, 0 offen offset:{256 * b} sc1")
    st.e(f"s_mov_b64 {s(S_T0, 2)}, -1")
    st.e("s_waitcnt vmcnt(0)")
    for dl in range(2):
        for b in range(3):
            st.e(f"v_cmp_eq_u32 vcc, {s(S_NONCE)}, {v(Cv[b][dl] + 1)}")
            st.e("s_nop 0")
            st.e(f"s_or_b64 vcc, vcc, {s(mk[2 * dl + (1 if b == 2 else 0)], 2)}")
            st.e(f"s_and_b64 {s(S_T0, 2)}, {s(S_T0, 2)}, vcc")
    st.e(f"s_cmp_eq_u64 {s(S_T0, 2)}, -1")
    st.e(f"s_cbranch_scc1 {done}")
    st.e("s_sleep 1")
    st.e(f"s_sub_u32 {s(S_SPIN)}, {s(S_SPIN)}, 1")
    st.e(f"s_cbranch_scc0 {top}")
    st.label(done)
    stamp("carry")
    for b in range(3):
        st.e(f"v_fma_f32 {v(hA[b])}, {v(K['r8r'][b])}, {v(Cv[b][1])}, {v(Cv[b][0])}")
    for b in range(3):
        st.e(f"v_fmac_f32_dpp {v(hA[b])}, {v(Cv[b][1])}, {v(K['r8i'][b])} {DPP}")
    for b in range(3):
        st.e(f"v_mul_f32 {v(hB[b])}, {v(K['qr'][b])}, {v(hA[b])}")
    for b in range(3):
        st.e(f"v_fmac_f32_dpp {v(hB[b])}, {v(hA[b])}, {v(K['qi'][b])} {DPP}")
    for b in range(3):
        st.lg(f"ds_write_b32 {v(vEXw)}, {v(hB[b])} offset:{3072 + 1024 * b}")
    st.lg(f"ds_write_b32 {v(vSYw)}, {v(vM1)} offset:16")
    lds_flag_wait(st, vSYa, 16, vT, ex_reads(3072))
    stamp("sync2")
    for q in (0, 2):
        for b in range(3):
            st.e(f"v_pk_add_f32 {v(Ev[b] + q, 2)}, {v(Ev[b] + q, 2)}, {v(Ev[b] + 4 + q, 2)}")
    for b in range(3):
        st.e(f"v_pk_add_f32 {v(Ev[b], 2)}, {v(Ev[b], 2)}, {v(Ev[b] + 2, 2)}")
    for b in range(3):
        st.e(f"v_add_f32 {v(hA[b])}, {v(Ev[b])}, {v(Ev[b] + 1)}")
    for b in range(3):
        st.e(f"v_fmac_f32 {v(Pv[b])}, {v(K['psr'][b])}, {v(hA[b])}")
    for b in range(3):
        st.e(f"v_fmac_f32_dpp {v(Pv[b])}, {v(hA[b])}, {v(K['psi'][b])} {DPP}")
    for b in range(3):
        st.e(f"v_mul_f32 {v(hB[b])}, {v(K['A'][b])}, {v(Pv[b])}")
    for b in range(3):
        st.e(f"v_fmac_f32_dpp {v(hB[b])}, {v(Pv[b])}, {v(K['Bc'][b])} {DPP}")
    pk = [big + 8 * b for b in range(3)]
    sc = [frag + 16 + 2 * b for b in range(3)]
    for j in range(16):
        prev = [hB[b] if j == 0 else acc[b] + j - 1 for b in range(3)]
        for b in range(3):
            st.e(f"v_fmac_f32 {v(acc[b] + j)}, {v(K['lr'][b])}, {v(prev[b])}")
        for b in range(3):
            st.e(f"v_fmac_f32_dpp {v(acc[b] + j)}, -{v(prev[b])}, {v(K['li'][b])} {DPP}")
        if j & 1:
            for b in range(3):
                st.e(f"v_pk_mul_f32 {v(sc[b], 2)}, {v(acc[b] + j - 1, 2)}, {v(gv + j - 1, 2)}")
            for b in range(3):
                st.e(f"v_cvt_pk_bf16_f32 {v(pk[b] + (j >> 1))}, {v(sc[b])}, {v(sc[b] + 1)}")
        if j in (7, 15):
            for b in range(3):
                st.lg(f"ds_write_b128 {v(vB2)}, {v(pk[b] + (4 if j == 15 else 0), 4)} "
                      f"offset:{2560 * b + (16 if j == 15 else 0)}")
    stamp("pass2", (1,))
    rid = []
    for k in range(5):
        for e2 in range(2):
            r = st.lg(f"ds_read_b64_tr_b16 {v(acc[0] + 4 * k + 2 * e2, 2)}, {v(vB2 + 1)} offset:{k * 1280 + e2 * 640}")
        rid.append(r)
    for k in range(5):
        st.wait(lg=rid[k])
        st.vm(f"buffer_store_dwordx4 {v(acc[0] + 4 * k, 4)}, {v(vB2 + 2)}, {s(R_WS, 4)}, {s(sP)} offen offset:{512 * k} sc1")
    stamp("hst")
    st.wait(vm="all")
    st.vm(one_lane_store(vB2 + 3, s(sP + 1)))
    stamp("end")
    stamp.flush(vT)
    st.e("s_endpgm")
    return stamp.names


HEADER = """; gated mix of an S5 state-space branch and a squared-relu MLP branch, one persistent launch.
; @launch grid=(256,1,1) block=(512,1,1) lds={lds}
.amdgcn_target "amdgcn-amd-amdhsa--gfx950"
.text
.globl {name}_kernel
.p2align 8
.type {name}_kernel,@function
{name}_kernel:
"""
FOOTER = """.section .rodata,"a"
.p2align 6
.amdhsa_kernel {name}_kernel
  .amdhsa_next_free_vgpr 256
  .amdhsa_next_free_sgpr 102
  .amdhsa_accum_offset 256
  .amdhsa_group_segment_fixed_size 0
  .amdhsa_kernarg_size 144
  .amdhsa_user_sgpr_count 2
  .amdhsa_user_sgpr_kernarg_segment_ptr 1
  .amdhsa_system_sgpr_workgroup_id_x 1
  .amdhsa_float_denorm_mode_32 3
.end_amdhsa_kernel
"""


def main():
    c = Stream()
    gen_common(c)
    g = Stream()
    gn = gen_G(g)
    sst = Stream()
    sn = gen_S(sst)
    slow = "".join(o.text() for o in SLOW)
    text = (HEADER.format(lds=LDS_BYTES, name=NAME) + c.text() + g.text() + slow + ".p2align 6\n" + sst.text()
            + "L_end:\n    s_endpgm\n" + FOOTER.format(name=NAME))
    open(sys.argv[1], "w").write(text)
    if STAMPS:
        import json
        json.dump(dict(G=gn, S=sn), open(sys.argv[1] + ".stamps.json", "w"))


if __name__ == "__main__":
    main()
```

```python
import sys
from asmlib import Regs, Stream, v, s

NAME = "gated_mix__ssm_conv_s5__dense_activation_squared_relu__prompt"
OPT = dict(stamps=0, D=4, spin=1 << 14, pad=0, prioS=3, prioG=2, pf=0, cpf=0, packat=2, npre=8, npost=8, outpol=1,
           xnt=0, sset=0, dist=2, packnt=0)
OPT["padat"] = "start"
for a in sys.argv[2:]:
    k, val = a.split("=")
    assert k in OPT, k
    OPT[k] = val if k == "padat" else int(val)
STAMPS = bool(OPT["stamps"])
D = OPT["D"]

WS_EPOCH = 0
WS_FP = 0x8000
WS_FM = 0x10000
WS_FS = 0x18000
WS_T = 0x20000
WS_W2P = 0x100000
WS_H = 0x800000
WS_ST = 0x2000000
RTS = 352 * 256
NSS = 88 * 5120
XS, BS, WSZ = 16384, 10368, 12288
O_X = 0
O_B = 4 * XS
O_W1 = O_B + 4 * BS
PS = O_W1 + 3 * WSZ
SY = PS + 16384
GS = SY + 64
GB = GS + 512
LDS_BYTES = GB + 512 + 64
EX1 = PS
EX2 = EX1 + 3072
TS = O_W1
PARTW = 64 * 336
assert LDS_BYTES <= 163840 and 4 * PARTW <= O_W1 and 4 * 24576 <= O_W1 and 4 * 7680 <= 3 * WSZ

DPP = "quad_perm:[1,0,3,2] row_mask:0xf bank_mask:0xf"
LOG2E = "0x3fb8aa3b"
NLOG2E = "0xbfb8aa3b"

P_X, P_LRE, P_LIM, P_BRE, P_BIM, P_CRE, P_CIM, P_LDT = 4, 6, 8, 10, 12, 14, 16, 18
P_DSK, P_BX, P_W1, P_B1, P_W2, P_B2, P_GATE, P_OUT = 20, 22, 24, 26, 28, 30, 32, 34
P_DBG, P_WS = 36, 38
R_WS = 40
S_RB, S_CS, S_HH, S_NS, S_W, S_NONCE, S_T0, S_T1, S_T2, S_T3 = 44, 45, 46, 47, 48, 49, 50, 51, 52, 53
S_SPIN = 3
S_FREE = 54
V_LANE = 1
V_L16 = 2
V_EP = 3


def srd(st, base, ptr, size):
    st.e(f"s_mov_b32 {s(base)}, {s(ptr)}")
    st.e(f"s_mov_b32 {s(base + 1)}, {s(ptr + 1)}")
    st.e(f"s_mov_b32 {s(base + 2)}, {size:#x}")
    st.e(f"s_mov_b32 {s(base + 3)}, 0x20000")


class Stamper:
    def __init__(self, st, sr, role, n):
        self.st, self.role, self.n, self.max = st, role, 0, n
        self.base = sr.alloc("stamps", 2 * n, 2) if STAMPS else None
        self.rt0 = 96 if (role == "G" and (STAMPS or OPT["pad"])) else None
        self.names = []

    def __call__(self, name, sets=None):
        if self.rt0 is not None and name == OPT["padat"]:
            self.st.e(f"s_memrealtime {s(self.rt0, 2)}")
        if not STAMPS or (sets is not None and OPT["sset"] not in sets):
            return
        assert self.n < self.max, name
        self.st.e(f"s_memtime {s(self.base + 2 * self.n, 2)}")
        self.names.append(name)
        self.n += 1

    def flush(self, vt):
        if not STAMPS:
            return
        st = self.st
        st.e(f"s_memrealtime {s(S_T0, 2)}")
        st.e("s_waitcnt lgkmcnt(0)")
        st.e(f"v_mov_b32 {v(vt)}, 0")
        for i in range(self.n):
            st.e(f"v_writelane_b32 {v(vt)}, {s(self.base + 2 * i)}, {i}")
        st.e(f"v_writelane_b32 {v(vt)}, {s(S_T0)}, 15")
        if self.rt0 is not None:
            st.e(f"v_writelane_b32 {v(vt)}, {s(self.rt0)}, 14")
        st.e(f"s_lshl_b32 {s(S_T0)}, s2, 3")
        st.e(f"s_add_u32 {s(S_T0)}, {s(S_T0)}, {s(S_W)}")
        if self.role == "S":
            st.e(f"s_add_u32 {s(S_T0)}, {s(S_T0)}, 4")
        st.e(f"s_lshl_b32 {s(S_T0)}, {s(S_T0)}, 6")
        st.e(f"s_add_u32 {s(S_T0)}, {s(S_T0)}, {WS_ST:#x}")
        st.e(f"v_lshlrev_b32 {v(vt + 1)}, 2, {v(V_LANE)}")
        st.e("s_mov_b64 exec, 0xffff")
        st.e(f"buffer_store_dword {v(vt)}, {v(vt + 1)}, {s(R_WS, 4)}, {s(S_T0)} offen")
        st.e("s_mov_b64 exec, -1")


_lbl = [0]


def newlabel(p):
    _lbl[0] += 1
    return f"L_{p}_{_lbl[0]}"


def nonce_items():
    return [("e", f"v_readfirstlane_b32 {s(S_NONCE)}, {v(V_EP)}"),
            ("e", "s_nop 3"),
            ("e", f"s_mul_i32 {s(S_NONCE)}, {s(S_NONCE)}, 0x9e3779b1"),
            ("e", f"s_add_u32 {s(S_NONCE)}, {s(S_NONCE)}, 0x7f4a7c15")]


SLOW = []


def flag_check(st, vdata, reload_text, mask=None):
    slow, done = newlabel("slow"), newlabel("ok")

    def test(o):
        o.e(f"v_cmp_ne_u32 vcc, {s(S_NONCE)}, {v(vdata)}")
        o.e("s_nop 1")
        if mask is None:
            o.e("s_cmp_lg_u64 vcc, 0")
        else:
            o.e(f"s_and_b32 {s(S_T3)}, vcc_lo, {mask:#x}")

    test(st)
    st.e(f"s_cbranch_scc1 {slow}")
    st.label(done)
    o = Stream()
    o.label(slow)
    o.e(f"s_mov_b32 {s(S_SPIN)}, {OPT['spin']}")
    top = newlabel("spin")
    o.label(top)
    o.e(reload_text)
    o.e(f"s_sub_u32 {s(S_SPIN)}, {s(S_SPIN)}, 1")
    o.e(f"s_cbranch_scc1 {done}")
    o.e("s_waitcnt vmcnt(0)")
    test(o)
    o.e(f"s_cbranch_scc0 {done}")
    o.e("s_sleep 1")
    o.e(f"s_branch {top}")
    SLOW.append(o)


def lds_flag_wait(st, vaddr, off, vtmp, extra=()):
    top, done = newlabel("lw"), newlabel("lok")
    st.e(f"s_mov_b32 {s(S_SPIN)}, {OPT['spin'] * 8}")
    st.label(top)
    st.e(f"ds_read_b128 {v(vtmp, 4)}, {v(vaddr)} offset:{off}")
    for t in extra:
        st.e(t)
    st.e(f"s_sub_u32 {s(S_SPIN)}, {s(S_SPIN)}, 1")
    st.e(f"s_cbranch_scc1 {done}")
    st.e(f"s_waitcnt lgkmcnt({len(extra)})")
    st.e(f"v_and_b32 {v(vtmp)}, {v(vtmp)}, {v(vtmp + 1)}")
    st.e(f"v_and_b32 {v(vtmp + 2)}, {v(vtmp + 2)}, {v(vtmp + 3)}")
    st.e(f"v_and_b32 {v(vtmp)}, {v(vtmp)}, {v(vtmp + 2)}")
    st.e(f"v_cmp_ne_u32 vcc, -1, {v(vtmp)}")
    st.e("s_nop 1")
    st.e("s_cmp_lg_u64 vcc, 0")
    st.e(f"s_cbranch_scc1 {top}")
    st.label(done)
    st.e("s_waitcnt lgkmcnt(0)")


def pack_flag_addr(st, vd, vt):
    st.e(f"s_mul_i32 {s(S_T0)}, {s(S_NS)}, 5")
    st.e(f"s_lshr_b32 {s(S_T1)}, {s(S_T0)}, 2")
    st.e(f"s_mul_i32 {s(S_T2)}, {s(S_W)}, 120")
    st.e(f"s_add_u32 {s(S_T1)}, {s(S_T1)}, {s(S_T2)}")
    st.e(f"v_lshrrev_b32 {v(vt)}, 1, {v(V_LANE)}")
    st.e(f"v_mul_u32_u24 {v(vt)}, 10, {v(vt)}")
    st.e(f"v_and_b32 {v(vt + 1)}, 1, {v(V_LANE)}")
    st.e(f"v_add3_u32 {v(vd)}, {v(vt)}, {v(vt + 1)}, {s(S_T1)}")
    st.e(f"s_mul_i32 {s(S_T2)}, {s(S_W)}, 10")
    st.e(f"s_lshr_b32 {s(S_T2)}, {s(S_T2)}, 2")
    st.e(f"s_mul_i32 {s(S_T0)}, {s(S_T0)}, 10")
    st.e(f"s_add_u32 {s(S_T0)}, {s(S_T0)}, {s(S_T2)}")
    st.e(f"s_add_u32 {s(S_T0)}, {s(S_T0)}, 480")
    st.e(f"v_subrev_u32 {v(vt)}, 24, {v(V_LANE)}")
    st.e(f"v_min_u32 {v(vt)}, 14, {v(vt)}")
    st.e(f"v_mul_u32_u24 {v(vt + 1)}, 43, {v(vt)}")
    st.e(f"v_lshrrev_b32 {v(vt + 1)}, 7, {v(vt + 1)}")
    st.e(f"v_mul_u32_u24 {v(vt + 2)}, 7, {v(vt + 1)}")
    st.e(f"v_add3_u32 {v(vt)}, {v(vt)}, {v(vt + 2)}, {s(S_T0)}")
    st.e(f"v_cmp_gt_u32 vcc, 24, {v(V_LANE)}")
    st.e("s_nop 1")
    st.e(f"v_cndmask_b32 {v(vd)}, {v(vt)}, {v(vd)}, vcc")
    st.e(f"v_lshrrev_b32 {v(vt)}, 2, {v(vd)}")
    st.e(f"v_and_b32 {v(vd)}, 3, {v(vd)}")
    st.e(f"v_lshlrev_b32 {v(vd)}, 2, {v(vd)}")
    st.e(f"v_lshl_add_u32 {v(vd)}, {v(vt)}, 7, {v(vd)}")
    st.e(f"v_add_u32 {v(vd)}, {WS_FP:#x}, {v(vd)}")


def xread_addrs(st, vX, vt):
    st.e(f"v_and_b32 {v(vt)}, 31, {v(V_LANE)}")
    st.e(f"v_bfe_u32 {v(vt + 1)}, {v(V_LANE)}, 1, 3")
    st.e(f"v_lshrrev_b32 {v(vt + 2)}, 5, {v(V_LANE)}")
    st.e(f"v_xor_b32 {v(vt + 1)}, {v(vt + 1)}, {v(vt + 2)}")
    st.e(f"v_lshlrev_b32 {v(vt + 1)}, 4, {v(vt + 1)}")
    st.e(f"v_lshl_add_u32 {v(vt)}, {v(vt)}, 7, {v(vt + 1)}")
    st.e(f"s_lshl_b32 {s(S_T0)}, {s(S_W)}, 12")
    st.e(f"v_add_u32 {v(vX)}, {s(S_T0)}, {v(vt)}")
    for k in range(1, 4):
        st.e(f"v_xor_b32 {v(vX + k)}, {32 * k}, {v(vX)}")


def put(st, item):
    kind, text = item[0], item[1]
    r = None
    if kind == "vm":
        r = st.vm(text)
    elif kind == "lg":
        r = st.lg(text)
    elif kind == "fn":
        text(st)
    else:
        st.e(text)
    if len(item) > 2:
        item[2][0][item[2][1]] = r
    return r


def puts(st, items):
    for it in items:
        put(st, it)


def interleave(st, mains, sides):
    n, k = len(mains), 0
    for i, m in enumerate(mains):
        put(st, m)
        upto = (len(sides) * (i + 1) + n - 1) // n
        while k < upto:
            put(st, sides[k])
            k += 1


def split_vm(items, n):
    groups, cur = [], []
    for it in items:
        cur.append(it)
        if it[0] == "vm":
            groups.append(cur)
            cur = []
    if cur:
        if groups:
            groups[-1] += cur
        else:
            groups.append(cur)
    parts = [[] for _ in range(n)]
    for k, g in enumerate(groups):
        parts[min(n - 1, k * n // len(groups))] += g
    return parts


def one_lane_store(vdata, soff):
    return (f"s_mov_b64 exec, 1\n    buffer_store_dword {v(vdata)}, off, {s(R_WS, 4)}, {soff} sc1\n"
            f"    s_mov_b64 exec, -1")


def gen_common(st):
    if OPT["padat"] == "entry":
        st.e("s_memrealtime s[96:97]")
    st.e("s_cmp_ge_u32 s2, 256")
    st.e("s_cbranch_scc1 L_end")
    st.e("s_load_dwordx16 s[4:19], s[0:1], 0")
    st.e("s_load_dwordx16 s[20:35], s[0:1], 64")
    st.e("s_load_dwordx4 s[36:39], s[0:1], 128")
    st.e(f"v_lshrrev_b32 {v(V_EP)}, 6, v0")
    st.e(f"v_and_b32 {v(V_LANE)}, 63, v0")
    st.e(f"v_readfirstlane_b32 {s(S_W)}, {v(V_EP)}")
    st.e(f"v_lshlrev_b32 {v(V_L16)}, 4, {v(V_LANE)}")
    st.e(f"s_lshr_b32 {s(S_T1)}, s2, 3")
    st.e(f"s_bfe_u32 {s(S_RB)}, s2, 0x20001")
    st.e(f"s_lshl_b32 {s(S_RB)}, {s(S_RB)}, 2")
    st.e(f"s_lshr_b32 {s(S_T2)}, {s(S_T1)}, 3")
    st.e(f"s_add_u32 {s(S_RB)}, {s(S_RB)}, {s(S_T2)}")
    st.e(f"s_and_b32 {s(S_T0)}, s2, 1")
    st.e(f"s_lshl_b32 {s(S_CS)}, {s(S_T0)}, 3")
    st.e(f"s_and_b32 {s(S_T2)}, {s(S_T1)}, 7")
    st.e(f"s_add_u32 {s(S_CS)}, {s(S_CS)}, {s(S_T2)}")
    st.e(f"s_and_b32 {s(S_HH)}, {s(S_CS)}, 1")
    st.e(f"s_lshr_b32 {s(S_NS)}, {s(S_CS)}, 1")
    st.e(f"s_cmp_ge_u32 {s(S_W)}, 4")
    st.e("s_cbranch_scc1 L_S")


def gen_G(st):
    sr = Regs("s", S_FREE, 102)
    vr = Regs("v", 4, 256)
    R_X = sr.alloc("R_X", 4, 4)
    R_W1 = sr.alloc("R_W1", 4, 4)
    sOX, sOW, sMX, sMW = [sr.alloc(n) for n in ("sOX", "sOW", "sMX", "sMW")]
    sr2 = Regs("s", P_LRE, P_DSK)
    sW2 = sr2.alloc("sW2")
    sMP = sr2.alloc("sMP")
    sH = sr2.alloc("sH", 4)
    sWg = sr2.alloc("sWg")
    sFS = sr2.alloc("sFS")
    vDX = vr.alloc("vDX", 4)
    vDW = vr.alloc("vDW", 4)
    vX = vr.alloc("vX", 4)
    vW = vr.alloc("vW")
    vL16b = vr.alloc("vL16b")
    vL16c = vr.alloc("vL16c")
    vPF = vr.alloc("vPF")
    vPD = vr.alloc("vPD", 2)
    vHS = vr.alloc("vHS")
    vFM = vr.alloc("vFM")
    vLW = vr.alloc("vLW")
    vG = vDW
    vT = vr.alloc("vT", 4)
    assert vr.next <= 32, vr.next
    BIG = 32
    acc1 = [BIG + 16 * b for b in range(3)]
    fX = [BIG + 48 + 16 * p for p in range(2)]
    fW = [[BIG + 48 + 16 * p + 4 + 4 * b for b in range(3)] for p in range(2)]
    cv = BIG + 80
    bias = BIG + 104
    st.e(f"v_lshrrev_b32 {v(vT)}, 3, {v(V_LANE)}")
    st.e(f"v_and_b32 {v(vT + 1)}, 3, {v(vT)}")
    st.e(f"v_lshrrev_b32 {v(vT)}, 2, {v(vT)}")
    st.e(f"v_lshl_add_u32 {v(vT)}, {v(vT)}, 4, {v(vT + 1)}")
    st.e(f"v_mul_u32_u24 {v(vT)}, 1280, {v(vT)}")
    st.e(f"v_lshrrev_b32 {v(vT + 1)}, 4, {v(V_LANE)}")
    st.e(f"v_and_b32 {v(vT + 2)}, 7, {v(V_LANE)}")
    st.e(f"v_xor_b32 {v(vT + 1)}, {v(vT + 1)}, {v(vT + 2)}")
    st.e(f"v_lshl_add_u32 {v(vDX)}, {v(vT + 1)}, 4, {v(vT)}")
    st.e(f"v_xor_b32 {v(vDX + 1)}, 64, {v(vDX)}")
    st.e(f"v_add_u32 {v(vDX + 1)}, {4096}, {v(vDX + 1)}")
    st.e(f"v_add_u32 {v(vDX + 2)}, {8192}, {v(vDX)}")
    st.e(f"v_add_u32 {v(vDX + 3)}, {8192}, {v(vDX + 1)}")
    st.e(f"s_lshl_b32 {s(S_T0)}, {s(S_RB)}, 2")
    st.e(f"s_add_u32 {s(S_T0)}, {s(S_T0)}, {s(S_W)}")
    st.e(f"s_mul_i32 {s(sOX)}, {s(S_T0)}, {32 * 1280}")
    st.e(f"s_lshl_b32 {s(sMX)}, {s(S_W)}, 12")
    for i in range(3):
        if i:
            st.e(f"v_add_u32 {v(vT)}, {64 * i}, {v(V_LANE)}")
        q = V_LANE if i == 0 else vT
        st.e(f"v_mul_u32_u24 {v(vT + 1)}, 43691, {v(q)}")
        st.e(f"v_lshrrev_b32 {v(vT + 1)}, 19, {v(vT + 1)}")
        st.e(f"v_mul_u32_u24 {v(vT + 1)}, {3072 - 192}, {v(vT + 1)}")
        st.e(f"v_add_u32 {v(vDW + i)}, {v(vT + 1)}, {v(V_L16)}")
    st.e(f"s_mul_i32 {s(sOW)}, {s(S_CS)}, 192")
    st.e(f"s_mul_i32 {s(S_T0)}, {s(S_W)}, {16 * 3072}")
    st.e(f"s_add_u32 {s(sOW)}, {s(sOW)}, {s(S_T0)}")
    st.e(f"s_mul_i32 {s(sMW)}, {s(S_W)}, 3072")
    st.e(f"s_add_u32 {s(sMW)}, {s(sMW)}, {O_W1}")
    st.e("s_waitcnt lgkmcnt(0)")
    stamp = Stamper(st, sr, "G", 14)
    stamp("start")
    srd(st, R_W1, P_W1, 640 * 3072)
    srd(st, R_X, P_X, 2048 * 1280)
    ids = {}
    xpol = " nt" if OPT["xnt"] else ""

    def dma_w(c):
        out = [("e", f"s_add_u32 m0, {s(sMW)}, {(c % 3) * WSZ}"), ("e", "s_nop 0")]
        for i in range(3):
            out.append(("vm", f"buffer_load_dwordx4 {v(vDW + i)}, {s(R_W1, 4)}, {s(sOW)} offen offset:{1024 * i} lds",
                        (ids, ("w", c))))
        out.append(("e", f"s_add_u32 {s(sOW)}, {s(sOW)}, {64 * 3072}"))
        return out

    def dma_x(c):
        out = [("e", f"s_add_u32 m0, {s(sMX)}, {(c % 4) * XS}"), ("e", "s_nop 0")]
        for i in range(4):
            out.append(("vm", f"buffer_load_dwordx4 {v(vDX + i)}, {s(R_X, 4)}, {s(sOX)} offen offset:{1024 * i}{xpol} lds",
                        (ids, ("x", c))))
        out.append(("e", f"s_add_u32 {s(sOX)}, {s(sOX)}, 128"))
        return out

    puts(st, dma_w(0) + dma_x(0))
    xread_addrs(st, vX, vT)
    st.e(f"v_bfe_u32 {v(vT)}, {v(V_LANE)}, 2, 2")
    st.e(f"v_lshrrev_b32 {v(vT + 1)}, 5, {v(V_LANE)}")
    st.e(f"v_lshl_add_u32 {v(vT)}, {v(vT + 1)}, 3, {v(vT)}")
    st.e(f"v_mul_u32_u24 {v(vT)}, 192, {v(vT)}")
    st.e(f"v_and_b32 {v(vT + 1)}, 3, {v(V_LANE)}")
    st.e(f"v_lshl_add_u32 {v(vT)}, {v(vT + 1)}, 3, {v(vT)}")
    st.e(f"v_bfe_u32 {v(vT + 1)}, {v(V_LANE)}, 4, 1")
    st.e(f"v_lshl_add_u32 {v(vT)}, {v(vT + 1)}, 5, {v(vT)}")
    st.e(f"v_add_u32 {v(vW)}, {O_W1}, {v(vT)}")
    srd(st, R_WS, P_WS, 0x10000000)
    st.vm(f"buffer_load_dword {v(V_EP)}, off, {s(R_WS, 4)}, 0 sc1")
    st.e(f"v_and_b32 {v(vT)}, 31, {v(V_LANE)}")
    st.e(f"s_mul_i32 {s(S_T0)}, {s(S_CS)}, 192")
    st.e(f"v_lshl_add_u32 {v(vT)}, {v(vT)}, 1, {s(S_T0)}")
    for b in range(3):
        idb = st.vm(f"global_load_ushort {v(bias + 4 * b)}, {v(vT)}, {s(P_B1, 2)} offset:{64 * b}")
    st.e(f"v_add_u32 {v(vL16b)}, 3072, {v(V_L16)}")
    st.e(f"v_add_u32 {v(vL16c)}, 4096, {v(V_L16)}")
    pack_flag_addr(st, vPF, vT)
    st.e(f"v_bfe_u32 {v(vT)}, {v(V_LANE)}, 2, 1")
    st.e(f"v_mul_u32_u24 {v(vT)}, {RTS}, {v(vT)}")
    st.e(f"v_lshrrev_b32 {v(vT + 1)}, 5, {v(V_LANE)}")
    st.e(f"v_lshl_add_u32 {v(vT)}, {v(vT + 1)}, 8, {v(vT)}")
    st.e(f"v_bfe_u32 {v(vT + 1)}, {v(V_LANE)}, 3, 2")
    st.e(f"v_lshl_add_u32 {v(vT)}, {v(vT + 1)}, 6, {v(vT)}")
    st.e(f"v_and_b32 {v(vT + 1)}, 3, {v(V_LANE)}")
    st.e(f"v_lshl_add_u32 {v(vHS)}, {v(vT + 1)}, 4, {v(vT)}")
    st.e(f"s_lshl_b32 {s(S_T0)}, {s(S_RB)}, 4")
    st.e(f"s_lshl_b32 {s(S_T1)}, {s(S_W)}, 2")
    st.e(f"s_add_u32 {s(S_T0)}, {s(S_T0)}, {s(S_T1)}")
    st.e(f"s_lshl_b32 {s(S_T0)}, {s(S_T0)}, 7")
    st.e(f"s_lshl_b32 {s(S_T1)}, {s(S_HH)}, 3")
    st.e(f"s_add_u32 {s(S_T0)}, {s(S_T0)}, {s(S_T1)}")
    st.e(f"s_add_u32 {s(S_T0)}, {s(S_T0)}, {WS_FM:#x}")
    st.e(f"v_bfe_u32 {v(vT)}, {v(V_LANE)}, 1, 2")
    st.e(f"v_and_b32 {v(vT + 1)}, 1, {v(V_LANE)}")
    st.e(f"v_lshlrev_b32 {v(vT + 1)}, 2, {v(vT + 1)}")
    st.e(f"v_lshl_add_u32 {v(vT)}, {v(vT)}, 7, {v(vT + 1)}")
    st.e(f"v_add_u32 {v(vFM)}, {s(S_T0)}, {v(vT)}")
    st.e(f"s_mul_i32 {s(sWg)}, {s(S_NS)}, {NSS}")
    st.e(f"s_mul_i32 {s(S_T0)}, {s(S_W)}, {12 * 5120}")
    st.e(f"s_add_u32 {s(sWg)}, {s(sWg)}, {s(S_T0)}")
    st.e(f"s_add_u32 {s(sWg)}, {s(sWg)}, {WS_W2P:#x}")
    st.e(f"s_add_u32 {s(sW2)}, {s(sWg)}, 3072")
    st.e(f"s_mul_i32 {s(sMP)}, {s(S_W)}, 24576")
    st.e(f"v_add_u32 {v(vLW)}, {s(sMP)}, {v(V_L16)}")
    st.e(f"s_mov_b32 {s(sFS)}, {WS_FS - WS_FM:#x}")
    st.e(f"s_lshl_b32 {s(S_T1)}, {s(S_RB)}, 1")
    st.e(f"s_add_u32 {s(S_T1)}, {s(S_T1)}, {s(S_HH)}")
    st.e(f"s_mul_i32 {s(S_T1)}, {s(S_T1)}, {4 * RTS}")
    st.e(f"s_mul_i32 {s(S_T2)}, {s(S_W)}, {12 * 1024}")
    st.e(f"s_add_u32 {s(S_T1)}, {s(S_T1)}, {s(S_T2)}")
    st.e(f"s_add_u32 {s(sH)}, {s(S_T1)}, {WS_H:#x}")
    for mt in range(1, 4):
        st.e(f"s_add_u32 {s(sH + mt)}, {s(sH + mt - 1)}, {RTS}")
    for b in range(3):
        for k in range(1, 4):
            st.e(f"v_mov_b32 {v(bias + 4 * b + k)}, 0")
    st.e(f"v_mov_b32 {v(bias + 12)}, 0x3f80")
    for k in range(1, 4):
        st.e(f"v_mov_b32 {v(bias + 12 + k)}, 0")

    DIST = OPT["dist"]
    for c in range(1, DIST):
        puts(st, dma_w(c) + dma_x(c))

    def reads(c, sidx):
        p = sidx & 1
        out = [("lg", f"ds_read_b128 {v(fX[p], 4)}, {v(vX + sidx)} offset:{(c % 4) * XS}")]
        for b in range(3):
            for e2 in range(2):
                off = (c % 3) * WSZ + sidx * 3072 + e2 * 768 + b * 64
                out.append(("lg", f"ds_read_b64_tr_b16 {v(fW[p][b] + 2 * e2, 2)}, {v(vW)} offset:{off}"))
        return out

    def mfmas(c, sidx):
        p = sidx & 1
        first = (c == 0 and sidx == 0)
        return [("e", f"v_mfma_f32_32x32x16_bf16 {v(acc1[b], 16)}, {v(fW[p][b], 4)}, {v(fX[p], 4)}, "
                      + ("0" if first else v(acc1[b], 16))) for b in range(3)]

    st.wait(vm=max(ids["x", 0], ids["w", 0]))
    st.e("s_barrier")
    stamp("B0")
    puts(st, reads(0, 0))
    pfl = f"buffer_load_dword {v(vPD)}, {v(vPF)}, {s(R_WS, 4)}, 0 offen sc1"

    def span(cb):
        return split_vm(dma_w(cb + DIST) + dma_x(cb + DIST), 4) if cb + DIST <= 9 else [[], [], [], []]

    sp = [[]] + split_vm(dma_w(DIST) + dma_x(DIST), 3)
    for c in range(10):
        for sidx in range(4):
            if sidx < 3:
                st.wait(lg="all")
                sides = reads(c, sidx + 1) + sp[sidx + 1]
                if c == 3 and sidx == 0:
                    assert ids["w", 3] > idb
                    sides = sides + [("e", f"v_cmp_gt_u32 vcc, 32, {v(V_LANE)}")] + nonce_items()
                    sides += [("e", f"v_cndmask_b32 {v(bias + 4 * b)}, 0, {v(bias + 4 * b)}, vcc") for b in range(3)]
                mains = mfmas(c, sidx)
                if c == 3 and sidx == 1:
                    mains += [("e", f"v_mfma_f32_32x32x16_bf16 {v(acc1[b], 16)}, {v(bias + 4 * b, 4)}, "
                                    f"{v(bias + 12, 4)}, {v(acc1[b], 16)}") for b in range(3)]
                interleave(st, mains, sides)
            else:
                if c < 9:
                    st.wait(vm=max(ids["x", c + 1], ids["w", c + 1]), lg="all")
                else:
                    st.wait(lg="all")
                st.e("s_barrier")
                if c in (2, 5, 8):
                    stamp(f"B{c + 1}")
                sp = span(c + 1)
                sides = reads(c + 1, 0) if c < 9 else [("vm", pfl, (ids, "pf"))]
                interleave(st, mfmas(c, sidx), sides + sp[0])
    stamp("loopend")
    if OPT["prioG"]:
        st.e(f"s_setprio {OPT['prioG']}")
    st.e(f"s_lshl_b32 {s(S_T0)}, {s(S_RB)}, 2")
    st.e(f"s_add_u32 {s(S_T0)}, {s(S_T0)}, {s(S_W)}")
    st.e(f"s_mul_i32 {s(S_T0)}, {s(S_T0)}, {2 * RTS}")
    st.e(f"s_mul_i32 {s(S_T1)}, {s(S_CS)}, {12 * 256}")
    st.e(f"s_add_u32 {s(S_T0)}, {s(S_T0)}, {s(S_T1)}")
    st.e(f"s_add_u32 {s(S_T0)}, {s(S_T0)}, {WS_H:#x}")
    st.nop(6)
    for b in range(3):
        for e2 in range(2):
            a0 = acc1[b] + 8 * e2
            for j in range(8):
                st.e(f"v_max_f32 {v(a0 + j)}, 0, {v(a0 + j)}")
            for j in range(0, 8, 2):
                st.e(f"v_pk_mul_f32 {v(a0 + j, 2)}, {v(a0 + j, 2)}, {v(a0 + j, 2)}")
            for j in range(4):
                st.e(f"v_cvt_pk_bf16_f32 {v(cv + 8 * b + 4 * e2 + j)}, {v(a0 + 2 * j)}, {v(a0 + 2 * j + 1)}")
            hst = st.vm(f"buffer_store_dwordx4 {v(cv + 8 * b + 4 * e2, 4)}, {v(vHS)}, {s(R_WS, 4)}, {s(S_T0)} "
                        f"offen offset:{b * 1024 + e2 * 512} sc1")
    stamp("Hstored")
    acc2 = BIG
    Hb = [BIG + 80 + 16 * d for d in range(D)]
    Wb = [BIG + 80 + 16 * D + 20 * d for d in range(D)]
    assert Wb[-1] + 20 <= 256
    NST = 22
    state = dict(w=0, h=0)
    last = {}

    def w_loads(i):
        out = []
        assert state["w"] == i
        if i == 12:
            out.append(("e", f"s_mul_i32 {s(S_T2)}, {s(S_W)}, {2 * 5120}"))
            out.append(("e", f"s_sub_u32 {s(sWg)}, {s(sWg)}, {s(S_T2)}"))
            out.append(("e", f"s_add_u32 {s(sWg)}, {s(sWg)}, {36 * 5120}"))
        for nt in (range(3) if i < 12 else range(5)):
            va, off = (V_L16, nt * 1024) if nt < 4 else (vL16c, 0)
            out.append(("vm", f"buffer_load_dwordx4 {v(Wb[i % D] + 4 * nt, 4)}, {v(va)}, {s(R_WS, 4)}, {s(sWg)} "
                              f"offen offset:{off} sc1", (last, ("w", i))))
        out.append(("e", f"s_add_u32 {s(sWg)}, {s(sWg)}, 5120"))
        state["w"] += 1
        return out

    def h_loads(i):
        out = []
        assert state["h"] == i
        j = i if i < 12 else i - 12
        if i == 12:
            out.append(("e", f"s_mul_i32 {s(S_T2)}, {s(S_W)}, {2 * 1024}"))
            out.append(("e", f"s_sub_u32 {s(S_T2)}, {36 * 1024 + 4096}, {s(S_T2)}"))
            for mt in range(4):
                out.append(("e", f"s_add_u32 {s(sH + mt)}, {s(sH + mt)}, {s(S_T2)}"))
        elif j % 4 == 0 and j > 0:
            for mt in range(4):
                out.append(("e", f"s_add_u32 {s(sH + mt)}, {s(sH + mt)}, 4096"))
        for mt in range(4):
            out.append(("vm", f"buffer_load_dwordx4 {v(Hb[i % D] + 4 * mt, 4)}, {v(V_L16)}, {s(R_WS, 4)}, {s(sH + mt)} "
                              f"offen offset:{(j % 4) * 1024} sc1", (last, ("h", i))))
        state["h"] += 1
        return out

    def tile_dma(g):
        return [("e", f"s_add_u32 m0, {s(sMP)}, {g * 4096}"),
                ("e", "s_nop 0"),
                ("vm", f"buffer_load_dwordx4 {v(V_L16)}, {s(R_WS, 4)}, {s(sW2)} offen sc1 lds"),
                ("vm", f"buffer_load_dwordx4 {v(V_L16)}, {s(R_WS, 4)}, {s(sW2)} offen offset:1024 sc1 lds"),
                ("vm", f"buffer_load_dwordx4 {v(vL16b)}, {s(R_WS, 4)}, {s(sW2)} offen offset:2048 sc1 lds"),
                ("vm", f"buffer_load_dwordx4 {v(vL16b)}, {s(R_WS, 4)}, {s(sW2)} offen offset:3072 sc1 lds", (last, ("t", g))),
                ("e", f"s_add_u32 {s(sW2)}, {s(sW2)}, {2 * 5120}")]

    def lds_w(i):
        return [("lg", f"ds_read_b128 {v(Wb[i % D] + 12 + 4 * k, 4)}, {v(vLW)} offset:{i * 2048 + k * 1024}")
                for k in range(2)]

    st.wait(vm=ids["pf"])
    flag_check(st, vPD, pfl)
    if OPT["prioG"]:
        st.e("s_setprio 0")
    pre = []
    for g in range(6):
        if 2 * g < D:
            pre += w_loads(2 * g)
        pre += tile_dma(g)
        if 2 * g + 1 < D:
            pre += w_loads(2 * g + 1)
    k, nvm = 0, 0
    while k < len(pre) and (nvm < OPT["npre"] or pre[k][0] != "e" or not pre[k][1].startswith("s_add_u32 m0")):
        put(st, pre[k])
        nvm += pre[k][0] == "vm"
        k += 1
    rest = pre[k:]
    st.e(f"s_lshl_b32 {s(S_T0)}, {s(S_RB)}, 4")
    st.e(f"s_add_u32 {s(S_T0)}, {s(S_T0)}, {s(S_CS)}")
    st.e(f"s_lshl_b32 {s(S_T0)}, {s(S_T0)}, 5")
    st.e(f"s_add_u32 {s(S_T0)}, {s(S_T0)}, {s(S_W)}")
    st.e(f"s_lshl_b32 {s(S_T0)}, {s(S_T0)}, 2")
    st.e(f"s_add_u32 {s(S_T0)}, {s(S_T0)}, {WS_FM:#x}")
    st.e(f"v_mov_b32 {v(vT)}, {s(S_NONCE)}")
    if OPT["prioG"]:
        st.e(f"s_setprio {OPT['prioG']}")
    st.wait(vm=hst)
    st.vm(one_lane_store(vT, s(S_T0)))
    stamp("FMset")

    def poll(reg, fs):
        return f"buffer_load_dword {v(vPD + reg)}, {v(vFM)}, {s(R_WS, 4)}, {s(sFS) if fs else 0} offen sc1"

    if OPT["prioG"]:
        st.e("s_setprio 0")
    nrest = sum(it[0] == "vm" for it in rest)
    k, nvm, pid = 0, 0, None
    for it in rest:
        if pid is None and nvm >= nrest - OPT["npost"] and it[1].startswith("s_add_u32 m0"):
            pid = st.vm(poll(0, False))
        put(st, it)
        nvm += it[0] == "vm"
    if pid is None:
        pid = st.vm(poll(0, False))
    st.wait(vm=pid)
    flag_check(st, vPD, poll(0, False), mask=0x3)
    stamp("FMok")
    for i in range(D - 1):
        puts(st, h_loads(i))
    st.wait(vm=last["t", 0])
    puts(st, lds_w(0))
    need = {3: (False, 1), 6: (False, 2), 9: (False, 3), 12: (True, 0), 14: (True, 1), 17: (True, 2), 19: (True, 3)}
    pollreg = {}
    vER = vDX
    epi = {}
    preg = 1
    for i in range(NST):
        p = i % D
        sides = []
        nxt = i + D - 1
        if nxt + 2 in need:
            fs, kk = need[nxt + 2]
            pollreg[nxt + 2] = preg
            sides.append(("vm", poll(preg, fs), (last, ("p", nxt + 2))))
            preg ^= 1
        w_ids = [last["h", i], last["w", i]]
        if i + 1 < 12:
            w_ids.append(last["t", (i + 1) >> 1])
        if nxt in need and ("p", nxt) in last:
            w_ids.append(last["p", nxt])
        st.wait(vm=max(w_ids), lg="all")
        if nxt in need:
            fs, kk = need[nxt]
            r = pollreg.get(nxt, 0)
            flag_check(st, vPD + r, poll(r, fs), mask=0x3 << (2 * kk))
            if nxt == 12:
                stamp("FSok")
        if i == 10:
            st.e(f"v_mov_b32 {v(vW)}, {SY}")
            lds_flag_wait(st, vW, 32, vT)
            st.e(f"v_and_b32 {v(vT)}, 15, {v(V_LANE)}")
            st.e(f"s_lshl_b32 {s(S_T0)}, {s(S_HH)}, 8")
            st.e(f"s_add_u32 {s(S_T0)}, {s(S_T0)}, {GB}")
            st.e(f"v_lshl_add_u32 {v(vT)}, {v(vT)}, 2, {s(S_T0)}")
            for mt in range(4):
                sides.append(("lg", f"ds_read_b32 {v(vG + mt)}, {v(vT)} offset:{64 * mt}"))
        if i == 11:
            for mt in range(4):
                sides.append(("e", f"v_sub_f32 {v(vG + mt)}, 1.0, {v(vG + mt)}"))
        if i == 12:
            stamp("mlpend")
            st.nop(4)
            for mt in range(4):
                for nt in range(5):
                    a0 = acc2 + 20 * mt + 4 * nt
                    for k in range(4):
                        st.e(f"v_mul_f32 {v(a0 + k)}, {v(vG + mt)}, {v(a0 + k)}")
            st.nop(2)
        if i == NST - 2:
            st.e("s_barrier")
        if nxt < NST:
            if nxt >= D:
                sides += w_loads(nxt)
            sides += h_loads(nxt)
        if i + 1 < 12:
            sides += lds_w(i + 1)
        if i == NST - D + 1:
            fr = Hb[(i - 1) % D]
            epi["x"], epi["dsk"], epi["b2"] = fr, fr + 12, fr + 14
            sides.append(("e", f"v_mul_u32_u24 {v(vER)}, 205, {v(V_LANE)}"))
            sides.append(("e", f"v_lshrrev_b32 {v(vER)}, 12, {v(vER)}"))
            sides.append(("e", f"v_mul_u32_u24 {v(vER + 1)}, 20, {v(vER)}"))
            sides.append(("e", f"v_sub_u32 {v(vER + 1)}, {v(V_LANE)}, {v(vER + 1)}"))
            sides.append(("e", f"s_mul_i32 {s(S_T0)}, {s(S_NS)}, 160"))
            sides.append(("e", f"v_lshl_add_u32 {v(vER + 2)}, {v(vER + 1)}, 3, {s(S_T0)}"))
            sides.append(("vm", f"global_load_dwordx2 {v(epi['dsk'], 2)}, {v(vER + 2)}, {s(P_DSK, 2)}"))
            sides.append(("vm", f"global_load_dwordx2 {v(epi['b2'], 2)}, {v(vER + 2)}, {s(P_B2, 2)}"))
            sides.append(("e", f"s_lshl_b32 {s(S_T1)}, {s(S_RB)}, 1"))
            sides.append(("e", f"s_add_u32 {s(S_T1)}, {s(S_T1)}, {s(S_HH)}"))
            sides.append(("e", f"s_lshl_b32 {s(S_T1)}, {s(S_T1)}, 2"))
            sides.append(("e", f"s_add_u32 {s(S_T1)}, {s(S_T1)}, {s(S_W)}"))
            sides.append(("e", f"s_mul_i32 {s(sOW)}, {s(S_T1)}, {16 * 1280}"))
            sides.append(("e", f"v_mul_u32_u24 {v(vER + 3)}, 1280, {v(vER)}"))
            sides.append(("e", f"v_add_u32 {v(vER + 3)}, {v(vER + 3)}, {v(vER + 2)}"))
            for k in range(6):
                sides.append(("vm", f"buffer_load_dwordx2 {v(epi['x'] + 2 * k, 2)}, {v(vER + 3)}, {s(R_X, 4)}, {s(sOW)} offen",
                              (epi, "id")))
                if k < 5:
                    sides.append(("e", f"s_add_u32 {s(sOW)}, {s(sOW)}, {3 * 1280}"))
        mains = []
        for mt in range(4):
            for nt in range(5):
                a0 = acc2 + 20 * mt + 4 * nt
                cin = "0" if i == 0 else v(a0, 4)
                mains.append(("e", f"v_mfma_f32_16x16x32_bf16 {v(a0, 4)}, {v(Wb[p] + 4 * nt, 4)}, {v(Hb[p] + 4 * mt, 4)}, {cin}"))
        interleave(st, mains, sides)
        if i == NST - 2:
            fe = Wb[(i - 1) % D]
            fe2 = Hb[(i - 1) % D]
            E = [fe + 4 * k for k in range(5)] + [fe2]
            un = fe2 + 4
            st.e(f"s_lshl_b32 {s(S_T0)}, {s(S_HH)}, 2")
            st.e(f"s_add_u32 {s(S_T0)}, {s(S_T0)}, {s(S_W)}")
            st.e(f"s_lshl_b32 {s(S_T0)}, {s(S_T0)}, 6")
            st.e(f"s_add_u32 {s(S_T0)}, {s(S_T0)}, {GB}")
            st.e(f"v_lshl_add_u32 {v(vT)}, {v(vER)}, 2, {s(S_T0)}")
            gks = [vX, vX + 1, vX + 2, vX + 3, vG, vG + 1]
            for k in range(6):
                st.lg(f"ds_read_b32 {v(gks[k])}, {v(vT)} offset:{12 * k}")
            st.e(f"v_mov_b32 {v(vT + 1)}, 0xffff0000")
            st.wait(vm=epi["id"], lg="all")
            for q, src in ((0, epi["dsk"]), (4, epi["b2"])):
                st.e(f"v_lshlrev_b32 {v(un + q)}, 16, {v(src)}")
                st.e(f"v_and_b32 {v(un + q + 1)}, {v(vT + 1)}, {v(src)}")
                st.e(f"v_lshlrev_b32 {v(un + q + 2)}, 16, {v(src + 1)}")
                st.e(f"v_and_b32 {v(un + q + 3)}, {v(vT + 1)}, {v(src + 1)}")
            for k in range(6):
                xs = epi["x"] + 2 * k
                st.e(f"v_lshlrev_b32 {v(E[k])}, 16, {v(xs)}")
                st.e(f"v_and_b32 {v(E[k] + 1)}, {v(vT + 1)}, {v(xs)}")
                st.e(f"v_lshlrev_b32 {v(E[k] + 2)}, 16, {v(xs + 1)}")
                st.e(f"v_and_b32 {v(E[k] + 3)}, {v(vT + 1)}, {v(xs + 1)}")
                for q in range(4):
                    st.e(f"v_fma_f32 {v(E[k] + q)}, {v(E[k] + q)}, {v(un + q)}, -{v(un + 4 + q)}")
                for q in range(4):
                    st.e(f"v_fma_f32 {v(E[k] + q)}, {v(E[k] + q)}, {v(gks[k])}, {v(un + 4 + q)}")
            epi["E"] = E
            st.e(f"v_and_b32 {v(vT)}, 15, {v(V_LANE)}")
            st.e(f"v_mul_u32_u24 {v(vT)}, 336, {v(vT)}")
            st.e(f"v_lshrrev_b32 {v(vT + 1)}, 4, {v(V_LANE)}")
            st.e(f"v_lshl_add_u32 {v(vT)}, {v(vT + 1)}, 4, {v(vT)}")
            st.e(f"s_mul_i32 {s(S_T0)}, {s(S_W)}, {PARTW}")
            st.e(f"v_add_u32 {v(vT)}, {s(S_T0)}, {v(vT)}")
            st.e(f"s_mul_i32 {s(S_T0)}, {s(S_W)}, {16 * 336}")
            st.e(f"v_mul_u32_u24 {v(vT + 1)}, 336, {v(vER)}")
            st.e(f"v_lshl_add_u32 {v(vT + 1)}, {v(vER + 1)}, 4, {v(vT + 1)}")
            st.e(f"v_add_u32 {v(vT + 1)}, {s(S_T0)}, {v(vT + 1)}")
            st.e(f"v_add_u32 {v(vT + 2)}, {2 * PARTW}, {v(vT + 1)}")
            srd(st, R_W1, P_OUT, 2048 * 2560)
            st.e(f"v_mul_u32_u24 {v(vER + 3)}, 2560, {v(vER)}")
            st.e(f"v_lshl_add_u32 {v(vER + 3)}, {v(vER + 2)}, 1, {v(vER + 3)}")
            st.e(f"v_cmp_gt_u32 vcc, 60, {v(V_LANE)}")
            st.e(f"v_mov_b32 {v(vER + 2)}, 0x80000000")
            st.e(f"s_mul_i32 {s(sOW)}, {s(S_T1)}, {16 * 2560}")
            st.e(f"v_cndmask_b32 {v(vER + 3)}, {v(vER + 2)}, {v(vER + 3)}, vcc")
            st.e(f"v_cmp_gt_u32 vcc, 20, {v(V_LANE)}")
            st.e("s_nop 1")
            st.e(f"v_cndmask_b32 {v(vER + 2)}, {v(vER + 2)}, {v(vER + 3)}, vcc")
    stamp("kend")
    R_O = R_W1
    for mt in range(4):
        for nt in range(5):
            if mt == 3 and nt == 0:
                st.wait(lg=st.lg_issued - 4)
            st.lg(f"ds_write_b128 {v(vT)}, {v(acc2 + 20 * mt + 4 * nt, 4)} offset:{mt * 16 * 336 + nt * 64}")
    st.wait(lg="all")
    st.e("s_barrier")
    stamp("red")
    E = epi["E"]
    busy = set()
    for r in E:
        busy.update(range(r, r + 4))
    free = [r for r in range(BIG, 256, 4) if not (set(range(r, r + 4)) & busy)]
    rd = {(k, pw): free[4 * k + pw] for k in range(6) for pw in range(4)}
    lgid = {}

    def issue_reads(k):
        for pw in range(4):
            ra = vT + 1 + (pw >> 1)
            lgid[k] = st.lg(f"ds_read_b128 {v(rd[k, pw], 4)}, {v(ra)} offset:{(pw & 1) * PARTW + k * 3 * 336}")

    opol = {0: "", 1: " sc1", 2: " nt", 3: " sc0 sc1", 4: " sc1 nt"}[OPT["outpol"]]
    for k in range(3):
        issue_reads(k)
    for k in range(6):
        st.wait(lg=lgid[k])
        if k + 3 < 6:
            issue_reads(k + 3)
        for q in (0, 2):
            st.e(f"v_pk_add_f32 {v(rd[k, 0] + q, 2)}, {v(rd[k, 0] + q, 2)}, {v(rd[k, 1] + q, 2)}")
            st.e(f"v_pk_add_f32 {v(rd[k, 2] + q, 2)}, {v(rd[k, 2] + q, 2)}, {v(rd[k, 3] + q, 2)}")
        for q in (0, 2):
            st.e(f"v_pk_add_f32 {v(E[k] + q, 2)}, {v(E[k] + q, 2)}, {v(rd[k, 0] + q, 2)}")
        for q in (0, 2):
            st.e(f"v_pk_add_f32 {v(E[k] + q, 2)}, {v(E[k] + q, 2)}, {v(rd[k, 2] + q, 2)}")
        st.vm(f"buffer_store_dwordx4 {v(E[k], 4)}, {v(vER + 3 if k < 5 else vER + 2)}, {s(R_O, 4)}, {s(sOW)} offen{opol}")
        if k < 5:
            st.e(f"s_add_u32 {s(sOW)}, {s(sOW)}, {3 * 2560}")
    skip = newlabel("noep")
    st.e(f"s_lshl_b32 {s(S_T0)}, {s(S_CS)}, 2")
    st.e(f"s_add_u32 {s(S_T0)}, {s(S_T0)}, {s(S_W)}")
    st.e(f"s_lshl_b32 {s(S_T0)}, {s(S_T0)}, 4")
    st.e(f"s_add_u32 {s(S_T0)}, {s(S_T0)}, {s(S_RB)}")
    st.e(f"s_cmp_lg_u32 {s(S_T0)}, 15")
    st.e(f"s_cbranch_scc1 {skip}")
    st.e(f"v_mov_b32 {v(vT)}, {s(S_NONCE)}")
    st.e(one_lane_store(vT, "0"))
    st.label(skip)
    stamp("end")
    stamp.flush(vT)
    if OPT["pad"]:
        st.label("L_pad")
        st.e(f"s_memrealtime {s(S_T0, 2)}")
        st.e("s_waitcnt lgkmcnt(0)")
        st.e(f"s_sub_u32 {s(S_T0)}, {s(S_T0)}, {s(stamp.rt0)}")
        st.e(f"s_cmp_lt_u32 {s(S_T0)}, {OPT['pad'] * 100}")
        st.e("s_cbranch_scc1 L_pad")
    st.e("s_endpgm")
    return stamp.names


def gen_S(st):
    sr = Regs("s", S_FREE, 102)
    vr = Regs("v", 4, 256)
    st.label("L_S")
    R_A = sr.alloc("R_A", 4, 4)
    R_B = sr.alloc("R_B", 4, 4)
    sE5 = sr.alloc("sE5", 2)
    sOA, sOB, sMA, sMB, sTy = [sr.alloc(n) for n in ("sOA", "sOB", "sMA", "sMB", "sTy")]
    sP = sr.alloc("sP", 4)
    sQ = sr.alloc("sQ", 4)
    R_P, R_Q = 20, 4
    sMask = [P_X, P_DSK, P_BX, P_B1, P_B2, P_OUT, P_DBG]
    vDA = vr.alloc("vDA", 3)
    vX = vr.alloc("vX", 4)
    vB = vr.alloc("vB", 4)
    vB2 = vr.alloc("vB2", 4)
    vPK = vr.alloc("vPK")
    vPR = vr.alloc("vPR")
    vSig = vr.alloc("vSig")
    vSgn = vr.alloc("vSgn")
    vDum = vr.alloc("vDum")
    vA = vr.alloc("vA", 6)
    vC = vr.alloc("vC", 4)
    vT = vr.alloc("vT", 4, 4)
    acc = [vr.alloc(f"acc{b}", 16, 4) for b in range(3)]
    frag = vr.alloc("frag", 32, 4)
    fX = [frag + 16 * p for p in range(2)]
    fB = [[frag + 16 * p + 4 + 4 * b for b in range(3)] for p in range(2)]
    names = ["lr", "li", "l16r", "l16i", "psr", "psi", "qr", "qi", "r8r", "r8i", "A", "Bc"]
    K = {n: [vr.alloc(f"{n}{b}") for b in range(3)] for n in names}
    tn = ["Lr", "Li", "dt", "la", "rv", "m", "an", "cs", "liu"]
    Tm = {n: [vr.alloc(f"t{n}{b}") for b in range(3)] for n in tn}
    big = vr.alloc("big", 48, 4)

    st.e(f"s_sub_u32 {s(S_W)}, {s(S_W)}, 4")
    ncp = 0
    if OPT["cpf"]:
        skip = newlabel("nocp")
        st.e(f"s_cmp_lg_u32 {s(S_W)}, 3")
        st.e(f"s_cbranch_scc1 {skip}")
        st.e(f"s_getpc_b64 {s(S_T2, 2)}")
        st.label("L_pc")
        st.e(f"s_sub_u32 {s(S_T2)}, {s(S_T2)}, L_pc-{NAME}_kernel")
        st.e(f"s_subb_u32 {s(S_T3)}, {s(S_T3)}, 0")
        st.e(f"v_and_b32 {v(vT)}, 7, {v(V_LANE)}")
        st.e(f"v_lshl_add_u32 {v(vT)}, {v(vT)}, 5, {s(S_T1)}")
        st.e(f"v_min_u32 {v(vT)}, (L_end-{NAME}_kernel)/128, {v(vT)}")
        st.e(f"v_lshlrev_b32 {v(vT)}, 7, {v(vT)}")
        st.e("s_mov_b64 exec, 0xff")
        st.e(f"global_load_dword {v(vDum)}, {v(vT)}, {s(S_T2, 2)}")
        st.e("s_mov_b64 exec, -1")
        st.label(skip)
    st.e(f"v_lshrrev_b32 {v(vT)}, 3, {v(V_LANE)}")
    st.e(f"v_mul_u32_u24 {v(vT)}, 1280, {v(vT)}")
    st.e(f"v_and_b32 {v(vT + 1)}, 7, {v(V_LANE)}")
    st.e(f"v_lshl_add_u32 {v(vPK)}, {v(vT + 1)}, 4, {v(vT)}")
    st.e(f"s_lshr_b32 {s(S_T0)}, {s(S_W)}, 1")
    st.e(f"s_and_b32 {s(S_T1)}, {s(S_W)}, 1")
    st.e(f"s_xor_b32 {s(S_T2)}, {s(S_T0)}, {s(S_T1)}")
    st.e(f"s_lshl_b32 {s(S_T2)}, {s(S_T2)}, 2")
    st.e(f"v_lshrrev_b32 {v(vT + 1)}, 4, {v(V_LANE)}")
    st.e(f"v_xor_b32 {v(vT + 1)}, {s(S_T2)}, {v(vT + 1)}")
    st.e(f"v_lshlrev_b32 {v(vT + 1)}, 4, {v(vT + 1)}")
    st.e(f"v_xor_b32 {v(vDA)}, {v(vT + 1)}, {v(vPK)}")
    st.e(f"v_xor_b32 {v(vDA + 1)}, 64, {v(vDA)}")
    st.e(f"v_add_u32 {v(vDA + 1)}, {10240 - 1024}, {v(vDA + 1)}")
    st.e(f"v_add_u32 {v(vDA + 2)}, {2 * 10240}, {v(vDA)}")
    st.e(f"s_mul_i32 {s(sOA)}, {s(S_CS)}, {40 * 1280}")
    st.e(f"s_mul_i32 {s(S_T2)}, {s(S_T1)}, {24 * 1280}")
    st.e(f"s_add_u32 {s(sOA)}, {s(sOA)}, {s(S_T2)}")
    st.e(f"s_mul_i32 {s(sMA)}, {s(S_T0)}, 5120")
    st.e(f"s_mul_i32 {s(S_T2)}, {s(S_T1)}, 3072")
    st.e(f"s_add_u32 {s(sMA)}, {s(sMA)}, {s(S_T2)}")
    st.e(f"s_add_u32 {s(sMA)}, {s(sMA)}, {O_B}")
    st.e(f"s_add_u32 {s(sMB)}, {s(sMA)}, 2048")
    st.e(f"s_cmp_eq_u32 {s(S_T1)}, 0")
    st.e(f"s_cselect_b64 vcc, -1, 0")
    st.e(f"s_cselect_b32 {s(sOB)}, {s(sOA)}, 0")
    st.e(f"s_cselect_b32 {s(sMB)}, {s(sMB)}, {O_B + 10240}")
    st.e(f"s_cselect_b64 {s(sE5, 2)}, -1, 0xff")
    st.e(f"v_cndmask_b32 {v(vDA + 2)}, {v(V_L16)}, {v(vDA + 2)}, vcc")
    st.e("s_waitcnt lgkmcnt(0)")
    stamp = Stamper(st, sr, "S", 11)
    stamp("start")
    st.e(f"s_cmp_eq_u32 {s(S_T0)}, 0")
    st.e(f"s_cselect_b32 {s(R_A)}, {s(P_BRE)}, {s(P_BIM)}")
    st.e(f"s_cselect_b32 {s(R_A + 1)}, {s(P_BRE + 1)}, {s(P_BIM + 1)}")
    st.e(f"s_mov_b32 {s(R_A + 2)}, {640 * 1280:#x}")
    st.e(f"s_mov_b32 {s(R_A + 3)}, 0x20000")
    st.e(f"s_cmp_eq_u32 {s(S_T1)}, 0")
    st.e(f"s_cselect_b32 {s(R_B)}, {s(R_A)}, {s(P_GATE)}")
    st.e(f"s_cselect_b32 {s(R_B + 1)}, {s(R_A + 1)}, {s(P_GATE + 1)}")
    st.e(f"s_cselect_b32 {s(R_B + 2)}, {s(R_A + 2)}, 1280")
    st.e(f"s_mov_b32 {s(R_B + 3)}, 0x20000")
    ids = {}

    def dma_b(c):
        so = (c % 4) * BS
        return [("e", f"s_add_u32 m0, {s(sMA)}, {so}"),
                ("e", "s_nop 0"),
                ("vm", f"buffer_load_dwordx4 {v(vDA)}, {s(R_A, 4)}, {s(sOA)} offen lds"),
                ("vm", f"buffer_load_dwordx4 {v(vDA + 1)}, {s(R_A, 4)}, {s(sOA)} offen offset:1024 lds"),
                ("e", f"s_add_u32 m0, {s(sMB)}, {so}"),
                ("e", f"s_add_u32 {s(sOA)}, {s(sOA)}, 128"),
                ("vm", f"s_mov_b64 exec, {s(sE5, 2)}\n"
                       f"    buffer_load_dwordx4 {v(vDA + 2)}, {s(R_B, 4)}, {s(sOB)} offen lds\n"
                       f"    s_mov_b64 exec, -1", (ids, ("b", c))),
                ("e", f"s_add_u32 {s(sOB)}, {s(sOB)}, 128")]

    puts(st, dma_b(0))
    xread_addrs(st, vX, vT)
    st.e(f"v_and_b32 {v(vT)}, 1, {v(V_LANE)}")
    st.e(f"v_bfe_u32 {v(vT + 1)}, {v(V_LANE)}, 1, 4")
    st.e(f"v_mad_u32_u24 {v(vT + 1)}, {v(vT)}, 40, {v(vT + 1)}")
    st.e(f"v_bfe_u32 {v(vT + 2)}, {v(vT + 1)}, 1, 3")
    st.e(f"v_lshrrev_b32 {v(vT + 3)}, 5, {v(V_LANE)}")
    st.e(f"v_xor_b32 {v(vT + 2)}, {v(vT + 2)}, {v(vT + 3)}")
    st.e(f"v_lshlrev_b32 {v(vT + 2)}, 4, {v(vT + 2)}")
    st.e(f"v_lshl_add_u32 {v(vT + 1)}, {v(vT + 1)}, 7, {v(vT + 2)}")
    st.e(f"v_add_u32 {v(vB)}, {O_B}, {v(vT + 1)}")
    st.e(f"v_add_u32 {v(vB2)}, 4096, {v(vB)}")
    st.e(f"v_lshlrev_b32 {v(vT + 1)}, 4, {v(vT + 3)}")
    st.e(f"v_add_u32 {v(vT + 1)}, {O_B + 10240}, {v(vT + 1)}")
    st.e(f"v_and_b32 {v(vT + 2)}, 16, {v(V_LANE)}")
    st.e(f"v_cmp_eq_u32 vcc, 0, {v(vT + 2)}")
    st.e(f"s_lshl_b32 {s(S_T0)}, {s(S_W)}, 1")
    st.e(f"v_add_u32 {v(vSig)}, {s(S_T0)}, {v(vT + 3)}")
    st.e(f"v_cndmask_b32 {v(vB2)}, {v(vT + 1)}, {v(vB2)}, vcc")
    for base in (vB, vB2):
        for k in range(1, 4):
            st.e(f"v_xor_b32 {v(base + k)}, {32 * k}, {v(base)}")
    st.e(f"v_cvt_f32_u32 {v(vT)}, {v(vT)}")
    st.e(f"v_fma_f32 {v(vSgn)}, {v(vT)}, 2.0, -1.0")
    if OPT["pf"]:
        l1, l2, le = newlabel("pf"), newlabel("pf"), newlabel("pfe")
        st.e(f"v_mul_u32_u24 {v(vT)}, 43, {v(V_LANE)}")
        st.e(f"v_lshrrev_b32 {v(vT)}, 8, {v(vT)}")
        st.e(f"v_mul_u32_u24 {v(vT + 1)}, {1280 - 6 * 128}, {v(vT)}")
        st.e(f"v_lshl_add_u32 {v(vT + 1)}, {v(V_LANE)}, 7, {v(vT + 1)}")
        st.e(f"s_cmp_eq_u32 {s(S_W)}, 1")
        st.e(f"s_cbranch_scc1 {l1}")
        st.e(f"s_cmp_ge_u32 {s(S_W)}, 2")
        st.e(f"s_cbranch_scc1 {l2}")
        st.e(f"s_lshl_b32 {s(S_T0)}, {s(S_RB)}, 4")
        st.e(f"s_add_u32 {s(S_T0)}, {s(S_T0)}, {s(S_CS)}")
        st.e(f"s_mul_i32 {s(S_T0)}, {s(S_T0)}, {8 * 1280}")
        st.e(f"s_add_u32 {s(S_T0)}, {s(S_T0)}, 512")
        st.e(f"v_add_u32 {v(vT + 1)}, {s(S_T0)}, {v(vT + 1)}")
        st.e(f"s_mov_b64 {s(S_T2, 2)}, {s(P_X, 2)}")
        st.e("s_mov_b32 exec_hi, 0xffff")
        st.e(f"s_branch {le}")
        st.label(l1)
        st.e(f"s_and_b32 {s(S_T0)}, {s(S_RB)}, 7")
        st.e(f"s_mul_i32 {s(S_T0)}, {s(S_T0)}, 5")
        st.e(f"s_mul_i32 {s(S_T1)}, {s(S_CS)}, 40")
        st.e(f"s_add_u32 {s(S_T0)}, {s(S_T0)}, {s(S_T1)}")
        st.e(f"s_mul_i32 {s(S_T0)}, {s(S_T0)}, 1280")
        st.e(f"s_add_u32 {s(S_T0)}, {s(S_T0)}, 512")
        st.e(f"v_add_u32 {v(vT + 1)}, {s(S_T0)}, {v(vT + 1)}")
        st.e(f"s_cmp_lt_u32 {s(S_RB)}, 8")
        st.e(f"s_cselect_b64 {s(S_T2, 2)}, {s(P_BRE, 2)}, {s(P_BIM, 2)}")
        st.e("s_mov_b64 exec, 0x3fffffff")
        st.e(f"s_branch {le}")
        st.label(l2)
        st.e(f"s_lshl_b32 {s(S_T0)}, s2, 1")
        st.e(f"s_add_u32 {s(S_T0)}, {s(S_T0)}, {s(S_W)}")
        st.e(f"s_mul_i32 {s(S_T0)}, {s(S_T0)}, {21 * 128}")
        st.e(f"s_add_u32 {s(S_T0)}, {s(S_T0)}, {192 * 3072 - 2 * 21 * 128}")
        st.e(f"v_lshl_add_u32 {v(vT + 1)}, {v(V_LANE)}, 7, {s(S_T0)}")
        st.e(f"s_mov_b64 {s(S_T2, 2)}, {s(P_W1, 2)}")
        st.e("s_mov_b64 exec, 0x1fffff")
        st.label(le)
        st.vm(f"global_load_dword {v(vDum)}, {v(vT + 1)}, {s(S_T2, 2)}")
        st.e("s_mov_b64 exec, -1")
    srd(st, R_WS, P_WS, 0x10000000)
    st.vm(f"buffer_load_dword {v(V_EP)}, off, {s(R_WS, 4)}, 0 sc1")
    st.e(f"v_bfe_u32 {v(vT)}, {v(V_LANE)}, 1, 4")
    st.e(f"s_mul_i32 {s(S_T0)}, {s(S_CS)}, 40")
    st.e(f"v_add_u32 {v(vT)}, {s(S_T0)}, {v(vT)}")
    st.e(f"v_add_u32 {v(vT + 1)}, 32, {v(vT)}")
    st.e(f"v_min_u32 {v(vT + 1)}, 639, {v(vT + 1)}")
    st.e(f"v_lshlrev_b32 {v(vT)}, 1, {v(vT)}")
    st.e(f"v_lshlrev_b32 {v(vT + 1)}, 1, {v(vT + 1)}")
    for n, ptr in (("Lr", P_LRE), ("Li", P_LIM), ("dt", P_LDT)):
        st.vm(f"global_load_ushort {v(Tm[n][0])}, {v(vT)}, {s(ptr, 2)}")
        st.vm(f"global_load_ushort {v(Tm[n][1])}, {v(vT)}, {s(ptr, 2)} offset:32")
        par_id = st.vm(f"global_load_ushort {v(Tm[n][2])}, {v(vT + 1)}, {s(ptr, 2)}")
    st.e(f"v_mov_b32 {v(vT + 1)}, {SY}")
    st.e(f"v_lshl_add_u32 {v(vT + 1)}, {v(V_LANE)}, 2, {v(vT + 1)}")
    st.e(f"v_mov_b32 {v(vT + 2)}, 0")
    st.e("s_mov_b64 exec, 0xffff")
    st.lg(f"ds_write_b32 {v(vT + 1)}, {v(vT + 2)}")
    st.e("s_mov_b64 exec, -1")
    lC, lJ = newlabel("packC"), newlabel("packJ")
    st.e(f"s_lshl_b32 {s(S_T0)}, s2, 2")
    st.e(f"s_add_u32 {s(S_T0)}, {s(S_T0)}, {s(S_W)}")
    st.e(f"s_sub_u32 {s(S_T1)}, {s(S_T0)}, 880")
    st.e(f"s_cselect_b32 {s(S_T0)}, {s(S_T0)}, {s(S_T1)}")
    st.e(f"s_sub_u32 {s(S_T1)}, {s(S_T0)}, 480")
    st.e(f"s_cselect_b32 {s(sTy)}, 0, 1")
    st.e(f"s_cselect_b32 {s(S_T1)}, {s(S_T0)}, {s(S_T1)}")
    st.e(f"s_mul_i32 {s(S_T2)}, {s(S_T1)}, 6554")
    st.e(f"s_lshr_b32 {s(S_T2)}, {s(S_T2)}, 16")
    st.e(f"s_mul_i32 {s(S_T3)}, {s(S_T2)}, 10")
    st.e(f"s_sub_u32 {s(S_T3)}, {s(S_T1)}, {s(S_T3)}")
    st.e(f"s_lshl_b32 {s(S_T0)}, {s(S_W)}, 12")
    st.e(f"s_add_u32 {s(S_T0)}, {s(S_T0)}, {PS}")
    st.e(f"v_lshrrev_b32 {v(vT + 1)}, 5, {v(V_LANE)}")
    st.e(f"s_cmp_eq_u32 {s(sTy)}, 1")
    st.e(f"s_cbranch_scc1 {lC}")
    st.e(f"v_bfe_u32 {v(vT)}, {v(V_LANE)}, 2, 3")
    st.e(f"v_lshl_add_u32 {v(vT)}, {v(vT + 1)}, 4, {v(vT)}")
    st.e(f"v_and_b32 {v(vT + 1)}, 3, {v(V_LANE)}")
    st.e(f"v_lshlrev_b32 {v(vT + 1)}, 3, {v(vT + 1)}")
    st.e(f"v_lshl_add_u32 {v(vT)}, {v(vT)}, 7, {v(vT + 1)}")
    st.e(f"v_add_u32 {v(vPR)}, {s(S_T0)}, {v(vT)}")
    srd(st, R_P, P_W2, 1536 * 1280)
    srd(st, R_Q, P_W2, 1536 * 1280)
    st.e(f"s_mul_i32 {s(sQ)}, {s(S_T2)}, {32 * 1280}")
    st.e(f"s_lshl_b32 {s(S_T0)}, {s(S_T3)}, 7")
    st.e(f"s_add_u32 {s(sQ)}, {s(sQ)}, {s(S_T0)}")
    st.e(f"s_add_u32 {s(sQ + 1)}, {s(sQ)}, {10240 - 1024}")
    st.e(f"s_add_u32 {s(sQ + 2)}, {s(sQ)}, {2 * 10240}")
    st.e(f"s_add_u32 {s(sQ + 3)}, {s(sQ)}, {3 * 10240 - 1024}")
    st.e(f"s_mul_i32 {s(S_T2)}, {s(S_T2)}, 5120")
    st.e(f"s_add_u32 {s(S_T2)}, {s(S_T2)}, {WS_W2P:#x}")
    st.e(f"s_lshl_b32 {s(S_T3)}, {s(S_T3)}, 2")
    for k in range(4):
        st.e(f"s_add_u32 {s(S_T0)}, {s(S_T3)}, {k}")
        st.e(f"s_mul_i32 {s(S_T1)}, {s(S_T0)}, 205")
        st.e(f"s_lshr_b32 {s(S_T1)}, {s(S_T1)}, 10")
        st.e(f"s_mul_i32 {s(S_T1)}, {s(S_T1)}, {NSS - 5 * 1024}")
        st.e(f"s_lshl_b32 {s(S_T0)}, {s(S_T0)}, 10")
        st.e(f"s_add_u32 {s(S_T0)}, {s(S_T0)}, {s(S_T1)}")
        st.e(f"s_add_u32 {s(sP + k)}, {s(S_T0)}, {s(S_T2)}")
    st.e(f"s_branch {lJ}")
    st.label(lC)
    st.e(f"v_and_b32 {v(vT)}, 31, {v(V_LANE)}")
    st.e(f"v_lshlrev_b32 {v(vT + 1)}, 4, {v(vT + 1)}")
    st.e(f"v_lshl_add_u32 {v(vT)}, {v(vT)}, 7, {v(vT + 1)}")
    st.e(f"v_add_u32 {v(vPR)}, {s(S_T0)}, {v(vT)}")
    srd(st, R_P, P_CRE, 640 * 1280)
    srd(st, R_Q, P_CIM, 640 * 1280)
    st.e(f"s_mul_i32 {s(sQ)}, {s(S_T2)}, {16 * 1280}")
    st.e(f"s_lshl_b32 {s(S_T0)}, {s(S_T3)}, 7")
    st.e(f"s_add_u32 {s(sQ)}, {s(sQ)}, {s(S_T0)}")
    st.e(f"s_add_u32 {s(sQ + 1)}, {s(sQ)}, {10240 - 1024}")
    st.e(f"s_mov_b32 {s(sQ + 2)}, {s(sQ)}")
    st.e(f"s_mov_b32 {s(sQ + 3)}, {s(sQ + 1)}")
    st.e(f"s_mul_i32 {s(S_T1)}, {s(S_T2)}, 205")
    st.e(f"s_lshr_b32 {s(S_T1)}, {s(S_T1)}, 10")
    st.e(f"s_mul_i32 {s(S_T1)}, {s(S_T1)}, {NSS - 5 * 1024}")
    st.e(f"s_lshl_b32 {s(S_T2)}, {s(S_T2)}, 10")
    st.e(f"s_add_u32 {s(S_T1)}, {s(S_T1)}, {s(S_T2)}")
    st.e(f"s_mul_i32 {s(S_T3)}, {s(S_T3)}, {4 * 5120}")
    st.e(f"s_add_u32 {s(S_T1)}, {s(S_T1)}, {s(S_T3)}")
    st.e(f"s_add_u32 {s(sP)}, {s(S_T1)}, {WS_W2P + 48 * 5120:#x}")
    for k in range(1, 4):
        st.e(f"s_add_u32 {s(sP + k)}, {s(sP + k - 1)}, 5120")
    st.label(lJ)

    PNT = " nt" if OPT["packnt"] else ""

    def pack_loads():
        return [("e", f"s_lshl_b32 {s(S_T0)}, {s(S_W)}, 12"),
                ("e", f"s_add_u32 m0, {s(S_T0)}, {PS}"),
                ("e", "s_nop 0"),
                ("vm", f"buffer_load_dwordx4 {v(vPK)}, {s(R_P, 4)}, {s(sQ)} offen{PNT} lds"),
                ("vm", f"buffer_load_dwordx4 {v(vPK)}, {s(R_P, 4)}, {s(sQ + 1)} offen offset:1024{PNT} lds"),
                ("e", f"s_add_u32 m0, {s(S_T0)}, {PS + 2048}"),
                ("e", "s_nop 0"),
                ("vm", f"buffer_load_dwordx4 {v(vPK)}, {s(R_Q, 4)}, {s(sQ + 2)} offen{PNT} lds"),
                ("vm", f"buffer_load_dwordx4 {v(vPK)}, {s(R_Q, 4)}, {s(sQ + 3)} offen offset:1024{PNT} lds", (ids, "pl"))]

    def pack_reads(o):
        a, b = newlabel("prC"), newlabel("prJ")
        o.e(f"s_cmp_eq_u32 {s(sTy)}, 1")
        o.e(f"s_cbranch_scc1 {a}")
        for k in range(4):
            for e2 in range(2):
                o.e(f"ds_read_b64_tr_b16 {v(big + 4 * k + 2 * e2, 2)}, {v(vPR)} offset:{e2 * 1024 + k * 32}")
        o.e(f"s_branch {b}")
        o.label(a)
        for k in range(4):
            o.e(f"ds_read_b128 {v(big + 4 * k, 4)}, {v(vPR)} offset:{k * 32}")
        o.label(b)

    def pack_stores():
        return [("vm", f"buffer_store_dwordx4 {v(big + 4 * k, 4)}, {v(V_L16)}, {s(R_WS, 4)}, {s(sP + k)} offen sc1",
                 (ids, "ps")) for k in range(4)]

    fill = []

    def f3(fmt):
        for b in range(3):
            m = {k: v(val[b]) for k, val in {**K, **Tm}.items()}
            fill.append(("e", fmt.format(**m)))

    sg, sig = v(vSgn), v(vSig)
    fill += nonce_items()
    f3("v_lshlrev_b32 {dt}, 16, {dt}")
    f3("v_lshlrev_b32 {Lr}, 16, {Lr}")
    f3("v_lshlrev_b32 {Li}, 16, {Li}")
    f3("v_mul_f32 {dt}, " + LOG2E + ", {dt}")
    f3("v_exp_f32 {dt}, {dt}")
    f3("v_cvt_pk_bf16_f32 {dt}, {dt}, {dt}")
    f3("v_lshlrev_b32 {dt}, 16, {dt}")
    f3("v_mul_f32 {la}, {dt}, {Lr}")
    f3("v_mul_f32 {rv}, {dt}, {Li}")
    f3("v_mul_f32 {la}, " + LOG2E + ", {la}")
    f3("v_mul_f32 {rv}, 0.15915494, {rv}")

    def powr(nop, r, i, keep=False):
        if nop is None:
            f3("v_exp_f32 {m}, {la}")
            f3("v_fract_f32 {an}, {rv}")
        else:
            f3("v_mul_f32 {m}, " + nop + ", {la}")
            f3("v_mul_f32 {an}, " + nop + ", {rv}")
            f3("v_exp_f32 {m}, {m}")
            f3("v_fract_f32 {an}, {an}")
        f3("v_cos_f32 {cs}, {an}")
        f3("v_sin_f32 {an}, {an}")
        f3("v_mul_f32 {" + r + "}, {m}, {cs}")
        if keep:
            f3("v_mul_f32 {liu}, {m}, {an}")
            f3("v_mul_f32 {" + i + "}, " + sg + ", {liu}")
        else:
            f3("v_mul_f32 {m}, " + sg + ", {m}")
            f3("v_mul_f32 {" + i + "}, {m}, {an}")

    powr(None, "lr", "li", keep=True)
    f3("v_add_f32 {cs}, -1.0, {lr}")
    f3("v_mul_f32 {m}, {Lr}, {Lr}")
    f3("v_fmac_f32 {m}, {Li}, {Li}")
    f3("v_rcp_f32 {m}, {m}")
    f3("v_mul_f32 {A}, {cs}, {Lr}")
    f3("v_fmac_f32 {A}, {liu}, {Li}")
    f3("v_mul_f32 {Bc}, {liu}, {Lr}")
    f3("v_fma_f32 {Bc}, -{cs}, {Li}, {Bc}")
    f3("v_mul_f32 {m}, -2.0, {m}")
    f3("v_mul_f32 {A}, {m}, {A}")
    f3("v_mul_f32 {Bc}, {m}, {Bc}")
    f3("v_mul_f32 {A}, " + sg + ", {A}")
    powr("0x41800000", "l16r", "l16i")
    fill.append(("e", f"v_cvt_f32_u32 {v(vT + 2)}, {sig}"))
    fill.append(("e", f"v_mul_f32 {v(vT + 2)}, 0x41800000, {v(vT + 2)}"))
    fill.append(("e", f"v_mul_f32 {v(vT + 3)}, 0x41000000, {v(vT + 2)}"))
    powr(v(vT + 2), "psr", "psi")
    powr(v(vT + 3), "qr", "qi")
    powr("0x44800000", "r8r", "r8i")
    for j in range(1, 8):
        fill.append(("e", f"v_cmp_eq_u32 {s(sMask[j - 1], 2)}, {j}, {sig}"))
    vEXr, vEXw, vSYa, vSYw, vM1, vTo = [vA + k for k in range(6)]
    fill += [("e", t) for t in (
        f"v_and_b32 {v(vT + 2)}, 31, {v(V_LANE)}",
        f"v_lshlrev_b32 {v(vT + 2)}, 5, {v(vT + 2)}",
        f"v_add_u32 {v(vEXr)}, {EX1}, {v(vT + 2)}",
        f"v_lshl_add_u32 {v(vEXw)}, {v(vSig)}, 2, {v(vEXr)}",
        f"v_mov_b32 {v(vSYa)}, {SY}",
        f"v_lshl_add_u32 {v(vSYw)}, {s(S_W)}, 2, {v(vSYa)}",
        f"v_mov_b32 {v(vM1)}, -1",
        f"s_cmp_eq_u32 {s(S_W)}, 0\n    s_cselect_b32 {s(sQ)}, 0, 0x80000000",
        f"v_lshl_add_u32 {v(vTo)}, {v(V_LANE)}, 3, {s(sQ)}",
        f"s_lshl_b32 {s(sQ + 1)}, {s(S_RB)}, 4",
        f"s_add_u32 {s(sQ + 1)}, {s(sQ + 1)}, {s(S_CS)}",
        f"s_mul_i32 {s(sQ + 1)}, {s(sQ + 1)}, 768",
        f"s_add_u32 {s(sQ + 1)}, {s(sQ + 1)}, {WS_T:#x}")]
    F0 = 4 * 2
    per = -(-len(fill) // (39 - F0))

    def reads(c, sidx):
        p = sidx & 1
        out = [("lg", f"ds_read_b128 {v(fX[p], 4)}, {v(vX + sidx)} offset:{(c % 4) * XS}")]
        for b in range(3):
            base = vB if b < 2 else vB2
            off = (c % 4) * BS + (2048 * b if b < 2 else 0)
            out.append(("lg", f"ds_read_b128 {v(fB[p][b], 4)}, {v(base + sidx)} offset:{off}"))
        return out

    def mfmas(c, sidx):
        p = sidx & 1
        first = (c == 0 and sidx == 0)
        return [("e", f"v_mfma_f32_32x32x16_bf16 {v(acc[b], 16)}, {v(fX[p], 4)}, {v(fB[p][b], 4)}, "
                      + ("0" if first else v(acc[b], 16))) for b in range(3)]

    DIST = OPT["dist"]
    for c in range(1, DIST):
        puts(st, dma_b(c))
    st.wait(vm=ids["b", 0], lg="all")
    st.e("s_barrier")
    stamp("B0", (0,))
    puts(st, reads(0, 0))
    PA = OPT["packat"]
    assert PA + 2 * DIST <= 9

    def span(cb):
        d = dma_b(cb + DIST) if cb + DIST <= 9 else []
        if cb == PA:
            a = split_vm(pack_loads(), 2)
            b = split_vm(d, 2)
            return a + b
        if cb == PA + DIST:
            assert ids["b", cb] > ids["pl"]
            a = split_vm(pack_stores(), 2)
            return [[("fn", pack_reads)], a[0], a[1], d]
        out = split_vm(d, 4) if d else [[], [], [], []]
        if cb == PA + 2 * DIST:
            assert ids["b", cb] > ids["ps"]
            out[0] = [("e", f"s_lshl_b32 {s(S_T0)}, s2, 5"),
                      ("e", f"s_add_u32 {s(S_T0)}, {s(S_T0)}, {s(S_W)}"),
                      ("e", f"s_lshl_b32 {s(S_T0)}, {s(S_T0)}, 2"),
                      ("e", f"s_add_u32 {s(S_T0)}, {s(S_T0)}, {WS_FP:#x}"),
                      ("e", f"v_mov_b32 {v(vT)}, {s(S_NONCE)}"),
                      ("vm", one_lane_store(vT, s(S_T0)))] + out[0]
        return out

    sp = [[]] + split_vm(dma_b(DIST), 3)
    for c in range(10):
        for sidx in range(4):
            fl = []
            if 4 * c + sidx >= F0:
                assert ids["b", F0 // 4] > par_id
                fl, fill = fill[:per], fill[per:]
            if sidx < 3:
                st.wait(lg="all")
                interleave(st, mfmas(c, sidx), reads(c, sidx + 1) + sp[sidx + 1] + fl)
            else:
                if c < 9:
                    st.wait(vm=ids["b", c + 1], lg="all")
                else:
                    st.wait(lg="all")
                st.e("s_barrier")
                sp = span(c + 1)
                sides = reads(c + 1, 0) if c < 9 else []
                interleave(st, mfmas(c, sidx), sides + sp[0] + fl)
    assert not fill
    stamp("loopend")
    if OPT["prioS"]:
        st.e(f"s_setprio {OPT['prioS']}")
    hA = [frag + b for b in range(3)]
    hB = [frag + 3 + b for b in range(3)]
    Pv = [frag + 6 + b for b in range(3)]
    Tv = [frag + 10 + 2 * b for b in range(3)]
    st.nop(6)
    for b in range(3):
        st.e(f"v_mov_b32 {v(Pv[b])}, 0")
        st.e(f"v_mov_b32 {v(Tv[b] + 1)}, {s(S_NONCE)}")
    cur = [acc[b] for b in range(3)]
    for j in range(1, 16):
        dst = hA if j & 1 else hB
        for b in range(3):
            st.e(f"v_fma_f32 {v(dst[b])}, {v(K['lr'][b])}, {v(cur[b])}, {v(acc[b] + j)}")
        for b in range(3):
            st.e(f"v_fmac_f32_dpp {v(dst[b])}, {v(cur[b])}, {v(K['li'][b])} {DPP}")
        cur = dst
    stamp("pass1", (1,))
    for b in range(3):
        st.lg(f"ds_write_b32 {v(vEXw)}, {v(cur[b])} offset:{1024 * b}")
    st.lg(f"ds_write_b32 {v(vSYw)}, {v(vM1)}")
    Ev = [big + 8 * b for b in range(3)]

    def ex_reads(base):
        return [f"ds_read_b128 {v(Ev[b] + 4 * q, 4)}, {v(vEXr)} offset:{base + 1024 * b + 16 * q}"
                for b in range(3) for q in range(2)]

    lds_flag_wait(st, vSYa, 0, vT, ex_reads(0))
    stamp("sync1", (1,))
    cur = [Ev[b] for b in range(3)]
    for j in range(1, 8):
        dst = Tv if j == 7 else (hA if j & 1 else hB)
        for b in range(3):
            st.e(f"v_fma_f32 {v(dst[b])}, {v(K['l16r'][b])}, {v(cur[b])}, {v(Ev[b] + j)}")
        for b in range(3):
            st.e(f"v_fmac_f32_dpp {v(dst[b])}, {v(cur[b])}, {v(K['l16i'][b])} {DPP}")
        if j < 7:
            for b in range(3):
                st.e(f"v_cndmask_b32 {v(Pv[b])}, {v(Pv[b])}, {v(cur[b])}, {s(sMask[j - 1], 2)}")
        prev, cur = cur, dst
    st.e("s_mov_b32 exec_hi, 0")
    for b in range(3):
        st.vm(f"buffer_store_dwordx2 {v(Tv[b], 2)}, {v(vTo)}, {s(R_WS, 4)}, {s(sQ + 1)} offen offset:{256 * b} sc1")
    st.e("s_mov_b32 exec_hi, -1")
    for b in range(3):
        st.e(f"v_cndmask_b32 {v(Pv[b])}, {v(Pv[b])}, {v(prev[b])}, {s(sMask[6], 2)}")
    stamp("Tpub")
    gv = big + 24
    st.e(f"v_lshlrev_b32 {v(vT)}, 6, {v(vSig)}")
    st.e(f"v_add_u32 {v(vX)}, {GS}, {v(vT)}")
    st.e("s_mov_b32 exec_lo, 0x10000")
    st.e("s_mov_b32 exec_hi, 0x10000")
    for q in range(4):
        st.lg(f"ds_write_b128 {v(vX)}, {v(acc[2] + 4 * q, 4)} offset:{16 * q}")
    st.e("s_mov_b64 exec, -1")
    st.e(f"v_and_b32 {v(vT)}, 31, {v(V_LANE)}")
    st.e(f"s_lshl_b32 {s(S_T0)}, {s(S_W)}, 7")
    st.e(f"s_add_u32 {s(S_T0)}, {s(S_T0)}, {GS}")
    st.e(f"v_lshl_add_u32 {v(vX + 1)}, {v(vT)}, 2, {s(S_T0)}")
    st.lg(f"ds_read_b32 {v(vX + 2)}, {v(vX + 1)}")
    mk = [P_BRE, P_BIM, P_CRE, P_CIM]
    st.e(f"s_sub_u32 {s(S_T0)}, {s(S_RB)}, 1")
    st.e(f"v_sub_u32 {v(vT)}, {s(S_T0)}, {v(vSig)}")
    st.e(f"v_and_b32 {v(vT + 1)}, 31, {v(V_LANE)}")
    st.e(f"s_mul_i32 {s(S_T1)}, {s(S_CS)}, 768")
    st.e(f"s_add_u32 {s(S_T1)}, {s(S_T1)}, {WS_T:#x}")
    st.e(f"v_lshl_add_u32 {v(vT + 1)}, {v(vT + 1)}, 3, {s(S_T1)}")
    st.e(f"v_mov_b32 {v(vT + 3)}, 0x80000000")
    st.e(f"s_mov_b32 {s(S_T2)}, 0xffff0000")
    st.e(f"s_mov_b32 {s(S_T3)}, 0xffff0000")
    for dl in range(2):
        if dl:
            st.e(f"v_subrev_u32 {v(vT)}, 8, {v(vT)}")
        st.e(f"v_cmp_gt_i32 {s(mk[2 * dl], 2)}, 0, {v(vT)}")
        st.e(f"v_mul_i32_i24 {v(vT + 2)}, {16 * 768}, {v(vT)}")
        st.e(f"v_add_u32 {v(vT + 2)}, {v(vT + 2)}, {v(vT + 1)}")
        st.e(f"s_or_b64 {s(mk[2 * dl + 1], 2)}, {s(mk[2 * dl], 2)}, {s(S_T2, 2)}")
        st.e(f"v_cndmask_b32 {v(vC + 2 * dl)}, {v(vT + 2)}, {v(vT + 3)}, {s(mk[2 * dl], 2)}")
        st.e(f"v_cndmask_b32 {v(vC + 2 * dl + 1)}, {v(vT + 2)}, {v(vT + 3)}, {s(mk[2 * dl + 1], 2)}")
    st.wait(lg="all")
    st.e(f"v_mul_f32 {v(vX + 2)}, {NLOG2E}, {v(vX + 2)}")
    st.e(f"v_exp_f32 {v(vX + 2)}, {v(vX + 2)}")
    st.e("s_nop 0")
    st.e(f"v_add_f32 {v(vX + 2)}, 1.0, {v(vX + 2)}")
    st.e(f"v_rcp_f32 {v(vX + 2)}, {v(vX + 2)}")
    st.e("s_nop 0")
    st.lg(f"ds_write_b32 {v(vX + 1)}, {v(vX + 2)} offset:512")
    st.lg(f"ds_write_b32 {v(vSYw)}, {v(vM1)} offset:32")
    for q in range(4):
        st.lg(f"ds_read_b128 {v(gv + 4 * q, 4)}, {v(vX)} offset:{512 + 16 * q}")
    Cv = [[big + 4 * b + 2 * dl for dl in range(2)] for b in range(3)]
    tt = [frag + 16 + k for k in range(6)]
    for j in range(16):
        for b in range(3):
            st.e(f"v_mul_f32_dpp {v(tt[3 * (j & 1) + b])}, {v(acc[b] + j)}, {v(K['Bc'][b])} {DPP}")
        for b in range(3):
            st.e(f"v_fma_f32 {v(acc[b] + j)}, {v(K['A'][b])}, {v(acc[b] + j)}, {v(tt[3 * (j & 1) + b])}")
    st.e(f"s_mul_i32 {s(S_T0)}, {s(S_W)}, 7680")
    st.e(f"s_add_u32 {s(S_T0)}, {s(S_T0)}, {TS}")
    st.e(f"v_and_b32 {v(vT)}, 31, {v(V_LANE)}")
    st.e(f"v_mul_u32_u24 {v(vT)}, 80, {v(vT)}")
    st.e(f"v_and_b32 {v(vT + 1)}, 32, {v(V_LANE)}")
    st.e(f"v_add3_u32 {v(vB2)}, {v(vT)}, {v(vT + 1)}, {s(S_T0)}")
    st.e(f"v_bfe_u32 {v(vT)}, {v(V_LANE)}, 2, 2")
    st.e(f"v_bfe_u32 {v(vT + 2)}, {v(V_LANE)}, 4, 1")
    st.e(f"v_lshl_add_u32 {v(vT)}, {v(vT)}, 1, {v(vT + 2)}")
    st.e(f"v_mul_u32_u24 {v(vT)}, 80, {v(vT)}")
    st.e(f"v_and_b32 {v(vT + 3)}, 3, {v(V_LANE)}")
    st.e(f"v_lshl_add_u32 {v(vT)}, {v(vT + 3)}, 3, {v(vT)}")
    st.e(f"v_add3_u32 {v(vB2 + 1)}, {v(vT)}, {v(vT + 1)}, {s(S_T0)}")
    st.e(f"v_lshrrev_b32 {v(vT)}, 5, {v(V_LANE)}")
    st.e(f"v_mul_u32_u24 {v(vT)}, {RTS - 512}, {v(vT)}")
    st.e(f"v_add_u32 {v(vB2 + 2)}, {v(vT)}, {v(V_L16)}")
    st.e(f"s_lshl_b32 {s(sP)}, {s(S_RB)}, 2")
    st.e(f"s_add_u32 {s(sP)}, {s(sP)}, {s(S_W)}")
    st.e(f"s_mul_i32 {s(sP)}, {s(sP)}, {2 * RTS}")
    st.e(f"s_mul_i32 {s(S_T1)}, {s(S_CS)}, 2560")
    st.e(f"s_add_u32 {s(sP)}, {s(sP)}, {s(S_T1)}")
    st.e(f"s_add_u32 {s(sP)}, {s(sP)}, {WS_H + 192 * 256:#x}")
    st.e(f"s_lshl_b32 {s(sP + 1)}, {s(S_RB)}, 4")
    st.e(f"s_add_u32 {s(sP + 1)}, {s(sP + 1)}, {s(S_CS)}")
    st.e(f"s_lshl_b32 {s(sP + 1)}, {s(sP + 1)}, 5")
    st.e(f"s_add_u32 {s(sP + 1)}, {s(sP + 1)}, {s(S_W)}")
    st.e(f"s_lshl_b32 {s(sP + 1)}, {s(sP + 1)}, 2")
    st.e(f"s_add_u32 {s(sP + 1)}, {s(sP + 1)}, {WS_FS:#x}")
    st.e(f"v_mov_b32 {v(vB2 + 3)}, {s(S_NONCE)}")
    stamp("win")
    top, done = newlabel("cp"), newlabel("cok")
    st.e(f"s_mov_b32 {s(S_SPIN)}, {OPT['spin']}")
    st.label(top)
    for dl in range(2):
        for b in range(3):
            ra = vC + 2 * dl + (1 if b == 2 else 0)
            st.e(f"buffer_load_dwordx2 {v(Cv[b][dl], 2)}, {v(ra)}, {s(R_WS, 4)}, 0 offen offset:{256 * b} sc1")
    st.e(f"s_mov_b64 {s(S_T0, 2)}, -1")
    st.e("s_waitcnt vmcnt(0)")
    for dl in range(2):
        for b in range(3):
            st.e(f"v_cmp_eq_u32 vcc, {s(S_NONCE)}, {v(Cv[b][dl] + 1)}")
            st.e("s_nop 0")
            st.e(f"s_or_b64 vcc, vcc, {s(mk[2 * dl + (1 if b == 2 else 0)], 2)}")
            st.e(f"s_and_b64 {s(S_T0, 2)}, {s(S_T0, 2)}, vcc")
    st.e(f"s_cmp_eq_u64 {s(S_T0, 2)}, -1")
    st.e(f"s_cbranch_scc1 {done}")
    st.e("s_sleep 1")
    st.e(f"s_sub_u32 {s(S_SPIN)}, {s(S_SPIN)}, 1")
    st.e(f"s_cbranch_scc0 {top}")
    st.label(done)
    stamp("carry")
    for b in range(3):
        st.e(f"v_fma_f32 {v(hA[b])}, {v(K['r8r'][b])}, {v(Cv[b][1])}, {v(Cv[b][0])}")
    for b in range(3):
        st.e(f"v_fmac_f32_dpp {v(hA[b])}, {v(Cv[b][1])}, {v(K['r8i'][b])} {DPP}")
    for b in range(3):
        st.e(f"v_mul_f32 {v(hB[b])}, {v(K['qr'][b])}, {v(hA[b])}")
    for b in range(3):
        st.e(f"v_fmac_f32_dpp {v(hB[b])}, {v(hA[b])}, {v(K['qi'][b])} {DPP}")
    for b in range(3):
        st.lg(f"ds_write_b32 {v(vEXw)}, {v(hB[b])} offset:{3072 + 1024 * b}")
    st.lg(f"ds_write_b32 {v(vSYw)}, {v(vM1)} offset:16")
    lds_flag_wait(st, vSYa, 16, vT, ex_reads(3072))
    stamp("sync2")
    for q in (0, 2):
        for b in range(3):
            st.e(f"v_pk_add_f32 {v(Ev[b] + q, 2)}, {v(Ev[b] + q, 2)}, {v(Ev[b] + 4 + q, 2)}")
    for b in range(3):
        st.e(f"v_pk_add_f32 {v(Ev[b], 2)}, {v(Ev[b], 2)}, {v(Ev[b] + 2, 2)}")
    for b in range(3):
        st.e(f"v_add_f32 {v(hA[b])}, {v(Ev[b])}, {v(Ev[b] + 1)}")
    for b in range(3):
        st.e(f"v_fmac_f32 {v(Pv[b])}, {v(K['psr'][b])}, {v(hA[b])}")
    for b in range(3):
        st.e(f"v_fmac_f32_dpp {v(Pv[b])}, {v(hA[b])}, {v(K['psi'][b])} {DPP}")
    for b in range(3):
        st.e(f"v_mul_f32 {v(hB[b])}, {v(K['A'][b])}, {v(Pv[b])}")
    for b in range(3):
        st.e(f"v_fmac_f32_dpp {v(hB[b])}, {v(Pv[b])}, {v(K['Bc'][b])} {DPP}")
    pk = [big + 8 * b for b in range(3)]
    sc = [frag + 16 + 2 * b for b in range(3)]
    for j in range(16):
        prev = [hB[b] if j == 0 else acc[b] + j - 1 for b in range(3)]
        for b in range(3):
            st.e(f"v_fmac_f32 {v(acc[b] + j)}, {v(K['lr'][b])}, {v(prev[b])}")
        for b in range(3):
            st.e(f"v_fmac_f32_dpp {v(acc[b] + j)}, -{v(prev[b])}, {v(K['li'][b])} {DPP}")
        if j & 1:
            for b in range(3):
                st.e(f"v_pk_mul_f32 {v(sc[b], 2)}, {v(acc[b] + j - 1, 2)}, {v(gv + j - 1, 2)}")
            for b in range(3):
                st.e(f"v_cvt_pk_bf16_f32 {v(pk[b] + (j >> 1))}, {v(sc[b])}, {v(sc[b] + 1)}")
        if j in (7, 15):
            for b in range(3):
                st.lg(f"ds_write_b128 {v(vB2)}, {v(pk[b] + (4 if j == 15 else 0), 4)} "
                      f"offset:{2560 * b + (16 if j == 15 else 0)}")
    stamp("pass2", (1,))
    rid = []
    for k in range(5):
        for e2 in range(2):
            r = st.lg(f"ds_read_b64_tr_b16 {v(acc[0] + 4 * k + 2 * e2, 2)}, {v(vB2 + 1)} offset:{k * 1280 + e2 * 640}")
        rid.append(r)
    for k in range(5):
        st.wait(lg=rid[k])
        st.vm(f"buffer_store_dwordx4 {v(acc[0] + 4 * k, 4)}, {v(vB2 + 2)}, {s(R_WS, 4)}, {s(sP)} offen offset:{512 * k} sc1")
    stamp("hst")
    st.wait(vm="all")
    st.vm(one_lane_store(vB2 + 3, s(sP + 1)))
    stamp("end")
    stamp.flush(vT)
    st.e("s_endpgm")
    return stamp.names


HEADER = """; gated mix of an S5 state-space branch and a squared-relu MLP branch, one persistent launch.
; 256 workgroups x 8 waves: waves 0-3 MLP GEMM1 + output GEMM, waves 4-7 SSM GEMM1 + chunked scan.
; @launch grid=(256,1,1) block=(512,1,1) lds={lds}
.amdgcn_target "amdgcn-amd-amdhsa--gfx950"
.text
.globl {name}_kernel
.p2align 8
.type {name}_kernel,@function
{name}_kernel:
"""
FOOTER = """.section .rodata,"a"
.p2align 6
.amdhsa_kernel {name}_kernel
  .amdhsa_next_free_vgpr 256
  .amdhsa_next_free_sgpr 102
  .amdhsa_accum_offset 256
  .amdhsa_group_segment_fixed_size 0
  .amdhsa_kernarg_size 144
  .amdhsa_user_sgpr_count 2
  .amdhsa_user_sgpr_kernarg_segment_ptr 1
  .amdhsa_system_sgpr_workgroup_id_x 1
  .amdhsa_float_denorm_mode_32 3
.end_amdhsa_kernel
"""


def main():
    c = Stream()
    gen_common(c)
    g = Stream()
    gn = gen_G(g)
    sst = Stream()
    sn = gen_S(sst)
    slow = "".join(o.text() for o in SLOW)
    text = (HEADER.format(lds=LDS_BYTES, name=NAME) + c.text() + g.text() + slow + ".p2align 6\n" + sst.text()
            + "L_end:\n    s_endpgm\n" + FOOTER.format(name=NAME))
    open(sys.argv[1], "w").write(text)
    if STAMPS:
        import json
        json.dump(dict(G=gn, S=sn), open(sys.argv[1] + ".stamps.json", "w"))


if __name__ == "__main__":
    main()
```

```python
import sys
from asmlib import Regs, Stream, v, s

NAME = "gated_mix__ssm_conv_s5__dense_activation_squared_relu__prompt"
OPT = dict(stamps=0, D=4, spin=1 << 14, pad=0, prioS=3, prioG=2, pf=0, cpf=0, packat=2, npre=8, npost=8, outpol=1,
           xnt=0, sset=0, dist=2, packnt=0)
OPT["padat"] = "start"
OPT["cycA"] = ""
OPT["cycB"] = ""
for a in sys.argv[2:]:
    k, val = a.split("=")
    assert k in OPT, k
    OPT[k] = val if k in ("padat", "cycA", "cycB") else int(val)
STAMPS = bool(OPT["stamps"])
D = OPT["D"]

WS_EPOCH = 0
WS_FP = 0x8000
WS_FM = 0x10000
WS_FS = 0x18000
WS_T = 0x20000
WS_W2P = 0x100000
WS_H = 0x800000
WS_ST = 0x2000000
RTS = 352 * 256
NSS = 88 * 5120
XS, BS, WSZ = 16384, 10368, 12288
O_X = 0
O_B = 4 * XS
O_W1 = O_B + 4 * BS
PS = O_W1 + 3 * WSZ
SY = PS + 16384
GS = SY + 64
GB = GS + 512
LDS_BYTES = GB + 512 + 64
EX1 = PS
EX2 = EX1 + 3072
TS = O_W1
PARTW = 64 * 336
assert LDS_BYTES <= 163840 and 4 * PARTW <= O_W1 and 4 * 24576 <= O_W1 and 4 * 7680 <= 3 * WSZ

DPP = "quad_perm:[1,0,3,2] row_mask:0xf bank_mask:0xf"
LOG2E = "0x3fb8aa3b"
NLOG2E = "0xbfb8aa3b"

P_X, P_LRE, P_LIM, P_BRE, P_BIM, P_CRE, P_CIM, P_LDT = 4, 6, 8, 10, 12, 14, 16, 18
P_DSK, P_BX, P_W1, P_B1, P_W2, P_B2, P_GATE, P_OUT = 20, 22, 24, 26, 28, 30, 32, 34
P_DBG, P_WS = 36, 38
R_WS = 40
S_RB, S_CS, S_HH, S_NS, S_W, S_NONCE, S_T0, S_T1, S_T2, S_T3 = 44, 45, 46, 47, 48, 49, 50, 51, 52, 53
S_SPIN = 3
S_FREE = 54
V_LANE = 1
V_L16 = 2
V_EP = 3


def srd(st, base, ptr, size):
    st.e(f"s_mov_b32 {s(base)}, {s(ptr)}")
    st.e(f"s_mov_b32 {s(base + 1)}, {s(ptr + 1)}")
    st.e(f"s_mov_b32 {s(base + 2)}, {size:#x}")
    st.e(f"s_mov_b32 {s(base + 3)}, 0x20000")


class Stamper:
    def __init__(self, st, sr, role, n):
        self.st, self.role, self.n, self.max = st, role, 0, n
        self.base = sr.alloc("stamps", 2 * n, 2) if STAMPS else None
        self.rt0 = 96 if (role == "G" and (STAMPS or OPT["pad"])) else None
        self.names = []

    def __call__(self, name, sets=None):
        if self.rt0 is not None and name == OPT["padat"]:
            self.st.e(f"s_memrealtime {s(self.rt0, 2)}")
        if self.rt0 is not None and name == OPT["cycA"]:
            self.st.e("s_memtime s[98:99]")
        if self.rt0 is not None and name == OPT["cycB"]:
            self.st.e("s_memtime s[100:101]")
        if not STAMPS or (sets is not None and OPT["sset"] not in sets):
            return
        assert self.n < self.max, name
        self.st.e(f"s_memtime {s(self.base + 2 * self.n, 2)}")
        self.names.append(name)
        self.n += 1

    def flush(self, vt):
        if not STAMPS:
            return
        st = self.st
        st.e(f"s_memrealtime {s(S_T0, 2)}")
        st.e("s_waitcnt lgkmcnt(0)")
        st.e(f"v_mov_b32 {v(vt)}, 0")
        for i in range(self.n):
            st.e(f"v_writelane_b32 {v(vt)}, {s(self.base + 2 * i)}, {i}")
        st.e(f"v_writelane_b32 {v(vt)}, {s(S_T0)}, 15")
        if self.rt0 is not None:
            st.e(f"v_writelane_b32 {v(vt)}, {s(self.rt0)}, 14")
        st.e(f"s_lshl_b32 {s(S_T0)}, s2, 3")
        st.e(f"s_add_u32 {s(S_T0)}, {s(S_T0)}, {s(S_W)}")
        if self.role == "S":
            st.e(f"s_add_u32 {s(S_T0)}, {s(S_T0)}, 4")
        st.e(f"s_lshl_b32 {s(S_T0)}, {s(S_T0)}, 6")
        st.e(f"s_add_u32 {s(S_T0)}, {s(S_T0)}, {WS_ST:#x}")
        st.e(f"v_lshlrev_b32 {v(vt + 1)}, 2, {v(V_LANE)}")
        st.e("s_mov_b64 exec, 0xffff")
        st.e(f"buffer_store_dword {v(vt)}, {v(vt + 1)}, {s(R_WS, 4)}, {s(S_T0)} offen")
        st.e("s_mov_b64 exec, -1")


_lbl = [0]


def newlabel(p):
    _lbl[0] += 1
    return f"L_{p}_{_lbl[0]}"


def nonce_items():
    return [("e", f"v_readfirstlane_b32 {s(S_NONCE)}, {v(V_EP)}"),
            ("e", "s_nop 3"),
            ("e", f"s_mul_i32 {s(S_NONCE)}, {s(S_NONCE)}, 0x9e3779b1"),
            ("e", f"s_add_u32 {s(S_NONCE)}, {s(S_NONCE)}, 0x7f4a7c15")]


SLOW = []


def flag_check(st, vdata, reload_text, mask=None):
    slow, done = newlabel("slow"), newlabel("ok")

    def test(o):
        o.e(f"v_cmp_ne_u32 vcc, {s(S_NONCE)}, {v(vdata)}")
        o.e("s_nop 1")
        if mask is None:
            o.e("s_cmp_lg_u64 vcc, 0")
        else:
            o.e(f"s_and_b32 {s(S_T3)}, vcc_lo, {mask:#x}")

    test(st)
    st.e(f"s_cbranch_scc1 {slow}")
    st.label(done)
    o = Stream()
    o.label(slow)
    o.e(f"s_mov_b32 {s(S_SPIN)}, {OPT['spin']}")
    top = newlabel("spin")
    o.label(top)
    o.e(reload_text)
    o.e(f"s_sub_u32 {s(S_SPIN)}, {s(S_SPIN)}, 1")
    o.e(f"s_cbranch_scc1 {done}")
    o.e("s_waitcnt vmcnt(0)")
    test(o)
    o.e(f"s_cbranch_scc0 {done}")
    o.e("s_sleep 1")
    o.e(f"s_branch {top}")
    SLOW.append(o)


def lds_flag_wait(st, vaddr, off, vtmp, extra=()):
    top, done = newlabel("lw"), newlabel("lok")
    st.e(f"s_mov_b32 {s(S_SPIN)}, {OPT['spin'] * 8}")
    st.label(top)
    st.e(f"ds_read_b128 {v(vtmp, 4)}, {v(vaddr)} offset:{off}")
    for t in extra:
        st.e(t)
    st.e(f"s_sub_u32 {s(S_SPIN)}, {s(S_SPIN)}, 1")
    st.e(f"s_cbranch_scc1 {done}")
    st.e(f"s_waitcnt lgkmcnt({len(extra)})")
    st.e(f"v_and_b32 {v(vtmp)}, {v(vtmp)}, {v(vtmp + 1)}")
    st.e(f"v_and_b32 {v(vtmp + 2)}, {v(vtmp + 2)}, {v(vtmp + 3)}")
    st.e(f"v_and_b32 {v(vtmp)}, {v(vtmp)}, {v(vtmp + 2)}")
    st.e(f"v_cmp_ne_u32 vcc, -1, {v(vtmp)}")
    st.e("s_nop 1")
    st.e("s_cmp_lg_u64 vcc, 0")
    st.e(f"s_cbranch_scc1 {top}")
    st.label(done)
    st.e("s_waitcnt lgkmcnt(0)")


def pack_flag_addr(st, vd, vt):
    st.e(f"s_mul_i32 {s(S_T0)}, {s(S_NS)}, 5")
    st.e(f"s_lshr_b32 {s(S_T1)}, {s(S_T0)}, 2")
    st.e(f"s_mul_i32 {s(S_T2)}, {s(S_W)}, 120")
    st.e(f"s_add_u32 {s(S_T1)}, {s(S_T1)}, {s(S_T2)}")
    st.e(f"v_lshrrev_b32 {v(vt)}, 1, {v(V_LANE)}")
    st.e(f"v_mul_u32_u24 {v(vt)}, 10, {v(vt)}")
    st.e(f"v_and_b32 {v(vt + 1)}, 1, {v(V_LANE)}")
    st.e(f"v_add3_u32 {v(vd)}, {v(vt)}, {v(vt + 1)}, {s(S_T1)}")
    st.e(f"s_mul_i32 {s(S_T2)}, {s(S_W)}, 10")
    st.e(f"s_lshr_b32 {s(S_T2)}, {s(S_T2)}, 2")
    st.e(f"s_mul_i32 {s(S_T0)}, {s(S_T0)}, 10")
    st.e(f"s_add_u32 {s(S_T0)}, {s(S_T0)}, {s(S_T2)}")
    st.e(f"s_add_u32 {s(S_T0)}, {s(S_T0)}, 480")
    st.e(f"v_subrev_u32 {v(vt)}, 24, {v(V_LANE)}")
    st.e(f"v_min_u32 {v(vt)}, 14, {v(vt)}")
    st.e(f"v_mul_u32_u24 {v(vt + 1)}, 43, {v(vt)}")
    st.e(f"v_lshrrev_b32 {v(vt + 1)}, 7, {v(vt + 1)}")
    st.e(f"v_mul_u32_u24 {v(vt + 2)}, 7, {v(vt + 1)}")
    st.e(f"v_add3_u32 {v(vt)}, {v(vt)}, {v(vt + 2)}, {s(S_T0)}")
    st.e(f"v_cmp_gt_u32 vcc, 24, {v(V_LANE)}")
    st.e("s_nop 1")
    st.e(f"v_cndmask_b32 {v(vd)}, {v(vt)}, {v(vd)}, vcc")
    st.e(f"v_lshrrev_b32 {v(vt)}, 2, {v(vd)}")
    st.e(f"v_and_b32 {v(vd)}, 3, {v(vd)}")
    st.e(f"v_lshlrev_b32 {v(vd)}, 2, {v(vd)}")
    st.e(f"v_lshl_add_u32 {v(vd)}, {v(vt)}, 7, {v(vd)}")
    st.e(f"v_add_u32 {v(vd)}, {WS_FP:#x}, {v(vd)}")


def xread_addrs(st, vX, vt):
    st.e(f"v_and_b32 {v(vt)}, 31, {v(V_LANE)}")
    st.e(f"v_bfe_u32 {v(vt + 1)}, {v(V_LANE)}, 1, 3")
    st.e(f"v_lshrrev_b32 {v(vt + 2)}, 5, {v(V_LANE)}")
    st.e(f"v_xor_b32 {v(vt + 1)}, {v(vt + 1)}, {v(vt + 2)}")
    st.e(f"v_lshlrev_b32 {v(vt + 1)}, 4, {v(vt + 1)}")
    st.e(f"v_lshl_add_u32 {v(vt)}, {v(vt)}, 7, {v(vt + 1)}")
    st.e(f"s_lshl_b32 {s(S_T0)}, {s(S_W)}, 12")
    st.e(f"v_add_u32 {v(vX)}, {s(S_T0)}, {v(vt)}")
    for k in range(1, 4):
        st.e(f"v_xor_b32 {v(vX + k)}, {32 * k}, {v(vX)}")


def put(st, item):
    kind, text = item[0], item[1]
    r = None
    if kind == "vm":
        r = st.vm(text)
    elif kind == "lg":
        r = st.lg(text)
    elif kind == "fn":
        text(st)
    else:
        st.e(text)
    if len(item) > 2:
        item[2][0][item[2][1]] = r
    return r


def puts(st, items):
    for it in items:
        put(st, it)


def interleave(st, mains, sides):
    n, k = len(mains), 0
    for i, m in enumerate(mains):
        put(st, m)
        upto = (len(sides) * (i + 1) + n - 1) // n
        while k < upto:
            put(st, sides[k])
            k += 1


def split_vm(items, n):
    groups, cur = [], []
    for it in items:
        cur.append(it)
        if it[0] == "vm":
            groups.append(cur)
            cur = []
    if cur:
        if groups:
            groups[-1] += cur
        else:
            groups.append(cur)
    parts = [[] for _ in range(n)]
    for k, g in enumerate(groups):
        parts[min(n - 1, k * n // len(groups))] += g
    return parts


def one_lane_store(vdata, soff):
    return (f"s_mov_b64 exec, 1\n    buffer_store_dword {v(vdata)}, off, {s(R_WS, 4)}, {soff} sc1\n"
            f"    s_mov_b64 exec, -1")


def gen_common(st):
    if OPT["padat"] == "entry":
        st.e("s_memrealtime s[96:97]")
    st.e("s_cmp_ge_u32 s2, 256")
    st.e("s_cbranch_scc1 L_end")
    st.e("s_load_dwordx16 s[4:19], s[0:1], 0")
    st.e("s_load_dwordx16 s[20:35], s[0:1], 64")
    st.e("s_load_dwordx4 s[36:39], s[0:1], 128")
    st.e(f"v_lshrrev_b32 {v(V_EP)}, 6, v0")
    st.e(f"v_and_b32 {v(V_LANE)}, 63, v0")
    st.e(f"v_readfirstlane_b32 {s(S_W)}, {v(V_EP)}")
    st.e(f"v_lshlrev_b32 {v(V_L16)}, 4, {v(V_LANE)}")
    st.e(f"s_lshr_b32 {s(S_T1)}, s2, 3")
    st.e(f"s_bfe_u32 {s(S_RB)}, s2, 0x20001")
    st.e(f"s_lshl_b32 {s(S_RB)}, {s(S_RB)}, 2")
    st.e(f"s_lshr_b32 {s(S_T2)}, {s(S_T1)}, 3")
    st.e(f"s_add_u32 {s(S_RB)}, {s(S_RB)}, {s(S_T2)}")
    st.e(f"s_and_b32 {s(S_T0)}, s2, 1")
    st.e(f"s_lshl_b32 {s(S_CS)}, {s(S_T0)}, 3")
    st.e(f"s_and_b32 {s(S_T2)}, {s(S_T1)}, 7")
    st.e(f"s_add_u32 {s(S_CS)}, {s(S_CS)}, {s(S_T2)}")
    st.e(f"s_and_b32 {s(S_HH)}, {s(S_CS)}, 1")
    st.e(f"s_lshr_b32 {s(S_NS)}, {s(S_CS)}, 1")
    st.e(f"s_cmp_ge_u32 {s(S_W)}, 4")
    st.e("s_cbranch_scc1 L_S")


def gen_G(st):
    sr = Regs("s", S_FREE, 102)
    vr = Regs("v", 4, 256)
    R_X = sr.alloc("R_X", 4, 4)
    R_W1 = sr.alloc("R_W1", 4, 4)
    sOX, sOW, sMX, sMW = [sr.alloc(n) for n in ("sOX", "sOW", "sMX", "sMW")]
    sr2 = Regs("s", P_LRE, P_DSK)
    sW2 = sr2.alloc("sW2")
    sMP = sr2.alloc("sMP")
    sH = sr2.alloc("sH", 4)
    sWg = sr2.alloc("sWg")
    sFS = sr2.alloc("sFS")
    vDX = vr.alloc("vDX", 4)
    vDW = vr.alloc("vDW", 4)
    vX = vr.alloc("vX", 4)
    vW = vr.alloc("vW")
    vL16b = vr.alloc("vL16b")
    vL16c = vr.alloc("vL16c")
    vPF = vr.alloc("vPF")
    vPD = vr.alloc("vPD", 2)
    vHS = vr.alloc("vHS")
    vFM = vr.alloc("vFM")
    vLW = vr.alloc("vLW")
    vG = vDW
    vT = vr.alloc("vT", 4)
    assert vr.next <= 32, vr.next
    BIG = 32
    acc1 = [BIG + 16 * b for b in range(3)]
    fX = [BIG + 48 + 16 * p for p in range(2)]
    fW = [[BIG + 48 + 16 * p + 4 + 4 * b for b in range(3)] for p in range(2)]
    cv = BIG + 80
    bias = BIG + 104
    st.e(f"v_lshrrev_b32 {v(vT)}, 3, {v(V_LANE)}")
    st.e(f"v_and_b32 {v(vT + 1)}, 3, {v(vT)}")
    st.e(f"v_lshrrev_b32 {v(vT)}, 2, {v(vT)}")
    st.e(f"v_lshl_add_u32 {v(vT)}, {v(vT)}, 4, {v(vT + 1)}")
    st.e(f"v_mul_u32_u24 {v(vT)}, 1280, {v(vT)}")
    st.e(f"v_lshrrev_b32 {v(vT + 1)}, 4, {v(V_LANE)}")
    st.e(f"v_and_b32 {v(vT + 2)}, 7, {v(V_LANE)}")
    st.e(f"v_xor_b32 {v(vT + 1)}, {v(vT + 1)}, {v(vT + 2)}")
    st.e(f"v_lshl_add_u32 {v(vDX)}, {v(vT + 1)}, 4, {v(vT)}")
    st.e(f"v_xor_b32 {v(vDX + 1)}, 64, {v(vDX)}")
    st.e(f"v_add_u32 {v(vDX + 1)}, {4096}, {v(vDX + 1)}")
    st.e(f"v_add_u32 {v(vDX + 2)}, {8192}, {v(vDX)}")
    st.e(f"v_add_u32 {v(vDX + 3)}, {8192}, {v(vDX + 1)}")
    st.e(f"s_lshl_b32 {s(S_T0)}, {s(S_RB)}, 2")
    st.e(f"s_add_u32 {s(S_T0)}, {s(S_T0)}, {s(S_W)}")
    st.e(f"s_mul_i32 {s(sOX)}, {s(S_T0)}, {32 * 1280}")
    st.e(f"s_lshl_b32 {s(sMX)}, {s(S_W)}, 12")
    for i in range(3):
        if i:
            st.e(f"v_add_u32 {v(vT)}, {64 * i}, {v(V_LANE)}")
        q = V_LANE if i == 0 else vT
        st.e(f"v_mul_u32_u24 {v(vT + 1)}, 43691, {v(q)}")
        st.e(f"v_lshrrev_b32 {v(vT + 1)}, 19, {v(vT + 1)}")
        st.e(f"v_mul_u32_u24 {v(vT + 1)}, {3072 - 192}, {v(vT + 1)}")
        st.e(f"v_add_u32 {v(vDW + i)}, {v(vT + 1)}, {v(V_L16)}")
    st.e(f"s_mul_i32 {s(sOW)}, {s(S_CS)}, 192")
    st.e(f"s_mul_i32 {s(S_T0)}, {s(S_W)}, {16 * 3072}")
    st.e(f"s_add_u32 {s(sOW)}, {s(sOW)}, {s(S_T0)}")
    st.e(f"s_mul_i32 {s(sMW)}, {s(S_W)}, 3072")
    st.e(f"s_add_u32 {s(sMW)}, {s(sMW)}, {O_W1}")
    st.e("s_waitcnt lgkmcnt(0)")
    stamp = Stamper(st, sr, "G", 14)
    stamp("start")
    srd(st, R_W1, P_W1, 640 * 3072)
    srd(st, R_X, P_X, 2048 * 1280)
    ids = {}
    xpol = " nt" if OPT["xnt"] else ""

    def dma_w(c):
        out = [("e", f"s_add_u32 m0, {s(sMW)}, {(c % 3) * WSZ}"), ("e", "s_nop 0")]
        for i in range(3):
            out.append(("vm", f"buffer_load_dwordx4 {v(vDW + i)}, {s(R_W1, 4)}, {s(sOW)} offen offset:{1024 * i} lds",
                        (ids, ("w", c))))
        out.append(("e", f"s_add_u32 {s(sOW)}, {s(sOW)}, {64 * 3072}"))
        return out

    def dma_x(c):
        out = [("e", f"s_add_u32 m0, {s(sMX)}, {(c % 4) * XS}"), ("e", "s_nop 0")]
        for i in range(4):
            out.append(("vm", f"buffer_load_dwordx4 {v(vDX + i)}, {s(R_X, 4)}, {s(sOX)} offen offset:{1024 * i}{xpol} lds",
                        (ids, ("x", c))))
        out.append(("e", f"s_add_u32 {s(sOX)}, {s(sOX)}, 128"))
        return out

    puts(st, dma_w(0) + dma_x(0))
    xread_addrs(st, vX, vT)
    st.e(f"v_bfe_u32 {v(vT)}, {v(V_LANE)}, 2, 2")
    st.e(f"v_lshrrev_b32 {v(vT + 1)}, 5, {v(V_LANE)}")
    st.e(f"v_lshl_add_u32 {v(vT)}, {v(vT + 1)}, 3, {v(vT)}")
    st.e(f"v_mul_u32_u24 {v(vT)}, 192, {v(vT)}")
    st.e(f"v_and_b32 {v(vT + 1)}, 3, {v(V_LANE)}")
    st.e(f"v_lshl_add_u32 {v(vT)}, {v(vT + 1)}, 3, {v(vT)}")
    st.e(f"v_bfe_u32 {v(vT + 1)}, {v(V_LANE)}, 4, 1")
    st.e(f"v_lshl_add_u32 {v(vT)}, {v(vT + 1)}, 5, {v(vT)}")
    st.e(f"v_add_u32 {v(vW)}, {O_W1}, {v(vT)}")
    srd(st, R_WS, P_WS, 0x10000000)
    st.vm(f"buffer_load_dword {v(V_EP)}, off, {s(R_WS, 4)}, 0 sc1")
    st.e(f"v_and_b32 {v(vT)}, 31, {v(V_LANE)}")
    st.e(f"s_mul_i32 {s(S_T0)}, {s(S_CS)}, 192")
    st.e(f"v_lshl_add_u32 {v(vT)}, {v(vT)}, 1, {s(S_T0)}")
    for b in range(3):
        idb = st.vm(f"global_load_ushort {v(bias + 4 * b)}, {v(vT)}, {s(P_B1, 2)} offset:{64 * b}")
    st.e(f"v_add_u32 {v(vL16b)}, 3072, {v(V_L16)}")
    st.e(f"v_add_u32 {v(vL16c)}, 4096, {v(V_L16)}")
    pack_flag_addr(st, vPF, vT)
    st.e(f"v_bfe_u32 {v(vT)}, {v(V_LANE)}, 2, 1")
    st.e(f"v_mul_u32_u24 {v(vT)}, {RTS}, {v(vT)}")
    st.e(f"v_lshrrev_b32 {v(vT + 1)}, 5, {v(V_LANE)}")
    st.e(f"v_lshl_add_u32 {v(vT)}, {v(vT + 1)}, 8, {v(vT)}")
    st.e(f"v_bfe_u32 {v(vT + 1)}, {v(V_LANE)}, 3, 2")
    st.e(f"v_lshl_add_u32 {v(vT)}, {v(vT + 1)}, 6, {v(vT)}")
    st.e(f"v_and_b32 {v(vT + 1)}, 3, {v(V_LANE)}")
    st.e(f"v_lshl_add_u32 {v(vHS)}, {v(vT + 1)}, 4, {v(vT)}")
    st.e(f"s_lshl_b32 {s(S_T0)}, {s(S_RB)}, 4")
    st.e(f"s_lshl_b32 {s(S_T1)}, {s(S_W)}, 2")
    st.e(f"s_add_u32 {s(S_T0)}, {s(S_T0)}, {s(S_T1)}")
    st.e(f"s_lshl_b32 {s(S_T0)}, {s(S_T0)}, 7")
    st.e(f"s_lshl_b32 {s(S_T1)}, {s(S_HH)}, 3")
    st.e(f"s_add_u32 {s(S_T0)}, {s(S_T0)}, {s(S_T1)}")
    st.e(f"s_add_u32 {s(S_T0)}, {s(S_T0)}, {WS_FM:#x}")
    st.e(f"v_bfe_u32 {v(vT)}, {v(V_LANE)}, 1, 2")
    st.e(f"v_and_b32 {v(vT + 1)}, 1, {v(V_LANE)}")
    st.e(f"v_lshlrev_b32 {v(vT + 1)}, 2, {v(vT + 1)}")
    st.e(f"v_lshl_add_u32 {v(vT)}, {v(vT)}, 7, {v(vT + 1)}")
    st.e(f"v_add_u32 {v(vFM)}, {s(S_T0)}, {v(vT)}")
    st.e(f"s_mul_i32 {s(sWg)}, {s(S_NS)}, {NSS}")
    st.e(f"s_mul_i32 {s(S_T0)}, {s(S_W)}, {12 * 5120}")
    st.e(f"s_add_u32 {s(sWg)}, {s(sWg)}, {s(S_T0)}")
    st.e(f"s_add_u32 {s(sWg)}, {s(sWg)}, {WS_W2P:#x}")
    st.e(f"s_add_u32 {s(sW2)}, {s(sWg)}, 3072")
    st.e(f"s_mul_i32 {s(sMP)}, {s(S_W)}, 24576")
    st.e(f"v_add_u32 {v(vLW)}, {s(sMP)}, {v(V_L16)}")
    st.e(f"s_mov_b32 {s(sFS)}, {WS_FS - WS_FM:#x}")
    st.e(f"s_lshl_b32 {s(S_T1)}, {s(S_RB)}, 1")
    st.e(f"s_add_u32 {s(S_T1)}, {s(S_T1)}, {s(S_HH)}")
    st.e(f"s_mul_i32 {s(S_T1)}, {s(S_T1)}, {4 * RTS}")
    st.e(f"s_mul_i32 {s(S_T2)}, {s(S_W)}, {12 * 1024}")
    st.e(f"s_add_u32 {s(S_T1)}, {s(S_T1)}, {s(S_T2)}")
    st.e(f"s_add_u32 {s(sH)}, {s(S_T1)}, {WS_H:#x}")
    for mt in range(1, 4):
        st.e(f"s_add_u32 {s(sH + mt)}, {s(sH + mt - 1)}, {RTS}")
    for b in range(3):
        for k in range(1, 4):
            st.e(f"v_mov_b32 {v(bias + 4 * b + k)}, 0")
    st.e(f"v_mov_b32 {v(bias + 12)}, 0x3f80")
    for k in range(1, 4):
        st.e(f"v_mov_b32 {v(bias + 12 + k)}, 0")

    DIST = OPT["dist"]
    for c in range(1, DIST):
        puts(st, dma_w(c) + dma_x(c))

    def reads(c, sidx):
        p = sidx & 1
        out = [("lg", f"ds_read_b128 {v(fX[p], 4)}, {v(vX + sidx)} offset:{(c % 4) * XS}")]
        for b in range(3):
            for e2 in range(2):
                off = (c % 3) * WSZ + sidx * 3072 + e2 * 768 + b * 64
                out.append(("lg", f"ds_read_b64_tr_b16 {v(fW[p][b] + 2 * e2, 2)}, {v(vW)} offset:{off}"))
        return out

    def mfmas(c, sidx):
        p = sidx & 1
        first = (c == 0 and sidx == 0)
        return [("e", f"v_mfma_f32_32x32x16_bf16 {v(acc1[b], 16)}, {v(fW[p][b], 4)}, {v(fX[p], 4)}, "
                      + ("0" if first else v(acc1[b], 16))) for b in range(3)]

    st.wait(vm=max(ids["x", 0], ids["w", 0]))
    st.e("s_barrier")
    stamp("B0")
    puts(st, reads(0, 0))
    pfl = f"buffer_load_dword {v(vPD)}, {v(vPF)}, {s(R_WS, 4)}, 0 offen sc1"

    def span(cb):
        return split_vm(dma_w(cb + DIST) + dma_x(cb + DIST), 4) if cb + DIST <= 9 else [[], [], [], []]

    sp = [[]] + split_vm(dma_w(DIST) + dma_x(DIST), 3)
    for c in range(10):
        for sidx in range(4):
            if sidx < 3:
                st.wait(lg="all")
                sides = reads(c, sidx + 1) + sp[sidx + 1]
                if c == 3 and sidx == 0:
                    assert ids["w", 3] > idb
                    sides = sides + [("e", f"v_cmp_gt_u32 vcc, 32, {v(V_LANE)}")] + nonce_items()
                    sides += [("e", f"v_cndmask_b32 {v(bias + 4 * b)}, 0, {v(bias + 4 * b)}, vcc") for b in range(3)]
                mains = mfmas(c, sidx)
                if c == 3 and sidx == 1:
                    mains += [("e", f"v_mfma_f32_32x32x16_bf16 {v(acc1[b], 16)}, {v(bias + 4 * b, 4)}, "
                                    f"{v(bias + 12, 4)}, {v(acc1[b], 16)}") for b in range(3)]
                interleave(st, mains, sides)
            else:
                if c < 9:
                    st.wait(vm=max(ids["x", c + 1], ids["w", c + 1]), lg="all")
                else:
                    st.wait(lg="all")
                st.e("s_barrier")
                if c in (2, 5, 8):
                    stamp(f"B{c + 1}")
                sp = span(c + 1)
                sides = reads(c + 1, 0) if c < 9 else [("vm", pfl, (ids, "pf"))]
                interleave(st, mfmas(c, sidx), sides + sp[0])
    stamp("loopend")
    if OPT["prioG"]:
        st.e(f"s_setprio {OPT['prioG']}")
    st.e(f"s_lshl_b32 {s(S_T0)}, {s(S_RB)}, 2")
    st.e(f"s_add_u32 {s(S_T0)}, {s(S_T0)}, {s(S_W)}")
    st.e(f"s_mul_i32 {s(S_T0)}, {s(S_T0)}, {2 * RTS}")
    st.e(f"s_mul_i32 {s(S_T1)}, {s(S_CS)}, {12 * 256}")
    st.e(f"s_add_u32 {s(S_T0)}, {s(S_T0)}, {s(S_T1)}")
    st.e(f"s_add_u32 {s(S_T0)}, {s(S_T0)}, {WS_H:#x}")
    st.nop(6)
    for b in range(3):
        for e2 in range(2):
            a0 = acc1[b] + 8 * e2
            for j in range(8):
                st.e(f"v_max_f32 {v(a0 + j)}, 0, {v(a0 + j)}")
            for j in range(0, 8, 2):
                st.e(f"v_pk_mul_f32 {v(a0 + j, 2)}, {v(a0 + j, 2)}, {v(a0 + j, 2)}")
            for j in range(4):
                st.e(f"v_cvt_pk_bf16_f32 {v(cv + 8 * b + 4 * e2 + j)}, {v(a0 + 2 * j)}, {v(a0 + 2 * j + 1)}")
            hst = st.vm(f"buffer_store_dwordx4 {v(cv + 8 * b + 4 * e2, 4)}, {v(vHS)}, {s(R_WS, 4)}, {s(S_T0)} "
                        f"offen offset:{b * 1024 + e2 * 512} sc1")
    stamp("Hstored")
    acc2 = BIG
    Hb = [BIG + 80 + 16 * d for d in range(D)]
    Wb = [BIG + 80 + 16 * D + 20 * d for d in range(D)]
    assert Wb[-1] + 20 <= 256
    NST = 22
    state = dict(w=0, h=0)
    last = {}

    def w_loads(i):
        out = []
        assert state["w"] == i
        if i == 12:
            out.append(("e", f"s_mul_i32 {s(S_T2)}, {s(S_W)}, {2 * 5120}"))
            out.append(("e", f"s_sub_u32 {s(sWg)}, {s(sWg)}, {s(S_T2)}"))
            out.append(("e", f"s_add_u32 {s(sWg)}, {s(sWg)}, {36 * 5120}"))
        for nt in (range(3) if i < 12 else range(5)):
            va, off = (V_L16, nt * 1024) if nt < 4 else (vL16c, 0)
            out.append(("vm", f"buffer_load_dwordx4 {v(Wb[i % D] + 4 * nt, 4)}, {v(va)}, {s(R_WS, 4)}, {s(sWg)} "
                              f"offen offset:{off} sc1", (last, ("w", i))))
        out.append(("e", f"s_add_u32 {s(sWg)}, {s(sWg)}, 5120"))
        state["w"] += 1
        return out

    def h_loads(i):
        out = []
        assert state["h"] == i
        j = i if i < 12 else i - 12
        if i == 12:
            out.append(("e", f"s_mul_i32 {s(S_T2)}, {s(S_W)}, {2 * 1024}"))
            out.append(("e", f"s_sub_u32 {s(S_T2)}, {36 * 1024 + 4096}, {s(S_T2)}"))
            for mt in range(4):
                out.append(("e", f"s_add_u32 {s(sH + mt)}, {s(sH + mt)}, {s(S_T2)}"))
        elif j % 4 == 0 and j > 0:
            for mt in range(4):
                out.append(("e", f"s_add_u32 {s(sH + mt)}, {s(sH + mt)}, 4096"))
        for mt in range(4):
            out.append(("vm", f"buffer_load_dwordx4 {v(Hb[i % D] + 4 * mt, 4)}, {v(V_L16)}, {s(R_WS, 4)}, {s(sH + mt)} "
                              f"offen offset:{(j % 4) * 1024} sc1", (last, ("h", i))))
        state["h"] += 1
        return out

    def tile_dma(g):
        return [("e", f"s_add_u32 m0, {s(sMP)}, {g * 4096}"),
                ("e", "s_nop 0"),
                ("vm", f"buffer_load_dwordx4 {v(V_L16)}, {s(R_WS, 4)}, {s(sW2)} offen sc1 lds"),
                ("vm", f"buffer_load_dwordx4 {v(V_L16)}, {s(R_WS, 4)}, {s(sW2)} offen offset:1024 sc1 lds"),
                ("vm", f"buffer_load_dwordx4 {v(vL16b)}, {s(R_WS, 4)}, {s(sW2)} offen offset:2048 sc1 lds"),
                ("vm", f"buffer_load_dwordx4 {v(vL16b)}, {s(R_WS, 4)}, {s(sW2)} offen offset:3072 sc1 lds", (last, ("t", g))),
                ("e", f"s_add_u32 {s(sW2)}, {s(sW2)}, {2 * 5120}")]

    def lds_w(i):
        return [("lg", f"ds_read_b128 {v(Wb[i % D] + 12 + 4 * k, 4)}, {v(vLW)} offset:{i * 2048 + k * 1024}")
                for k in range(2)]

    st.wait(vm=ids["pf"])
    flag_check(st, vPD, pfl)
    if OPT["prioG"]:
        st.e("s_setprio 0")
    pre = []
    for g in range(6):
        if 2 * g < D:
            pre += w_loads(2 * g)
        pre += tile_dma(g)
        if 2 * g + 1 < D:
            pre += w_loads(2 * g + 1)
    k, nvm = 0, 0
    while k < len(pre) and (nvm < OPT["npre"] or pre[k][0] != "e" or not pre[k][1].startswith("s_add_u32 m0")):
        put(st, pre[k])
        nvm += pre[k][0] == "vm"
        k += 1
    rest = pre[k:]
    st.e(f"s_lshl_b32 {s(S_T0)}, {s(S_RB)}, 4")
    st.e(f"s_add_u32 {s(S_T0)}, {s(S_T0)}, {s(S_CS)}")
    st.e(f"s_lshl_b32 {s(S_T0)}, {s(S_T0)}, 5")
    st.e(f"s_add_u32 {s(S_T0)}, {s(S_T0)}, {s(S_W)}")
    st.e(f"s_lshl_b32 {s(S_T0)}, {s(S_T0)}, 2")
    st.e(f"s_add_u32 {s(S_T0)}, {s(S_T0)}, {WS_FM:#x}")
    st.e(f"v_mov_b32 {v(vT)}, {s(S_NONCE)}")
    if OPT["prioG"]:
        st.e(f"s_setprio {OPT['prioG']}")
    st.wait(vm=hst)
    st.vm(one_lane_store(vT, s(S_T0)))
    stamp("FMset")

    def poll(reg, fs):
        return f"buffer_load_dword {v(vPD + reg)}, {v(vFM)}, {s(R_WS, 4)}, {s(sFS) if fs else 0} offen sc1"

    if OPT["prioG"]:
        st.e("s_setprio 0")
    nrest = sum(it[0] == "vm" for it in rest)
    k, nvm, pid = 0, 0, None
    for it in rest:
        if pid is None and nvm >= nrest - OPT["npost"] and it[1].startswith("s_add_u32 m0"):
            pid = st.vm(poll(0, False))
        put(st, it)
        nvm += it[0] == "vm"
    if pid is None:
        pid = st.vm(poll(0, False))
    st.wait(vm=pid)
    flag_check(st, vPD, poll(0, False), mask=0x3)
    stamp("FMok")
    for i in range(D - 1):
        puts(st, h_loads(i))
    st.wait(vm=last["t", 0])
    puts(st, lds_w(0))
    need = {3: (False, 1), 6: (False, 2), 9: (False, 3), 12: (True, 0), 14: (True, 1), 17: (True, 2), 19: (True, 3)}
    pollreg = {}
    vER = vDX
    epi = {}
    preg = 1
    for i in range(NST):
        p = i % D
        sides = []
        nxt = i + D - 1
        if nxt + 2 in need:
            fs, kk = need[nxt + 2]
            pollreg[nxt + 2] = preg
            sides.append(("vm", poll(preg, fs), (last, ("p", nxt + 2))))
            preg ^= 1
        w_ids = [last["h", i], last["w", i]]
        if i + 1 < 12:
            w_ids.append(last["t", (i + 1) >> 1])
        if nxt in need and ("p", nxt) in last:
            w_ids.append(last["p", nxt])
        st.wait(vm=max(w_ids), lg="all")
        if nxt in need:
            fs, kk = need[nxt]
            r = pollreg.get(nxt, 0)
            flag_check(st, vPD + r, poll(r, fs), mask=0x3 << (2 * kk))
            if nxt == 12:
                stamp("FSok")
        if i == 10:
            st.e(f"v_mov_b32 {v(vW)}, {SY}")
            lds_flag_wait(st, vW, 32, vT)
            st.e(f"v_and_b32 {v(vT)}, 15, {v(V_LANE)}")
            st.e(f"s_lshl_b32 {s(S_T0)}, {s(S_HH)}, 8")
            st.e(f"s_add_u32 {s(S_T0)}, {s(S_T0)}, {GB}")
            st.e(f"v_lshl_add_u32 {v(vT)}, {v(vT)}, 2, {s(S_T0)}")
            for mt in range(4):
                sides.append(("lg", f"ds_read_b32 {v(vG + mt)}, {v(vT)} offset:{64 * mt}"))
        if i == 11:
            for mt in range(4):
                sides.append(("e", f"v_sub_f32 {v(vG + mt)}, 1.0, {v(vG + mt)}"))
        if i == 12:
            stamp("mlpend")
            st.nop(4)
            for mt in range(4):
                for nt in range(5):
                    a0 = acc2 + 20 * mt + 4 * nt
                    for k in range(4):
                        st.e(f"v_mul_f32 {v(a0 + k)}, {v(vG + mt)}, {v(a0 + k)}")
            st.nop(2)
        if i == NST - 2:
            st.e("s_barrier")
        if nxt < NST:
            if nxt >= D:
                sides += w_loads(nxt)
            sides += h_loads(nxt)
        if i + 1 < 12:
            sides += lds_w(i + 1)
        if i == NST - D + 1:
            fr = Hb[(i - 1) % D]
            epi["x"], epi["dsk"], epi["b2"] = fr, fr + 12, fr + 14
            sides.append(("e", f"v_mul_u32_u24 {v(vER)}, 205, {v(V_LANE)}"))
            sides.append(("e", f"v_lshrrev_b32 {v(vER)}, 12, {v(vER)}"))
            sides.append(("e", f"v_mul_u32_u24 {v(vER + 1)}, 20, {v(vER)}"))
            sides.append(("e", f"v_sub_u32 {v(vER + 1)}, {v(V_LANE)}, {v(vER + 1)}"))
            sides.append(("e", f"s_mul_i32 {s(S_T0)}, {s(S_NS)}, 160"))
            sides.append(("e", f"v_lshl_add_u32 {v(vER + 2)}, {v(vER + 1)}, 3, {s(S_T0)}"))
            sides.append(("vm", f"global_load_dwordx2 {v(epi['dsk'], 2)}, {v(vER + 2)}, {s(P_DSK, 2)}"))
            sides.append(("vm", f"global_load_dwordx2 {v(epi['b2'], 2)}, {v(vER + 2)}, {s(P_B2, 2)}"))
            sides.append(("e", f"s_lshl_b32 {s(S_T1)}, {s(S_RB)}, 1"))
            sides.append(("e", f"s_add_u32 {s(S_T1)}, {s(S_T1)}, {s(S_HH)}"))
            sides.append(("e", f"s_lshl_b32 {s(S_T1)}, {s(S_T1)}, 2"))
            sides.append(("e", f"s_add_u32 {s(S_T1)}, {s(S_T1)}, {s(S_W)}"))
            sides.append(("e", f"s_mul_i32 {s(sOW)}, {s(S_T1)}, {16 * 1280}"))
            sides.append(("e", f"v_mul_u32_u24 {v(vER + 3)}, 1280, {v(vER)}"))
            sides.append(("e", f"v_add_u32 {v(vER + 3)}, {v(vER + 3)}, {v(vER + 2)}"))
            for k in range(6):
                sides.append(("vm", f"buffer_load_dwordx2 {v(epi['x'] + 2 * k, 2)}, {v(vER + 3)}, {s(R_X, 4)}, {s(sOW)} offen",
                              (epi, "id")))
                if k < 5:
                    sides.append(("e", f"s_add_u32 {s(sOW)}, {s(sOW)}, {3 * 1280}"))
        mains = []
        for mt in range(4):
            for nt in range(5):
                a0 = acc2 + 20 * mt + 4 * nt
                cin = "0" if i == 0 else v(a0, 4)
                mains.append(("e", f"v_mfma_f32_16x16x32_bf16 {v(a0, 4)}, {v(Wb[p] + 4 * nt, 4)}, {v(Hb[p] + 4 * mt, 4)}, {cin}"))
        interleave(st, mains, sides)
        if i == NST - 2:
            fe = Wb[(i - 1) % D]
            fe2 = Hb[(i - 1) % D]
            E = [fe + 4 * k for k in range(5)] + [fe2]
            un = fe2 + 4
            st.e(f"s_lshl_b32 {s(S_T0)}, {s(S_HH)}, 2")
            st.e(f"s_add_u32 {s(S_T0)}, {s(S_T0)}, {s(S_W)}")
            st.e(f"s_lshl_b32 {s(S_T0)}, {s(S_T0)}, 6")
            st.e(f"s_add_u32 {s(S_T0)}, {s(S_T0)}, {GB}")
            st.e(f"v_lshl_add_u32 {v(vT)}, {v(vER)}, 2, {s(S_T0)}")
            gks = [vX, vX + 1, vX + 2, vX + 3, vG, vG + 1]
            for k in range(6):
                st.lg(f"ds_read_b32 {v(gks[k])}, {v(vT)} offset:{12 * k}")
            st.e(f"v_mov_b32 {v(vT + 1)}, 0xffff0000")
            st.wait(vm=epi["id"], lg="all")
            for q, src in ((0, epi["dsk"]), (4, epi["b2"])):
                st.e(f"v_lshlrev_b32 {v(un + q)}, 16, {v(src)}")
                st.e(f"v_and_b32 {v(un + q + 1)}, {v(vT + 1)}, {v(src)}")
                st.e(f"v_lshlrev_b32 {v(un + q + 2)}, 16, {v(src + 1)}")
                st.e(f"v_and_b32 {v(un + q + 3)}, {v(vT + 1)}, {v(src + 1)}")
            for k in range(6):
                xs = epi["x"] + 2 * k
                st.e(f"v_lshlrev_b32 {v(E[k])}, 16, {v(xs)}")
                st.e(f"v_and_b32 {v(E[k] + 1)}, {v(vT + 1)}, {v(xs)}")
                st.e(f"v_lshlrev_b32 {v(E[k] + 2)}, 16, {v(xs + 1)}")
                st.e(f"v_and_b32 {v(E[k] + 3)}, {v(vT + 1)}, {v(xs + 1)}")
                for q in range(4):
                    st.e(f"v_fma_f32 {v(E[k] + q)}, {v(E[k] + q)}, {v(un + q)}, -{v(un + 4 + q)}")
                for q in range(4):
                    st.e(f"v_fma_f32 {v(E[k] + q)}, {v(E[k] + q)}, {v(gks[k])}, {v(un + 4 + q)}")
            epi["E"] = E
            st.e(f"v_and_b32 {v(vT)}, 15, {v(V_LANE)}")
            st.e(f"v_mul_u32_u24 {v(vT)}, 336, {v(vT)}")
            st.e(f"v_lshrrev_b32 {v(vT + 1)}, 4, {v(V_LANE)}")
            st.e(f"v_lshl_add_u32 {v(vT)}, {v(vT + 1)}, 4, {v(vT)}")
            st.e(f"s_mul_i32 {s(S_T0)}, {s(S_W)}, {PARTW}")
            st.e(f"v_add_u32 {v(vT)}, {s(S_T0)}, {v(vT)}")
            st.e(f"s_mul_i32 {s(S_T0)}, {s(S_W)}, {16 * 336}")
            st.e(f"v_mul_u32_u24 {v(vT + 1)}, 336, {v(vER)}")
            st.e(f"v_lshl_add_u32 {v(vT + 1)}, {v(vER + 1)}, 4, {v(vT + 1)}")
            st.e(f"v_add_u32 {v(vT + 1)}, {s(S_T0)}, {v(vT + 1)}")
            st.e(f"v_add_u32 {v(vT + 2)}, {2 * PARTW}, {v(vT + 1)}")
            srd(st, R_W1, P_OUT, 2048 * 2560)
            st.e(f"v_mul_u32_u24 {v(vER + 3)}, 2560, {v(vER)}")
            st.e(f"v_lshl_add_u32 {v(vER + 3)}, {v(vER + 2)}, 1, {v(vER + 3)}")
            st.e(f"v_cmp_gt_u32 vcc, 60, {v(V_LANE)}")
            st.e(f"v_mov_b32 {v(vER + 2)}, 0x80000000")
            st.e(f"s_mul_i32 {s(sOW)}, {s(S_T1)}, {16 * 2560}")
            st.e(f"v_cndmask_b32 {v(vER + 3)}, {v(vER + 2)}, {v(vER + 3)}, vcc")
            st.e(f"v_cmp_gt_u32 vcc, 20, {v(V_LANE)}")
            st.e("s_nop 1")
            st.e(f"v_cndmask_b32 {v(vER + 2)}, {v(vER + 2)}, {v(vER + 3)}, vcc")
    stamp("kend")
    R_O = R_W1
    for mt in range(4):
        for nt in range(5):
            if mt == 3 and nt == 0:
                st.wait(lg=st.lg_issued - 4)
            st.lg(f"ds_write_b128 {v(vT)}, {v(acc2 + 20 * mt + 4 * nt, 4)} offset:{mt * 16 * 336 + nt * 64}")
    st.wait(lg="all")
    st.e("s_barrier")
    stamp("red")
    E = epi["E"]
    busy = set()
    for r in E:
        busy.update(range(r, r + 4))
    free = [r for r in range(BIG, 256, 4) if not (set(range(r, r + 4)) & busy)]
    rd = {(k, pw): free[4 * k + pw] for k in range(6) for pw in range(4)}
    lgid = {}

    def issue_reads(k):
        for pw in range(4):
            ra = vT + 1 + (pw >> 1)
            lgid[k] = st.lg(f"ds_read_b128 {v(rd[k, pw], 4)}, {v(ra)} offset:{(pw & 1) * PARTW + k * 3 * 336}")

    opol = {0: "", 1: " sc1", 2: " nt", 3: " sc0 sc1", 4: " sc1 nt"}[OPT["outpol"]]
    for k in range(3):
        issue_reads(k)
    for k in range(6):
        st.wait(lg=lgid[k])
        if k + 3 < 6:
            issue_reads(k + 3)
        for q in (0, 2):
            st.e(f"v_pk_add_f32 {v(rd[k, 0] + q, 2)}, {v(rd[k, 0] + q, 2)}, {v(rd[k, 1] + q, 2)}")
            st.e(f"v_pk_add_f32 {v(rd[k, 2] + q, 2)}, {v(rd[k, 2] + q, 2)}, {v(rd[k, 3] + q, 2)}")
        for q in (0, 2):
            st.e(f"v_pk_add_f32 {v(E[k] + q, 2)}, {v(E[k] + q, 2)}, {v(rd[k, 0] + q, 2)}")
        for q in (0, 2):
            st.e(f"v_pk_add_f32 {v(E[k] + q, 2)}, {v(E[k] + q, 2)}, {v(rd[k, 2] + q, 2)}")
        st.vm(f"buffer_store_dwordx4 {v(E[k], 4)}, {v(vER + 3 if k < 5 else vER + 2)}, {s(R_O, 4)}, {s(sOW)} offen{opol}")
        if k < 5:
            st.e(f"s_add_u32 {s(sOW)}, {s(sOW)}, {3 * 2560}")
    skip = newlabel("noep")
    st.e(f"s_lshl_b32 {s(S_T0)}, {s(S_CS)}, 2")
    st.e(f"s_add_u32 {s(S_T0)}, {s(S_T0)}, {s(S_W)}")
    st.e(f"s_lshl_b32 {s(S_T0)}, {s(S_T0)}, 4")
    st.e(f"s_add_u32 {s(S_T0)}, {s(S_T0)}, {s(S_RB)}")
    st.e(f"s_cmp_lg_u32 {s(S_T0)}, 15")
    st.e(f"s_cbranch_scc1 {skip}")
    st.e(f"v_mov_b32 {v(vT)}, {s(S_NONCE)}")
    st.e(one_lane_store(vT, "0"))
    st.label(skip)
    stamp("end")
    stamp.flush(vT)
    if OPT["pad"]:
        if OPT["cycA"]:
            st.e("s_waitcnt lgkmcnt(0)")
            st.e("s_sub_u32 s98, s100, s98")
            st.e("s_lshr_b32 s98, s98, 3")
            st.e(f"s_add_u32 {s(stamp.rt0)}, {s(stamp.rt0)}, s98")
        st.label("L_pad")
        st.e(f"s_memrealtime {s(S_T0, 2)}")
        st.e("s_waitcnt lgkmcnt(0)")
        st.e(f"s_sub_u32 {s(S_T0)}, {s(S_T0)}, {s(stamp.rt0)}")
        st.e(f"s_cmp_lt_i32 {s(S_T0)}, {OPT['pad'] * 100}")
        st.e("s_cbranch_scc1 L_pad")
    st.e("s_endpgm")
    return stamp.names


def gen_S(st):
    sr = Regs("s", S_FREE, 102)
    vr = Regs("v", 4, 256)
    st.label("L_S")
    R_A = sr.alloc("R_A", 4, 4)
    R_B = sr.alloc("R_B", 4, 4)
    sE5 = sr.alloc("sE5", 2)
    sOA, sOB, sMA, sMB, sTy = [sr.alloc(n) for n in ("sOA", "sOB", "sMA", "sMB", "sTy")]
    sP = sr.alloc("sP", 4)
    sQ = sr.alloc("sQ", 4)
    R_P, R_Q = 20, 4
    sMask = [P_X, P_DSK, P_BX, P_B1, P_B2, P_OUT, P_DBG]
    vDA = vr.alloc("vDA", 3)
    vX = vr.alloc("vX", 4)
    vB = vr.alloc("vB", 4)
    vB2 = vr.alloc("vB2", 4)
    vPK = vr.alloc("vPK")
    vPR = vr.alloc("vPR")
    vSig = vr.alloc("vSig")
    vSgn = vr.alloc("vSgn")
    vDum = vr.alloc("vDum")
    vA = vr.alloc("vA", 6)
    vC = vr.alloc("vC", 4)
    vT = vr.alloc("vT", 4, 4)
    acc = [vr.alloc(f"acc{b}", 16, 4) for b in range(3)]
    frag = vr.alloc("frag", 32, 4)
    fX = [frag + 16 * p for p in range(2)]
    fB = [[frag + 16 * p + 4 + 4 * b for b in range(3)] for p in range(2)]
    names = ["lr", "li", "l16r", "l16i", "psr", "psi", "qr", "qi", "r8r", "r8i", "A", "Bc"]
    K = {n: [vr.alloc(f"{n}{b}") for b in range(3)] for n in names}
    tn = ["Lr", "Li", "dt", "la", "rv", "m", "an", "cs", "liu"]
    Tm = {n: [vr.alloc(f"t{n}{b}") for b in range(3)] for n in tn}
    big = vr.alloc("big", 48, 4)

    st.e(f"s_sub_u32 {s(S_W)}, {s(S_W)}, 4")
    ncp = 0
    if OPT["cpf"]:
        skip = newlabel("nocp")
        st.e(f"s_cmp_lg_u32 {s(S_W)}, 3")
        st.e(f"s_cbranch_scc1 {skip}")
        st.e(f"s_getpc_b64 {s(S_T2, 2)}")
        st.label("L_pc")
        st.e(f"s_sub_u32 {s(S_T2)}, {s(S_T2)}, L_pc-{NAME}_kernel")
        st.e(f"s_subb_u32 {s(S_T3)}, {s(S_T3)}, 0")
        st.e(f"v_and_b32 {v(vT)}, 7, {v(V_LANE)}")
        st.e(f"v_lshl_add_u32 {v(vT)}, {v(vT)}, 5, {s(S_T1)}")
        st.e(f"v_min_u32 {v(vT)}, (L_end-{NAME}_kernel)/128, {v(vT)}")
        st.e(f"v_lshlrev_b32 {v(vT)}, 7, {v(vT)}")
        st.e("s_mov_b64 exec, 0xff")
        st.e(f"global_load_dword {v(vDum)}, {v(vT)}, {s(S_T2, 2)}")
        st.e("s_mov_b64 exec, -1")
        st.label(skip)
    st.e(f"v_lshrrev_b32 {v(vT)}, 3, {v(V_LANE)}")
    st.e(f"v_mul_u32_u24 {v(vT)}, 1280, {v(vT)}")
    st.e(f"v_and_b32 {v(vT + 1)}, 7, {v(V_LANE)}")
    st.e(f"v_lshl_add_u32 {v(vPK)}, {v(vT + 1)}, 4, {v(vT)}")
    st.e(f"s_lshr_b32 {s(S_T0)}, {s(S_W)}, 1")
    st.e(f"s_and_b32 {s(S_T1)}, {s(S_W)}, 1")
    st.e(f"s_xor_b32 {s(S_T2)}, {s(S_T0)}, {s(S_T1)}")
    st.e(f"s_lshl_b32 {s(S_T2)}, {s(S_T2)}, 2")
    st.e(f"v_lshrrev_b32 {v(vT + 1)}, 4, {v(V_LANE)}")
    st.e(f"v_xor_b32 {v(vT + 1)}, {s(S_T2)}, {v(vT + 1)}")
    st.e(f"v_lshlrev_b32 {v(vT + 1)}, 4, {v(vT + 1)}")
    st.e(f"v_xor_b32 {v(vDA)}, {v(vT + 1)}, {v(vPK)}")
    st.e(f"v_xor_b32 {v(vDA + 1)}, 64, {v(vDA)}")
    st.e(f"v_add_u32 {v(vDA + 1)}, {10240 - 1024}, {v(vDA + 1)}")
    st.e(f"v_add_u32 {v(vDA + 2)}, {2 * 10240}, {v(vDA)}")
    st.e(f"s_mul_i32 {s(sOA)}, {s(S_CS)}, {40 * 1280}")
    st.e(f"s_mul_i32 {s(S_T2)}, {s(S_T1)}, {24 * 1280}")
    st.e(f"s_add_u32 {s(sOA)}, {s(sOA)}, {s(S_T2)}")
    st.e(f"s_mul_i32 {s(sMA)}, {s(S_T0)}, 5120")
    st.e(f"s_mul_i32 {s(S_T2)}, {s(S_T1)}, 3072")
    st.e(f"s_add_u32 {s(sMA)}, {s(sMA)}, {s(S_T2)}")
    st.e(f"s_add_u32 {s(sMA)}, {s(sMA)}, {O_B}")
    st.e(f"s_add_u32 {s(sMB)}, {s(sMA)}, 2048")
    st.e(f"s_cmp_eq_u32 {s(S_T1)}, 0")
    st.e(f"s_cselect_b64 vcc, -1, 0")
    st.e(f"s_cselect_b32 {s(sOB)}, {s(sOA)}, 0")
    st.e(f"s_cselect_b32 {s(sMB)}, {s(sMB)}, {O_B + 10240}")
    st.e(f"s_cselect_b64 {s(sE5, 2)}, -1, 0xff")
    st.e(f"v_cndmask_b32 {v(vDA + 2)}, {v(V_L16)}, {v(vDA + 2)}, vcc")
    st.e("s_waitcnt lgkmcnt(0)")
    stamp = Stamper(st, sr, "S", 11)
    stamp("start")
    st.e(f"s_cmp_eq_u32 {s(S_T0)}, 0")
    st.e(f"s_cselect_b32 {s(R_A)}, {s(P_BRE)}, {s(P_BIM)}")
    st.e(f"s_cselect_b32 {s(R_A + 1)}, {s(P_BRE + 1)}, {s(P_BIM + 1)}")
    st.e(f"s_mov_b32 {s(R_A + 2)}, {640 * 1280:#x}")
    st.e(f"s_mov_b32 {s(R_A + 3)}, 0x20000")
    st.e(f"s_cmp_eq_u32 {s(S_T1)}, 0")
    st.e(f"s_cselect_b32 {s(R_B)}, {s(R_A)}, {s(P_GATE)}")
    st.e(f"s_cselect_b32 {s(R_B + 1)}, {s(R_A + 1)}, {s(P_GATE + 1)}")
    st.e(f"s_cselect_b32 {s(R_B + 2)}, {s(R_A + 2)}, 1280")
    st.e(f"s_mov_b32 {s(R_B + 3)}, 0x20000")
    ids = {}

    def dma_b(c):
        so = (c % 4) * BS
        return [("e", f"s_add_u32 m0, {s(sMA)}, {so}"),
                ("e", "s_nop 0"),
                ("vm", f"buffer_load_dwordx4 {v(vDA)}, {s(R_A, 4)}, {s(sOA)} offen lds"),
                ("vm", f"buffer_load_dwordx4 {v(vDA + 1)}, {s(R_A, 4)}, {s(sOA)} offen offset:1024 lds"),
                ("e", f"s_add_u32 m0, {s(sMB)}, {so}"),
                ("e", f"s_add_u32 {s(sOA)}, {s(sOA)}, 128"),
                ("vm", f"s_mov_b64 exec, {s(sE5, 2)}\n"
                       f"    buffer_load_dwordx4 {v(vDA + 2)}, {s(R_B, 4)}, {s(sOB)} offen lds\n"
                       f"    s_mov_b64 exec, -1", (ids, ("b", c))),
                ("e", f"s_add_u32 {s(sOB)}, {s(sOB)}, 128")]

    puts(st, dma_b(0))
    xread_addrs(st, vX, vT)
    st.e(f"v_and_b32 {v(vT)}, 1, {v(V_LANE)}")
    st.e(f"v_bfe_u32 {v(vT + 1)}, {v(V_LANE)}, 1, 4")
    st.e(f"v_mad_u32_u24 {v(vT + 1)}, {v(vT)}, 40, {v(vT + 1)}")
    st.e(f"v_bfe_u32 {v(vT + 2)}, {v(vT + 1)}, 1, 3")
    st.e(f"v_lshrrev_b32 {v(vT + 3)}, 5, {v(V_LANE)}")
    st.e(f"v_xor_b32 {v(vT + 2)}, {v(vT + 2)}, {v(vT + 3)}")
    st.e(f"v_lshlrev_b32 {v(vT + 2)}, 4, {v(vT + 2)}")
    st.e(f"v_lshl_add_u32 {v(vT + 1)}, {v(vT + 1)}, 7, {v(vT + 2)}")
    st.e(f"v_add_u32 {v(vB)}, {O_B}, {v(vT + 1)}")
    st.e(f"v_add_u32 {v(vB2)}, 4096, {v(vB)}")
    st.e(f"v_lshlrev_b32 {v(vT + 1)}, 4, {v(vT + 3)}")
    st.e(f"v_add_u32 {v(vT + 1)}, {O_B + 10240}, {v(vT + 1)}")
    st.e(f"v_and_b32 {v(vT + 2)}, 16, {v(V_LANE)}")
    st.e(f"v_cmp_eq_u32 vcc, 0, {v(vT + 2)}")
    st.e(f"s_lshl_b32 {s(S_T0)}, {s(S_W)}, 1")
    st.e(f"v_add_u32 {v(vSig)}, {s(S_T0)}, {v(vT + 3)}")
    st.e(f"v_cndmask_b32 {v(vB2)}, {v(vT + 1)}, {v(vB2)}, vcc")
    for base in (vB, vB2):
        for k in range(1, 4):
            st.e(f"v_xor_b32 {v(base + k)}, {32 * k}, {v(base)}")
    st.e(f"v_cvt_f32_u32 {v(vT)}, {v(vT)}")
    st.e(f"v_fma_f32 {v(vSgn)}, {v(vT)}, 2.0, -1.0")
    if OPT["pf"]:
        l1, l2, le = newlabel("pf"), newlabel("pf"), newlabel("pfe")
        st.e(f"v_mul_u32_u24 {v(vT)}, 43, {v(V_LANE)}")
        st.e(f"v_lshrrev_b32 {v(vT)}, 8, {v(vT)}")
        st.e(f"v_mul_u32_u24 {v(vT + 1)}, {1280 - 6 * 128}, {v(vT)}")
        st.e(f"v_lshl_add_u32 {v(vT + 1)}, {v(V_LANE)}, 7, {v(vT + 1)}")
        st.e(f"s_cmp_eq_u32 {s(S_W)}, 1")
        st.e(f"s_cbranch_scc1 {l1}")
        st.e(f"s_cmp_ge_u32 {s(S_W)}, 2")
        st.e(f"s_cbranch_scc1 {l2}")
        st.e(f"s_lshl_b32 {s(S_T0)}, {s(S_RB)}, 4")
        st.e(f"s_add_u32 {s(S_T0)}, {s(S_T0)}, {s(S_CS)}")
        st.e(f"s_mul_i32 {s(S_T0)}, {s(S_T0)}, {8 * 1280}")
        st.e(f"s_add_u32 {s(S_T0)}, {s(S_T0)}, 512")
        st.e(f"v_add_u32 {v(vT + 1)}, {s(S_T0)}, {v(vT + 1)}")
        st.e(f"s_mov_b64 {s(S_T2, 2)}, {s(P_X, 2)}")
        st.e("s_mov_b32 exec_hi, 0xffff")
        st.e(f"s_branch {le}")
        st.label(l1)
        st.e(f"s_and_b32 {s(S_T0)}, {s(S_RB)}, 7")
        st.e(f"s_mul_i32 {s(S_T0)}, {s(S_T0)}, 5")
        st.e(f"s_mul_i32 {s(S_T1)}, {s(S_CS)}, 40")
        st.e(f"s_add_u32 {s(S_T0)}, {s(S_T0)}, {s(S_T1)}")
        st.e(f"s_mul_i32 {s(S_T0)}, {s(S_T0)}, 1280")
        st.e(f"s_add_u32 {s(S_T0)}, {s(S_T0)}, 512")
        st.e(f"v_add_u32 {v(vT + 1)}, {s(S_T0)}, {v(vT + 1)}")
        st.e(f"s_cmp_lt_u32 {s(S_RB)}, 8")
        st.e(f"s_cselect_b64 {s(S_T2, 2)}, {s(P_BRE, 2)}, {s(P_BIM, 2)}")
        st.e("s_mov_b64 exec, 0x3fffffff")
        st.e(f"s_branch {le}")
        st.label(l2)
        st.e(f"s_lshl_b32 {s(S_T0)}, s2, 1")
        st.e(f"s_add_u32 {s(S_T0)}, {s(S_T0)}, {s(S_W)}")
        st.e(f"s_mul_i32 {s(S_T0)}, {s(S_T0)}, {21 * 128}")
        st.e(f"s_add_u32 {s(S_T0)}, {s(S_T0)}, {192 * 3072 - 2 * 21 * 128}")
        st.e(f"v_lshl_add_u32 {v(vT + 1)}, {v(V_LANE)}, 7, {s(S_T0)}")
        st.e(f"s_mov_b64 {s(S_T2, 2)}, {s(P_W1, 2)}")
        st.e("s_mov_b64 exec, 0x1fffff")
        st.label(le)
        st.vm(f"global_load_dword {v(vDum)}, {v(vT + 1)}, {s(S_T2, 2)}")
        st.e("s_mov_b64 exec, -1")
    srd(st, R_WS, P_WS, 0x10000000)
    st.vm(f"buffer_load_dword {v(V_EP)}, off, {s(R_WS, 4)}, 0 sc1")
    st.e(f"v_bfe_u32 {v(vT)}, {v(V_LANE)}, 1, 4")
    st.e(f"s_mul_i32 {s(S_T0)}, {s(S_CS)}, 40")
    st.e(f"v_add_u32 {v(vT)}, {s(S_T0)}, {v(vT)}")
    st.e(f"v_add_u32 {v(vT + 1)}, 32, {v(vT)}")
    st.e(f"v_min_u32 {v(vT + 1)}, 639, {v(vT + 1)}")
    st.e(f"v_lshlrev_b32 {v(vT)}, 1, {v(vT)}")
    st.e(f"v_lshlrev_b32 {v(vT + 1)}, 1, {v(vT + 1)}")
    for n, ptr in (("Lr", P_LRE), ("Li", P_LIM), ("dt", P_LDT)):
        st.vm(f"global_load_ushort {v(Tm[n][0])}, {v(vT)}, {s(ptr, 2)}")
        st.vm(f"global_load_ushort {v(Tm[n][1])}, {v(vT)}, {s(ptr, 2)} offset:32")
        par_id = st.vm(f"global_load_ushort {v(Tm[n][2])}, {v(vT + 1)}, {s(ptr, 2)}")
    st.e(f"v_mov_b32 {v(vT + 1)}, {SY}")
    st.e(f"v_lshl_add_u32 {v(vT + 1)}, {v(V_LANE)}, 2, {v(vT + 1)}")
    st.e(f"v_mov_b32 {v(vT + 2)}, 0")
    st.e("s_mov_b64 exec, 0xffff")
    st.lg(f"ds_write_b32 {v(vT + 1)}, {v(vT + 2)}")
    st.e("s_mov_b64 exec, -1")
    lC, lJ = newlabel("packC"), newlabel("packJ")
    st.e(f"s_lshl_b32 {s(S_T0)}, s2, 2")
    st.e(f"s_add_u32 {s(S_T0)}, {s(S_T0)}, {s(S_W)}")
    st.e(f"s_sub_u32 {s(S_T1)}, {s(S_T0)}, 880")
    st.e(f"s_cselect_b32 {s(S_T0)}, {s(S_T0)}, {s(S_T1)}")
    st.e(f"s_sub_u32 {s(S_T1)}, {s(S_T0)}, 480")
    st.e(f"s_cselect_b32 {s(sTy)}, 0, 1")
    st.e(f"s_cselect_b32 {s(S_T1)}, {s(S_T0)}, {s(S_T1)}")
    st.e(f"s_mul_i32 {s(S_T2)}, {s(S_T1)}, 6554")
    st.e(f"s_lshr_b32 {s(S_T2)}, {s(S_T2)}, 16")
    st.e(f"s_mul_i32 {s(S_T3)}, {s(S_T2)}, 10")
    st.e(f"s_sub_u32 {s(S_T3)}, {s(S_T1)}, {s(S_T3)}")
    st.e(f"s_lshl_b32 {s(S_T0)}, {s(S_W)}, 12")
    st.e(f"s_add_u32 {s(S_T0)}, {s(S_T0)}, {PS}")
    st.e(f"v_lshrrev_b32 {v(vT + 1)}, 5, {v(V_LANE)}")
    st.e(f"s_cmp_eq_u32 {s(sTy)}, 1")
    st.e(f"s_cbranch_scc1 {lC}")
    st.e(f"v_bfe_u32 {v(vT)}, {v(V_LANE)}, 2, 3")
    st.e(f"v_lshl_add_u32 {v(vT)}, {v(vT + 1)}, 4, {v(vT)}")
    st.e(f"v_and_b32 {v(vT + 1)}, 3, {v(V_LANE)}")
    st.e(f"v_lshlrev_b32 {v(vT + 1)}, 3, {v(vT + 1)}")
    st.e(f"v_lshl_add_u32 {v(vT)}, {v(vT)}, 7, {v(vT + 1)}")
    st.e(f"v_add_u32 {v(vPR)}, {s(S_T0)}, {v(vT)}")
    srd(st, R_P, P_W2, 1536 * 1280)
    srd(st, R_Q, P_W2, 1536 * 1280)
    st.e(f"s_mul_i32 {s(sQ)}, {s(S_T2)}, {32 * 1280}")
    st.e(f"s_lshl_b32 {s(S_T0)}, {s(S_T3)}, 7")
    st.e(f"s_add_u32 {s(sQ)}, {s(sQ)}, {s(S_T0)}")
    st.e(f"s_add_u32 {s(sQ + 1)}, {s(sQ)}, {10240 - 1024}")
    st.e(f"s_add_u32 {s(sQ + 2)}, {s(sQ)}, {2 * 10240}")
    st.e(f"s_add_u32 {s(sQ + 3)}, {s(sQ)}, {3 * 10240 - 1024}")
    st.e(f"s_mul_i32 {s(S_T2)}, {s(S_T2)}, 5120")
    st.e(f"s_add_u32 {s(S_T2)}, {s(S_T2)}, {WS_W2P:#x}")
    st.e(f"s_lshl_b32 {s(S_T3)}, {s(S_T3)}, 2")
    for k in range(4):
        st.e(f"s_add_u32 {s(S_T0)}, {s(S_T3)}, {k}")
        st.e(f"s_mul_i32 {s(S_T1)}, {s(S_T0)}, 205")
        st.e(f"s_lshr_b32 {s(S_T1)}, {s(S_T1)}, 10")
        st.e(f"s_mul_i32 {s(S_T1)}, {s(S_T1)}, {NSS - 5 * 1024}")
        st.e(f"s_lshl_b32 {s(S_T0)}, {s(S_T0)}, 10")
        st.e(f"s_add_u32 {s(S_T0)}, {s(S_T0)}, {s(S_T1)}")
        st.e(f"s_add_u32 {s(sP + k)}, {s(S_T0)}, {s(S_T2)}")
    st.e(f"s_branch {lJ}")
    st.label(lC)
    st.e(f"v_and_b32 {v(vT)}, 31, {v(V_LANE)}")
    st.e(f"v_lshlrev_b32 {v(vT + 1)}, 4, {v(vT + 1)}")
    st.e(f"v_lshl_add_u32 {v(vT)}, {v(vT)}, 7, {v(vT + 1)}")
    st.e(f"v_add_u32 {v(vPR)}, {s(S_T0)}, {v(vT)}")
    srd(st, R_P, P_CRE, 640 * 1280)
    srd(st, R_Q, P_CIM, 640 * 1280)
    st.e(f"s_mul_i32 {s(sQ)}, {s(S_T2)}, {16 * 1280}")
    st.e(f"s_lshl_b32 {s(S_T0)}, {s(S_T3)}, 7")
    st.e(f"s_add_u32 {s(sQ)}, {s(sQ)}, {s(S_T0)}")
    st.e(f"s_add_u32 {s(sQ + 1)}, {s(sQ)}, {10240 - 1024}")
    st.e(f"s_mov_b32 {s(sQ + 2)}, {s(sQ)}")
    st.e(f"s_mov_b32 {s(sQ + 3)}, {s(sQ + 1)}")
    st.e(f"s_mul_i32 {s(S_T1)}, {s(S_T2)}, 205")
    st.e(f"s_lshr_b32 {s(S_T1)}, {s(S_T1)}, 10")
    st.e(f"s_mul_i32 {s(S_T1)}, {s(S_T1)}, {NSS - 5 * 1024}")
    st.e(f"s_lshl_b32 {s(S_T2)}, {s(S_T2)}, 10")
    st.e(f"s_add_u32 {s(S_T1)}, {s(S_T1)}, {s(S_T2)}")
    st.e(f"s_mul_i32 {s(S_T3)}, {s(S_T3)}, {4 * 5120}")
    st.e(f"s_add_u32 {s(S_T1)}, {s(S_T1)}, {s(S_T3)}")
    st.e(f"s_add_u32 {s(sP)}, {s(S_T1)}, {WS_W2P + 48 * 5120:#x}")
    for k in range(1, 4):
        st.e(f"s_add_u32 {s(sP + k)}, {s(sP + k - 1)}, 5120")
    st.label(lJ)

    PNT = " nt" if OPT["packnt"] else ""

    def pack_loads():
        return [("e", f"s_lshl_b32 {s(S_T0)}, {s(S_W)}, 12"),
                ("e", f"s_add_u32 m0, {s(S_T0)}, {PS}"),
                ("e", "s_nop 0"),
                ("vm", f"buffer_load_dwordx4 {v(vPK)}, {s(R_P, 4)}, {s(sQ)} offen{PNT} lds"),
                ("vm", f"buffer_load_dwordx4 {v(vPK)}, {s(R_P, 4)}, {s(sQ + 1)} offen offset:1024{PNT} lds"),
                ("e", f"s_add_u32 m0, {s(S_T0)}, {PS + 2048}"),
                ("e", "s_nop 0"),
                ("vm", f"buffer_load_dwordx4 {v(vPK)}, {s(R_Q, 4)}, {s(sQ + 2)} offen{PNT} lds"),
                ("vm", f"buffer_load_dwordx4 {v(vPK)}, {s(R_Q, 4)}, {s(sQ + 3)} offen offset:1024{PNT} lds", (ids, "pl"))]

    def pack_reads(o):
        a, b = newlabel("prC"), newlabel("prJ")
        o.e(f"s_cmp_eq_u32 {s(sTy)}, 1")
        o.e(f"s_cbranch_scc1 {a}")
        for k in range(4):
            for e2 in range(2):
                o.e(f"ds_read_b64_tr_b16 {v(big + 4 * k + 2 * e2, 2)}, {v(vPR)} offset:{e2 * 1024 + k * 32}")
        o.e(f"s_branch {b}")
        o.label(a)
        for k in range(4):
            o.e(f"ds_read_b128 {v(big + 4 * k, 4)}, {v(vPR)} offset:{k * 32}")
        o.label(b)

    def pack_stores():
        return [("vm", f"buffer_store_dwordx4 {v(big + 4 * k, 4)}, {v(V_L16)}, {s(R_WS, 4)}, {s(sP + k)} offen sc1",
                 (ids, "ps")) for k in range(4)]

    fill = []

    def f3(fmt):
        for b in range(3):
            m = {k: v(val[b]) for k, val in {**K, **Tm}.items()}
            fill.append(("e", fmt.format(**m)))

    sg, sig = v(vSgn), v(vSig)
    fill += nonce_items()
    f3("v_lshlrev_b32 {dt}, 16, {dt}")
    f3("v_lshlrev_b32 {Lr}, 16, {Lr}")
    f3("v_lshlrev_b32 {Li}, 16, {Li}")
    f3("v_mul_f32 {dt}, " + LOG2E + ", {dt}")
    f3("v_exp_f32 {dt}, {dt}")
    f3("v_cvt_pk_bf16_f32 {dt}, {dt}, {dt}")
    f3("v_lshlrev_b32 {dt}, 16, {dt}")
    f3("v_mul_f32 {la}, {dt}, {Lr}")
    f3("v_mul_f32 {rv}, {dt}, {Li}")
    f3("v_mul_f32 {la}, " + LOG2E + ", {la}")
    f3("v_mul_f32 {rv}, 0.15915494, {rv}")

    def powr(nop, r, i, keep=False):
        if nop is None:
            f3("v_exp_f32 {m}, {la}")
            f3("v_fract_f32 {an}, {rv}")
        else:
            f3("v_mul_f32 {m}, " + nop + ", {la}")
            f3("v_mul_f32 {an}, " + nop + ", {rv}")
            f3("v_exp_f32 {m}, {m}")
            f3("v_fract_f32 {an}, {an}")
        f3("v_cos_f32 {cs}, {an}")
        f3("v_sin_f32 {an}, {an}")
        f3("v_mul_f32 {" + r + "}, {m}, {cs}")
        if keep:
            f3("v_mul_f32 {liu}, {m}, {an}")
            f3("v_mul_f32 {" + i + "}, " + sg + ", {liu}")
        else:
            f3("v_mul_f32 {m}, " + sg + ", {m}")
            f3("v_mul_f32 {" + i + "}, {m}, {an}")

    powr(None, "lr", "li", keep=True)
    f3("v_add_f32 {cs}, -1.0, {lr}")
    f3("v_mul_f32 {m}, {Lr}, {Lr}")
    f3("v_fmac_f32 {m}, {Li}, {Li}")
    f3("v_rcp_f32 {m}, {m}")
    f3("v_mul_f32 {A}, {cs}, {Lr}")
    f3("v_fmac_f32 {A}, {liu}, {Li}")
    f3("v_mul_f32 {Bc}, {liu}, {Lr}")
    f3("v_fma_f32 {Bc}, -{cs}, {Li}, {Bc}")
    f3("v_mul_f32 {m}, -2.0, {m}")
    f3("v_mul_f32 {A}, {m}, {A}")
    f3("v_mul_f32 {Bc}, {m}, {Bc}")
    f3("v_mul_f32 {A}, " + sg + ", {A}")
    powr("0x41800000", "l16r", "l16i")
    fill.append(("e", f"v_cvt_f32_u32 {v(vT + 2)}, {sig}"))
    fill.append(("e", f"v_mul_f32 {v(vT + 2)}, 0x41800000, {v(vT + 2)}"))
    fill.append(("e", f"v_mul_f32 {v(vT + 3)}, 0x41000000, {v(vT + 2)}"))
    powr(v(vT + 2), "psr", "psi")
    powr(v(vT + 3), "qr", "qi")
    powr("0x44800000", "r8r", "r8i")
    for j in range(1, 8):
        fill.append(("e", f"v_cmp_eq_u32 {s(sMask[j - 1], 2)}, {j}, {sig}"))
    vEXr, vEXw, vSYa, vSYw, vM1, vTo = [vA + k for k in range(6)]
    fill += [("e", t) for t in (
        f"v_and_b32 {v(vT + 2)}, 31, {v(V_LANE)}",
        f"v_lshlrev_b32 {v(vT + 2)}, 5, {v(vT + 2)}",
        f"v_add_u32 {v(vEXr)}, {EX1}, {v(vT + 2)}",
        f"v_lshl_add_u32 {v(vEXw)}, {v(vSig)}, 2, {v(vEXr)}",
        f"v_mov_b32 {v(vSYa)}, {SY}",
        f"v_lshl_add_u32 {v(vSYw)}, {s(S_W)}, 2, {v(vSYa)}",
        f"v_mov_b32 {v(vM1)}, -1",
        f"s_cmp_eq_u32 {s(S_W)}, 0\n    s_cselect_b32 {s(sQ)}, 0, 0x80000000",
        f"v_lshl_add_u32 {v(vTo)}, {v(V_LANE)}, 3, {s(sQ)}",
        f"s_lshl_b32 {s(sQ + 1)}, {s(S_RB)}, 4",
        f"s_add_u32 {s(sQ + 1)}, {s(sQ + 1)}, {s(S_CS)}",
        f"s_mul_i32 {s(sQ + 1)}, {s(sQ + 1)}, 768",
        f"s_add_u32 {s(sQ + 1)}, {s(sQ + 1)}, {WS_T:#x}")]
    F0 = 4 * 2
    per = -(-len(fill) // (39 - F0))

    def reads(c, sidx):
        p = sidx & 1
        out = [("lg", f"ds_read_b128 {v(fX[p], 4)}, {v(vX + sidx)} offset:{(c % 4) * XS}")]
        for b in range(3):
            base = vB if b < 2 else vB2
            off = (c % 4) * BS + (2048 * b if b < 2 else 0)
            out.append(("lg", f"ds_read_b128 {v(fB[p][b], 4)}, {v(base + sidx)} offset:{off}"))
        return out

    def mfmas(c, sidx):
        p = sidx & 1
        first = (c == 0 and sidx == 0)
        return [("e", f"v_mfma_f32_32x32x16_bf16 {v(acc[b], 16)}, {v(fX[p], 4)}, {v(fB[p][b], 4)}, "
                      + ("0" if first else v(acc[b], 16))) for b in range(3)]

    DIST = OPT["dist"]
    for c in range(1, DIST):
        puts(st, dma_b(c))
    st.wait(vm=ids["b", 0], lg="all")
    st.e("s_barrier")
    stamp("B0", (0,))
    puts(st, reads(0, 0))
    PA = OPT["packat"]
    assert PA + 2 * DIST <= 9

    def span(cb):
        d = dma_b(cb + DIST) if cb + DIST <= 9 else []
        if cb == PA:
            a = split_vm(pack_loads(), 2)
            b = split_vm(d, 2)
            return a + b
        if cb == PA + DIST:
            assert ids["b", cb] > ids["pl"]
            a = split_vm(pack_stores(), 2)
            return [[("fn", pack_reads)], a[0], a[1], d]
        out = split_vm(d, 4) if d else [[], [], [], []]
        if cb == PA + 2 * DIST:
            assert ids["b", cb] > ids["ps"]
            out[0] = [("e", f"s_lshl_b32 {s(S_T0)}, s2, 5"),
                      ("e", f"s_add_u32 {s(S_T0)}, {s(S_T0)}, {s(S_W)}"),
                      ("e", f"s_lshl_b32 {s(S_T0)}, {s(S_T0)}, 2"),
                      ("e", f"s_add_u32 {s(S_T0)}, {s(S_T0)}, {WS_FP:#x}"),
                      ("e", f"v_mov_b32 {v(vT)}, {s(S_NONCE)}"),
                      ("vm", one_lane_store(vT, s(S_T0)))] + out[0]
        return out

    sp = [[]] + split_vm(dma_b(DIST), 3)
    for c in range(10):
        for sidx in range(4):
            fl = []
            if 4 * c + sidx >= F0:
                assert ids["b", F0 // 4] > par_id
                fl, fill = fill[:per], fill[per:]
            if sidx < 3:
                st.wait(lg="all")
                interleave(st, mfmas(c, sidx), reads(c, sidx + 1) + sp[sidx + 1] + fl)
            else:
                if c < 9:
                    st.wait(vm=ids["b", c + 1], lg="all")
                else:
                    st.wait(lg="all")
                st.e("s_barrier")
                sp = span(c + 1)
                sides = reads(c + 1, 0) if c < 9 else []
                interleave(st, mfmas(c, sidx), sides + sp[0] + fl)
    assert not fill
    stamp("loopend")
    if OPT["prioS"]:
        st.e(f"s_setprio {OPT['prioS']}")
    hA = [frag + b for b in range(3)]
    hB = [frag + 3 + b for b in range(3)]
    Pv = [frag + 6 + b for b in range(3)]
    Tv = [frag + 10 + 2 * b for b in range(3)]
    st.nop(6)
    for b in range(3):
        st.e(f"v_mov_b32 {v(Pv[b])}, 0")
        st.e(f"v_mov_b32 {v(Tv[b] + 1)}, {s(S_NONCE)}")
    cur = [acc[b] for b in range(3)]
    for j in range(1, 16):
        dst = hA if j & 1 else hB
        for b in range(3):
            st.e(f"v_fma_f32 {v(dst[b])}, {v(K['lr'][b])}, {v(cur[b])}, {v(acc[b] + j)}")
        for b in range(3):
            st.e(f"v_fmac_f32_dpp {v(dst[b])}, {v(cur[b])}, {v(K['li'][b])} {DPP}")
        cur = dst
    stamp("pass1", (1,))
    for b in range(3):
        st.lg(f"ds_write_b32 {v(vEXw)}, {v(cur[b])} offset:{1024 * b}")
    st.lg(f"ds_write_b32 {v(vSYw)}, {v(vM1)}")
    Ev = [big + 8 * b for b in range(3)]

    def ex_reads(base):
        return [f"ds_read_b128 {v(Ev[b] + 4 * q, 4)}, {v(vEXr)} offset:{base + 1024 * b + 16 * q}"
                for b in range(3) for q in range(2)]

    lds_flag_wait(st, vSYa, 0, vT, ex_reads(0))
    stamp("sync1", (1,))
    cur = [Ev[b] for b in range(3)]
    for j in range(1, 8):
        dst = Tv if j == 7 else (hA if j & 1 else hB)
        for b in range(3):
            st.e(f"v_fma_f32 {v(dst[b])}, {v(K['l16r'][b])}, {v(cur[b])}, {v(Ev[b] + j)}")
        for b in range(3):
            st.e(f"v_fmac_f32_dpp {v(dst[b])}, {v(cur[b])}, {v(K['l16i'][b])} {DPP}")
        if j < 7:
            for b in range(3):
                st.e(f"v_cndmask_b32 {v(Pv[b])}, {v(Pv[b])}, {v(cur[b])}, {s(sMask[j - 1], 2)}")
        prev, cur = cur, dst
    st.e("s_mov_b32 exec_hi, 0")
    for b in range(3):
        st.vm(f"buffer_store_dwordx2 {v(Tv[b], 2)}, {v(vTo)}, {s(R_WS, 4)}, {s(sQ + 1)} offen offset:{256 * b} sc1")
    st.e("s_mov_b32 exec_hi, -1")
    for b in range(3):
        st.e(f"v_cndmask_b32 {v(Pv[b])}, {v(Pv[b])}, {v(prev[b])}, {s(sMask[6], 2)}")
    stamp("Tpub")
    gv = big + 24
    st.e(f"v_lshlrev_b32 {v(vT)}, 6, {v(vSig)}")
    st.e(f"v_add_u32 {v(vX)}, {GS}, {v(vT)}")
    st.e("s_mov_b32 exec_lo, 0x10000")
    st.e("s_mov_b32 exec_hi, 0x10000")
    for q in range(4):
        st.lg(f"ds_write_b128 {v(vX)}, {v(acc[2] + 4 * q, 4)} offset:{16 * q}")
    st.e("s_mov_b64 exec, -1")
    st.e(f"v_and_b32 {v(vT)}, 31, {v(V_LANE)}")
    st.e(f"s_lshl_b32 {s(S_T0)}, {s(S_W)}, 7")
    st.e(f"s_add_u32 {s(S_T0)}, {s(S_T0)}, {GS}")
    st.e(f"v_lshl_add_u32 {v(vX + 1)}, {v(vT)}, 2, {s(S_T0)}")
    st.lg(f"ds_read_b32 {v(vX + 2)}, {v(vX + 1)}")
    mk = [P_BRE, P_BIM, P_CRE, P_CIM]
    st.e(f"s_sub_u32 {s(S_T0)}, {s(S_RB)}, 1")
    st.e(f"v_sub_u32 {v(vT)}, {s(S_T0)}, {v(vSig)}")
    st.e(f"v_and_b32 {v(vT + 1)}, 31, {v(V_LANE)}")
    st.e(f"s_mul_i32 {s(S_T1)}, {s(S_CS)}, 768")
    st.e(f"s_add_u32 {s(S_T1)}, {s(S_T1)}, {WS_T:#x}")
    st.e(f"v_lshl_add_u32 {v(vT + 1)}, {v(vT + 1)}, 3, {s(S_T1)}")
    st.e(f"v_mov_b32 {v(vT + 3)}, 0x80000000")
    st.e(f"s_mov_b32 {s(S_T2)}, 0xffff0000")
    st.e(f"s_mov_b32 {s(S_T3)}, 0xffff0000")
    for dl in range(2):
        if dl:
            st.e(f"v_subrev_u32 {v(vT)}, 8, {v(vT)}")
        st.e(f"v_cmp_gt_i32 {s(mk[2 * dl], 2)}, 0, {v(vT)}")
        st.e(f"v_mul_i32_i24 {v(vT + 2)}, {16 * 768}, {v(vT)}")
        st.e(f"v_add_u32 {v(vT + 2)}, {v(vT + 2)}, {v(vT + 1)}")
        st.e(f"s_or_b64 {s(mk[2 * dl + 1], 2)}, {s(mk[2 * dl], 2)}, {s(S_T2, 2)}")
        st.e(f"v_cndmask_b32 {v(vC + 2 * dl)}, {v(vT + 2)}, {v(vT + 3)}, {s(mk[2 * dl], 2)}")
        st.e(f"v_cndmask_b32 {v(vC + 2 * dl + 1)}, {v(vT + 2)}, {v(vT + 3)}, {s(mk[2 * dl + 1], 2)}")
    st.wait(lg="all")
    st.e(f"v_mul_f32 {v(vX + 2)}, {NLOG2E}, {v(vX + 2)}")
    st.e(f"v_exp_f32 {v(vX + 2)}, {v(vX + 2)}")
    st.e("s_nop 0")
    st.e(f"v_add_f32 {v(vX + 2)}, 1.0, {v(vX + 2)}")
    st.e(f"v_rcp_f32 {v(vX + 2)}, {v(vX + 2)}")
    st.e("s_nop 0")
    st.lg(f"ds_write_b32 {v(vX + 1)}, {v(vX + 2)} offset:512")
    st.lg(f"ds_write_b32 {v(vSYw)}, {v(vM1)} offset:32")
    for q in range(4):
        st.lg(f"ds_read_b128 {v(gv + 4 * q, 4)}, {v(vX)} offset:{512 + 16 * q}")
    Cv = [[big + 4 * b + 2 * dl for dl in range(2)] for b in range(3)]
    tt = [frag + 16 + k for k in range(6)]
    for j in range(16):
        for b in range(3):
            st.e(f"v_mul_f32_dpp {v(tt[3 * (j & 1) + b])}, {v(acc[b] + j)}, {v(K['Bc'][b])} {DPP}")
        for b in range(3):
            st.e(f"v_fma_f32 {v(acc[b] + j)}, {v(K['A'][b])}, {v(acc[b] + j)}, {v(tt[3 * (j & 1) + b])}")
    st.e(f"s_mul_i32 {s(S_T0)}, {s(S_W)}, 7680")
    st.e(f"s_add_u32 {s(S_T0)}, {s(S_T0)}, {TS}")
    st.e(f"v_and_b32 {v(vT)}, 31, {v(V_LANE)}")
    st.e(f"v_mul_u32_u24 {v(vT)}, 80, {v(vT)}")
    st.e(f"v_and_b32 {v(vT + 1)}, 32, {v(V_LANE)}")
    st.e(f"v_add3_u32 {v(vB2)}, {v(vT)}, {v(vT + 1)}, {s(S_T0)}")
    st.e(f"v_bfe_u32 {v(vT)}, {v(V_LANE)}, 2, 2")
    st.e(f"v_bfe_u32 {v(vT + 2)}, {v(V_LANE)}, 4, 1")
    st.e(f"v_lshl_add_u32 {v(vT)}, {v(vT)}, 1, {v(vT + 2)}")
    st.e(f"v_mul_u32_u24 {v(vT)}, 80, {v(vT)}")
    st.e(f"v_and_b32 {v(vT + 3)}, 3, {v(V_LANE)}")
    st.e(f"v_lshl_add_u32 {v(vT)}, {v(vT + 3)}, 3, {v(vT)}")
    st.e(f"v_add3_u32 {v(vB2 + 1)}, {v(vT)}, {v(vT + 1)}, {s(S_T0)}")
    st.e(f"v_lshrrev_b32 {v(vT)}, 5, {v(V_LANE)}")
    st.e(f"v_mul_u32_u24 {v(vT)}, {RTS - 512}, {v(vT)}")
    st.e(f"v_add_u32 {v(vB2 + 2)}, {v(vT)}, {v(V_L16)}")
    st.e(f"s_lshl_b32 {s(sP)}, {s(S_RB)}, 2")
    st.e(f"s_add_u32 {s(sP)}, {s(sP)}, {s(S_W)}")
    st.e(f"s_mul_i32 {s(sP)}, {s(sP)}, {2 * RTS}")
    st.e(f"s_mul_i32 {s(S_T1)}, {s(S_CS)}, 2560")
    st.e(f"s_add_u32 {s(sP)}, {s(sP)}, {s(S_T1)}")
    st.e(f"s_add_u32 {s(sP)}, {s(sP)}, {WS_H + 192 * 256:#x}")
    st.e(f"s_lshl_b32 {s(sP + 1)}, {s(S_RB)}, 4")
    st.e(f"s_add_u32 {s(sP + 1)}, {s(sP + 1)}, {s(S_CS)}")
    st.e(f"s_lshl_b32 {s(sP + 1)}, {s(sP + 1)}, 5")
    st.e(f"s_add_u32 {s(sP + 1)}, {s(sP + 1)}, {s(S_W)}")
    st.e(f"s_lshl_b32 {s(sP + 1)}, {s(sP + 1)}, 2")
    st.e(f"s_add_u32 {s(sP + 1)}, {s(sP + 1)}, {WS_FS:#x}")
    st.e(f"v_mov_b32 {v(vB2 + 3)}, {s(S_NONCE)}")
    stamp("win")
    top, done = newlabel("cp"), newlabel("cok")
    st.e(f"s_mov_b32 {s(S_SPIN)}, {OPT['spin']}")
    st.label(top)
    for dl in range(2):
        for b in range(3):
            ra = vC + 2 * dl + (1 if b == 2 else 0)
            st.e(f"buffer_load_dwordx2 {v(Cv[b][dl], 2)}, {v(ra)}, {s(R_WS, 4)}, 0 offen offset:{256 * b} sc1")
    st.e(f"s_mov_b64 {s(S_T0, 2)}, -1")
    st.e("s_waitcnt vmcnt(0)")
    for dl in range(2):
        for b in range(3):
            st.e(f"v_cmp_eq_u32 vcc, {s(S_NONCE)}, {v(Cv[b][dl] + 1)}")
            st.e("s_nop 0")
            st.e(f"s_or_b64 vcc, vcc, {s(mk[2 * dl + (1 if b == 2 else 0)], 2)}")
            st.e(f"s_and_b64 {s(S_T0, 2)}, {s(S_T0, 2)}, vcc")
    st.e(f"s_cmp_eq_u64 {s(S_T0, 2)}, -1")
    st.e(f"s_cbranch_scc1 {done}")
    st.e("s_sleep 1")
    st.e(f"s_sub_u32 {s(S_SPIN)}, {s(S_SPIN)}, 1")
    st.e(f"s_cbranch_scc0 {top}")
    st.label(done)
    stamp("carry")
    for b in range(3):
        st.e(f"v_fma_f32 {v(hA[b])}, {v(K['r8r'][b])}, {v(Cv[b][1])}, {v(Cv[b][0])}")
    for b in range(3):
        st.e(f"v_fmac_f32_dpp {v(hA[b])}, {v(Cv[b][1])}, {v(K['r8i'][b])} {DPP}")
    for b in range(3):
        st.e(f"v_mul_f32 {v(hB[b])}, {v(K['qr'][b])}, {v(hA[b])}")
    for b in range(3):
        st.e(f"v_fmac_f32_dpp {v(hB[b])}, {v(hA[b])}, {v(K['qi'][b])} {DPP}")
    for b in range(3):
        st.lg(f"ds_write_b32 {v(vEXw)}, {v(hB[b])} offset:{3072 + 1024 * b}")
    st.lg(f"ds_write_b32 {v(vSYw)}, {v(vM1)} offset:16")
    lds_flag_wait(st, vSYa, 16, vT, ex_reads(3072))
    stamp("sync2")
    for q in (0, 2):
        for b in range(3):
            st.e(f"v_pk_add_f32 {v(Ev[b] + q, 2)}, {v(Ev[b] + q, 2)}, {v(Ev[b] + 4 + q, 2)}")
    for b in range(3):
        st.e(f"v_pk_add_f32 {v(Ev[b], 2)}, {v(Ev[b], 2)}, {v(Ev[b] + 2, 2)}")
    for b in range(3):
        st.e(f"v_add_f32 {v(hA[b])}, {v(Ev[b])}, {v(Ev[b] + 1)}")
    for b in range(3):
        st.e(f"v_fmac_f32 {v(Pv[b])}, {v(K['psr'][b])}, {v(hA[b])}")
    for b in range(3):
        st.e(f"v_fmac_f32_dpp {v(Pv[b])}, {v(hA[b])}, {v(K['psi'][b])} {DPP}")
    for b in range(3):
        st.e(f"v_mul_f32 {v(hB[b])}, {v(K['A'][b])}, {v(Pv[b])}")
    for b in range(3):
        st.e(f"v_fmac_f32_dpp {v(hB[b])}, {v(Pv[b])}, {v(K['Bc'][b])} {DPP}")
    pk = [big + 8 * b for b in range(3)]
    sc = [frag + 16 + 2 * b for b in range(3)]
    for j in range(16):
        prev = [hB[b] if j == 0 else acc[b] + j - 1 for b in range(3)]
        for b in range(3):
            st.e(f"v_fmac_f32 {v(acc[b] + j)}, {v(K['lr'][b])}, {v(prev[b])}")
        for b in range(3):
            st.e(f"v_fmac_f32_dpp {v(acc[b] + j)}, -{v(prev[b])}, {v(K['li'][b])} {DPP}")
        if j & 1:
            for b in range(3):
                st.e(f"v_pk_mul_f32 {v(sc[b], 2)}, {v(acc[b] + j - 1, 2)}, {v(gv + j - 1, 2)}")
            for b in range(3):
                st.e(f"v_cvt_pk_bf16_f32 {v(pk[b] + (j >> 1))}, {v(sc[b])}, {v(sc[b] + 1)}")
        if j in (7, 15):
            for b in range(3):
                st.lg(f"ds_write_b128 {v(vB2)}, {v(pk[b] + (4 if j == 15 else 0), 4)} "
                      f"offset:{2560 * b + (16 if j == 15 else 0)}")
    stamp("pass2", (1,))
    rid = []
    for k in range(5):
        for e2 in range(2):
            r = st.lg(f"ds_read_b64_tr_b16 {v(acc[0] + 4 * k + 2 * e2, 2)}, {v(vB2 + 1)} offset:{k * 1280 + e2 * 640}")
        rid.append(r)
    for k in range(5):
        st.wait(lg=rid[k])
        st.vm(f"buffer_store_dwordx4 {v(acc[0] + 4 * k, 4)}, {v(vB2 + 2)}, {s(R_WS, 4)}, {s(sP)} offen offset:{512 * k} sc1")
    stamp("hst")
    st.wait(vm="all")
    st.vm(one_lane_store(vB2 + 3, s(sP + 1)))
    stamp("end")
    stamp.flush(vT)
    st.e("s_endpgm")
    return stamp.names


HEADER = """; gated mix of an S5 state-space branch and a squared-relu MLP branch, one persistent launch.
; 256 workgroups x 8 waves: waves 0-3 MLP GEMM1 + output GEMM, waves 4-7 SSM GEMM1 + chunked scan.
; @launch grid=(256,1,1) block=(512,1,1) lds={lds}
.amdgcn_target "amdgcn-amd-amdhsa--gfx950"
.text
.globl {name}_kernel
.p2align 8
.type {name}_kernel,@function
{name}_kernel:
"""
FOOTER = """.section .rodata,"a"
.p2align 6
.amdhsa_kernel {name}_kernel
  .amdhsa_next_free_vgpr 256
  .amdhsa_next_free_sgpr 102
  .amdhsa_accum_offset 256
  .amdhsa_group_segment_fixed_size 0
  .amdhsa_kernarg_size 144
  .amdhsa_user_sgpr_count 2
  .amdhsa_user_sgpr_kernarg_segment_ptr 1
  .amdhsa_system_sgpr_workgroup_id_x 1
  .amdhsa_float_denorm_mode_32 3
.end_amdhsa_kernel
"""


def main():
    c = Stream()
    gen_common(c)
    g = Stream()
    gn = gen_G(g)
    sst = Stream()
    sn = gen_S(sst)
    slow = "".join(o.text() for o in SLOW)
    text = (HEADER.format(lds=LDS_BYTES, name=NAME) + c.text() + g.text() + slow + ".p2align 6\n" + sst.text()
            + "L_end:\n    s_endpgm\n" + FOOTER.format(name=NAME))
    open(sys.argv[1], "w").write(text)
    if STAMPS:
        import json
        json.dump(dict(G=gn, S=sn), open(sys.argv[1] + ".stamps.json", "w"))


if __name__ == "__main__":
    main()
```

```python
import sys
from asmlib import Regs, Stream, v, s

NAME = "gated_mix__ssm_conv_s5__dense_activation_squared_relu__prompt"
OPT = dict(stamps=0, D=4, spin=1 << 14, pad=0, prioS=3, prioG=2, pf=0, cpf=0, packat=2, npre=8, npost=8, outpol=1,
           xnt=0, sset=0, dist=2, packnt=0)
OPT["padat"] = "start"
OPT["cycA"] = ""
OPT["cycB"] = ""
for a in sys.argv[2:]:
    k, val = a.split("=")
    assert k in OPT, k
    OPT[k] = val if k in ("padat", "cycA", "cycB") else int(val)
STAMPS = bool(OPT["stamps"])
D = OPT["D"]

WS_EPOCH = 0
WS_FP = 0x8000
WS_FM = 0x10000
WS_FS = 0x18000
WS_T = 0x20000
WS_W2P = 0x100000
WS_H = 0x800000
WS_ST = 0x2000000
RTS = 352 * 256
NSS = 88 * 5120
XS, BS, WSZ = 16384, 10368, 12288
O_X = 0
O_B = 4 * XS
O_W1 = O_B + 4 * BS
PS = O_W1 + 3 * WSZ
SY = PS + 16384
GS = SY + 64
GB = GS + 512
LDS_BYTES = GB + 512 + 64
EX1 = PS
EX2 = EX1 + 3072
TS = O_W1
PARTW = 64 * 336
assert LDS_BYTES <= 163840 and 4 * PARTW <= O_W1 and 4 * 24576 <= O_W1 and 4 * 7680 <= 3 * WSZ

DPP = "quad_perm:[1,0,3,2] row_mask:0xf bank_mask:0xf"
LOG2E = "0x3fb8aa3b"
NLOG2E = "0xbfb8aa3b"

P_X, P_LRE, P_LIM, P_BRE, P_BIM, P_CRE, P_CIM, P_LDT = 4, 6, 8, 10, 12, 14, 16, 18
P_DSK, P_BX, P_W1, P_B1, P_W2, P_B2, P_GATE, P_OUT = 20, 22, 24, 26, 28, 30, 32, 34
P_DBG, P_WS = 36, 38
R_WS = 40
S_RB, S_CS, S_HH, S_NS, S_W, S_NONCE, S_T0, S_T1, S_T2, S_T3 = 44, 45, 46, 47, 48, 49, 50, 51, 52, 53
S_SPIN = 3
S_FREE = 54
V_LANE = 1
V_L16 = 2
V_EP = 3


def srd(st, base, ptr, size):
    st.e(f"s_mov_b32 {s(base)}, {s(ptr)}")
    st.e(f"s_mov_b32 {s(base + 1)}, {s(ptr + 1)}")
    st.e(f"s_mov_b32 {s(base + 2)}, {size:#x}")
    st.e(f"s_mov_b32 {s(base + 3)}, 0x20000")


class Stamper:
    def __init__(self, st, sr, role, n):
        self.st, self.role, self.n, self.max = st, role, 0, n
        self.base = sr.alloc("stamps", 2 * n, 2) if STAMPS else None
        self.rt0 = 96 if (role == "G" and (STAMPS or OPT["pad"])) else None
        self.names = []

    def __call__(self, name, sets=None):
        if self.rt0 is not None and name == OPT["padat"]:
            self.st.e(f"s_memrealtime {s(self.rt0, 2)}")
        if self.rt0 is not None and name == OPT["cycA"]:
            self.st.e("s_memtime s[98:99]")
        if self.rt0 is not None and name == OPT["cycB"]:
            self.st.e("s_memtime s[100:101]")
        if not STAMPS or (sets is not None and OPT["sset"] not in sets):
            return
        assert self.n < self.max, name
        self.st.e(f"s_memtime {s(self.base + 2 * self.n, 2)}")
        self.names.append(name)
        self.n += 1

    def flush(self, vt):
        if not STAMPS:
            return
        st = self.st
        st.e(f"s_memrealtime {s(S_T0, 2)}")
        st.e("s_waitcnt lgkmcnt(0)")
        st.e(f"v_mov_b32 {v(vt)}, 0")
        for i in range(self.n):
            st.e(f"v_writelane_b32 {v(vt)}, {s(self.base + 2 * i)}, {i}")
        st.e(f"v_writelane_b32 {v(vt)}, {s(S_T0)}, 15")
        if self.rt0 is not None:
            st.e(f"v_writelane_b32 {v(vt)}, {s(self.rt0)}, 14")
        st.e(f"s_lshl_b32 {s(S_T0)}, s2, 3")
        st.e(f"s_add_u32 {s(S_T0)}, {s(S_T0)}, {s(S_W)}")
        if self.role == "S":
            st.e(f"s_add_u32 {s(S_T0)}, {s(S_T0)}, 4")
        st.e(f"s_lshl_b32 {s(S_T0)}, {s(S_T0)}, 6")
        st.e(f"s_add_u32 {s(S_T0)}, {s(S_T0)}, {WS_ST:#x}")
        st.e(f"v_lshlrev_b32 {v(vt + 1)}, 2, {v(V_LANE)}")
        st.e("s_mov_b64 exec, 0xffff")
        st.e(f"buffer_store_dword {v(vt)}, {v(vt + 1)}, {s(R_WS, 4)}, {s(S_T0)} offen")
        st.e("s_mov_b64 exec, -1")


_lbl = [0]


def newlabel(p):
    _lbl[0] += 1
    return f"L_{p}_{_lbl[0]}"


def nonce_items():
    return [("e", f"v_readfirstlane_b32 {s(S_NONCE)}, {v(V_EP)}"),
            ("e", "s_nop 3"),
            ("e", f"s_mul_i32 {s(S_NONCE)}, {s(S_NONCE)}, 0x9e3779b1"),
            ("e", f"s_add_u32 {s(S_NONCE)}, {s(S_NONCE)}, 0x7f4a7c15")]


SLOW = []


def flag_check(st, vdata, reload_text, mask=None):
    slow, done = newlabel("slow"), newlabel("ok")

    def test(o):
        o.e(f"v_cmp_ne_u32 vcc, {s(S_NONCE)}, {v(vdata)}")
        o.e("s_nop 1")
        if mask is None:
            o.e("s_cmp_lg_u64 vcc, 0")
        else:
            o.e(f"s_and_b32 {s(S_T3)}, vcc_lo, {mask:#x}")

    test(st)
    st.e(f"s_cbranch_scc1 {slow}")
    st.label(done)
    o = Stream()
    o.label(slow)
    o.e(f"s_mov_b32 {s(S_SPIN)}, {OPT['spin']}")
    top = newlabel("spin")
    o.label(top)
    o.e(reload_text)
    o.e(f"s_sub_u32 {s(S_SPIN)}, {s(S_SPIN)}, 1")
    o.e(f"s_cbranch_scc1 {done}")
    o.e("s_waitcnt vmcnt(0)")
    test(o)
    o.e(f"s_cbranch_scc0 {done}")
    o.e("s_sleep 1")
    o.e(f"s_branch {top}")
    SLOW.append(o)


def lds_flag_wait(st, vaddr, off, vtmp, extra=()):
    top, done = newlabel("lw"), newlabel("lok")
    st.e(f"s_mov_b32 {s(S_SPIN)}, {OPT['spin'] * 8}")
    st.label(top)
    st.e(f"ds_read_b128 {v(vtmp, 4)}, {v(vaddr)} offset:{off}")
    for t in extra:
        st.e(t)
    st.e(f"s_sub_u32 {s(S_SPIN)}, {s(S_SPIN)}, 1")
    st.e(f"s_cbranch_scc1 {done}")
    st.e(f"s_waitcnt lgkmcnt({len(extra)})")
    st.e(f"v_and_b32 {v(vtmp)}, {v(vtmp)}, {v(vtmp + 1)}")
    st.e(f"v_and_b32 {v(vtmp + 2)}, {v(vtmp + 2)}, {v(vtmp + 3)}")
    st.e(f"v_and_b32 {v(vtmp)}, {v(vtmp)}, {v(vtmp + 2)}")
    st.e(f"v_cmp_ne_u32 vcc, -1, {v(vtmp)}")
    st.e("s_nop 1")
    st.e("s_cmp_lg_u64 vcc, 0")
    st.e(f"s_cbranch_scc1 {top}")
    st.label(done)
    st.e("s_waitcnt lgkmcnt(0)")


def pack_flag_addr(st, vd, vt):
    st.e(f"s_mul_i32 {s(S_T0)}, {s(S_NS)}, 5")
    st.e(f"s_lshr_b32 {s(S_T1)}, {s(S_T0)}, 2")
    st.e(f"s_mul_i32 {s(S_T2)}, {s(S_W)}, 120")
    st.e(f"s_add_u32 {s(S_T1)}, {s(S_T1)}, {s(S_T2)}")
    st.e(f"v_lshrrev_b32 {v(vt)}, 1, {v(V_LANE)}")
    st.e(f"v_mul_u32_u24 {v(vt)}, 10, {v(vt)}")
    st.e(f"v_and_b32 {v(vt + 1)}, 1, {v(V_LANE)}")
    st.e(f"v_add3_u32 {v(vd)}, {v(vt)}, {v(vt + 1)}, {s(S_T1)}")
    st.e(f"s_mul_i32 {s(S_T2)}, {s(S_W)}, 10")
    st.e(f"s_lshr_b32 {s(S_T2)}, {s(S_T2)}, 2")
    st.e(f"s_mul_i32 {s(S_T0)}, {s(S_T0)}, 10")
    st.e(f"s_add_u32 {s(S_T0)}, {s(S_T0)}, {s(S_T2)}")
    st.e(f"s_add_u32 {s(S_T0)}, {s(S_T0)}, 480")
    st.e(f"v_subrev_u32 {v(vt)}, 24, {v(V_LANE)}")
    st.e(f"v_min_u32 {v(vt)}, 14, {v(vt)}")
    st.e(f"v_mul_u32_u24 {v(vt + 1)}, 43, {v(vt)}")
    st.e(f"v_lshrrev_b32 {v(vt + 1)}, 7, {v(vt + 1)}")
    st.e(f"v_mul_u32_u24 {v(vt + 2)}, 7, {v(vt + 1)}")
    st.e(f"v_add3_u32 {v(vt)}, {v(vt)}, {v(vt + 2)}, {s(S_T0)}")
    st.e(f"v_cmp_gt_u32 vcc, 24, {v(V_LANE)}")
    st.e("s_nop 1")
    st.e(f"v_cndmask_b32 {v(vd)}, {v(vt)}, {v(vd)}, vcc")
    st.e(f"v_lshrrev_b32 {v(vt)}, 2, {v(vd)}")
    st.e(f"v_and_b32 {v(vd)}, 3, {v(vd)}")
    st.e(f"v_lshlrev_b32 {v(vd)}, 2, {v(vd)}")
    st.e(f"v_lshl_add_u32 {v(vd)}, {v(vt)}, 7, {v(vd)}")
    st.e(f"v_add_u32 {v(vd)}, {WS_FP:#x}, {v(vd)}")


def xread_addrs(st, vX, vt):
    st.e(f"v_and_b32 {v(vt)}, 31, {v(V_LANE)}")
    st.e(f"v_bfe_u32 {v(vt + 1)}, {v(V_LANE)}, 1, 3")
    st.e(f"v_lshrrev_b32 {v(vt + 2)}, 5, {v(V_LANE)}")
    st.e(f"v_xor_b32 {v(vt + 1)}, {v(vt + 1)}, {v(vt + 2)}")
    st.e(f"v_lshlrev_b32 {v(vt + 1)}, 4, {v(vt + 1)}")
    st.e(f"v_lshl_add_u32 {v(vt)}, {v(vt)}, 7, {v(vt + 1)}")
    st.e(f"s_lshl_b32 {s(S_T0)}, {s(S_W)}, 12")
    st.e(f"v_add_u32 {v(vX)}, {s(S_T0)}, {v(vt)}")
    for k in range(1, 4):
        st.e(f"v_xor_b32 {v(vX + k)}, {32 * k}, {v(vX)}")


def put(st, item):
    kind, text = item[0], item[1]
    r = None
    if kind == "vm":
        r = st.vm(text)
    elif kind == "lg":
        r = st.lg(text)
    elif kind == "fn":
        text(st)
    else:
        st.e(text)
    if len(item) > 2:
        item[2][0][item[2][1]] = r
    return r


def puts(st, items):
    for it in items:
        put(st, it)


def interleave(st, mains, sides):
    n, k = len(mains), 0
    for i, m in enumerate(mains):
        put(st, m)
        upto = (len(sides) * (i + 1) + n - 1) // n
        while k < upto:
            put(st, sides[k])
            k += 1


def split_vm(items, n):
    groups, cur = [], []
    for it in items:
        cur.append(it)
        if it[0] == "vm":
            groups.append(cur)
            cur = []
    if cur:
        if groups:
            groups[-1] += cur
        else:
            groups.append(cur)
    parts = [[] for _ in range(n)]
    for k, g in enumerate(groups):
        parts[min(n - 1, k * n // len(groups))] += g
    return parts


def one_lane_store(vdata, soff):
    return (f"s_mov_b64 exec, 1\n    buffer_store_dword {v(vdata)}, off, {s(R_WS, 4)}, {soff} sc1\n"
            f"    s_mov_b64 exec, -1")


def gen_common(st):
    if OPT["padat"] == "entry":
        st.e("s_memrealtime s[96:97]")
    st.e("s_cmp_ge_u32 s2, 256")
    st.e("s_cbranch_scc1 L_end")
    st.e("s_load_dwordx16 s[4:19], s[0:1], 0")
    st.e("s_load_dwordx16 s[20:35], s[0:1], 64")
    st.e("s_load_dwordx4 s[36:39], s[0:1], 128")
    st.e(f"v_lshrrev_b32 {v(V_EP)}, 6, v0")
    st.e(f"v_and_b32 {v(V_LANE)}, 63, v0")
    st.e(f"v_readfirstlane_b32 {s(S_W)}, {v(V_EP)}")
    st.e(f"v_lshlrev_b32 {v(V_L16)}, 4, {v(V_LANE)}")
    st.e(f"s_lshr_b32 {s(S_T1)}, s2, 3")
    st.e(f"s_bfe_u32 {s(S_RB)}, s2, 0x20001")
    st.e(f"s_lshl_b32 {s(S_RB)}, {s(S_RB)}, 2")
    st.e(f"s_lshr_b32 {s(S_T2)}, {s(S_T1)}, 3")
    st.e(f"s_add_u32 {s(S_RB)}, {s(S_RB)}, {s(S_T2)}")
    st.e(f"s_and_b32 {s(S_T0)}, s2, 1")
    st.e(f"s_lshl_b32 {s(S_CS)}, {s(S_T0)}, 3")
    st.e(f"s_and_b32 {s(S_T2)}, {s(S_T1)}, 7")
    st.e(f"s_add_u32 {s(S_CS)}, {s(S_CS)}, {s(S_T2)}")
    st.e(f"s_and_b32 {s(S_HH)}, {s(S_CS)}, 1")
    st.e(f"s_lshr_b32 {s(S_NS)}, {s(S_CS)}, 1")
    st.e(f"s_cmp_ge_u32 {s(S_W)}, 4")
    st.e("s_cbranch_scc1 L_S")


def gen_G(st):
    sr = Regs("s", S_FREE, 102)
    vr = Regs("v", 4, 256)
    R_X = sr.alloc("R_X", 4, 4)
    R_W1 = sr.alloc("R_W1", 4, 4)
    sOX, sOW, sMX, sMW = [sr.alloc(n) for n in ("sOX", "sOW", "sMX", "sMW")]
    sr2 = Regs("s", P_LRE, P_DSK)
    sW2 = sr2.alloc("sW2")
    sMP = sr2.alloc("sMP")
    sH = sr2.alloc("sH", 4)
    sWg = sr2.alloc("sWg")
    sFS = sr2.alloc("sFS")
    vDX = vr.alloc("vDX", 4)
    vDW = vr.alloc("vDW", 4)
    vX = vr.alloc("vX", 4)
    vW = vr.alloc("vW")
    vL16b = vr.alloc("vL16b")
    vL16c = vr.alloc("vL16c")
    vPF = vr.alloc("vPF")
    vPD = vr.alloc("vPD", 2)
    vHS = vr.alloc("vHS")
    vFM = vr.alloc("vFM")
    vLW = vr.alloc("vLW")
    vG = vDW
    vT = vr.alloc("vT", 4)
    assert vr.next <= 32, vr.next
    BIG = 32
    acc1 = [BIG + 16 * b for b in range(3)]
    fX = [BIG + 48 + 16 * p for p in range(2)]
    fW = [[BIG + 48 + 16 * p + 4 + 4 * b for b in range(3)] for p in range(2)]
    cv = BIG + 80
    bias = BIG + 104
    st.e(f"v_lshrrev_b32 {v(vT)}, 3, {v(V_LANE)}")
    st.e(f"v_and_b32 {v(vT + 1)}, 3, {v(vT)}")
    st.e(f"v_lshrrev_b32 {v(vT)}, 2, {v(vT)}")
    st.e(f"v_lshl_add_u32 {v(vT)}, {v(vT)}, 4, {v(vT + 1)}")
    st.e(f"v_mul_u32_u24 {v(vT)}, 1280, {v(vT)}")
    st.e(f"v_lshrrev_b32 {v(vT + 1)}, 4, {v(V_LANE)}")
    st.e(f"v_and_b32 {v(vT + 2)}, 7, {v(V_LANE)}")
    st.e(f"v_xor_b32 {v(vT + 1)}, {v(vT + 1)}, {v(vT + 2)}")
    st.e(f"v_lshl_add_u32 {v(vDX)}, {v(vT + 1)}, 4, {v(vT)}")
    st.e(f"v_xor_b32 {v(vDX + 1)}, 64, {v(vDX)}")
    st.e(f"v_add_u32 {v(vDX + 1)}, {4096}, {v(vDX + 1)}")
    st.e(f"v_add_u32 {v(vDX + 2)}, {8192}, {v(vDX)}")
    st.e(f"v_add_u32 {v(vDX + 3)}, {8192}, {v(vDX + 1)}")
    st.e(f"s_lshl_b32 {s(S_T0)}, {s(S_RB)}, 2")
    st.e(f"s_add_u32 {s(S_T0)}, {s(S_T0)}, {s(S_W)}")
    st.e(f"s_mul_i32 {s(sOX)}, {s(S_T0)}, {32 * 1280}")
    st.e(f"s_lshl_b32 {s(sMX)}, {s(S_W)}, 12")
    for i in range(3):
        if i:
            st.e(f"v_add_u32 {v(vT)}, {64 * i}, {v(V_LANE)}")
        q = V_LANE if i == 0 else vT
        st.e(f"v_mul_u32_u24 {v(vT + 1)}, 43691, {v(q)}")
        st.e(f"v_lshrrev_b32 {v(vT + 1)}, 19, {v(vT + 1)}")
        st.e(f"v_mul_u32_u24 {v(vT + 1)}, {3072 - 192}, {v(vT + 1)}")
        st.e(f"v_add_u32 {v(vDW + i)}, {v(vT + 1)}, {v(V_L16)}")
    st.e(f"s_mul_i32 {s(sOW)}, {s(S_CS)}, 192")
    st.e(f"s_mul_i32 {s(S_T0)}, {s(S_W)}, {16 * 3072}")
    st.e(f"s_add_u32 {s(sOW)}, {s(sOW)}, {s(S_T0)}")
    st.e(f"s_mul_i32 {s(sMW)}, {s(S_W)}, 3072")
    st.e(f"s_add_u32 {s(sMW)}, {s(sMW)}, {O_W1}")
    st.e("s_waitcnt lgkmcnt(0)")
    stamp = Stamper(st, sr, "G", 14)
    stamp("start")
    srd(st, R_W1, P_W1, 640 * 3072)
    srd(st, R_X, P_X, 2048 * 1280)
    ids = {}
    xpol = " nt" if OPT["xnt"] else ""

    def dma_w(c):
        out = [("e", f"s_add_u32 m0, {s(sMW)}, {(c % 3) * WSZ}"), ("e", "s_nop 0")]
        for i in range(3):
            out.append(("vm", f"buffer_load_dwordx4 {v(vDW + i)}, {s(R_W1, 4)}, {s(sOW)} offen offset:{1024 * i} lds",
                        (ids, ("w", c))))
        out.append(("e", f"s_add_u32 {s(sOW)}, {s(sOW)}, {64 * 3072}"))
        return out

    def dma_x(c):
        out = [("e", f"s_add_u32 m0, {s(sMX)}, {(c % 4) * XS}"), ("e", "s_nop 0")]
        for i in range(4):
            out.append(("vm", f"buffer_load_dwordx4 {v(vDX + i)}, {s(R_X, 4)}, {s(sOX)} offen offset:{1024 * i}{xpol} lds",
                        (ids, ("x", c))))
        out.append(("e", f"s_add_u32 {s(sOX)}, {s(sOX)}, 128"))
        return out

    if OPT["pf"] >= 2:
        st.e("s_barrier")
    puts(st, dma_w(0) + dma_x(0))
    xread_addrs(st, vX, vT)
    st.e(f"v_bfe_u32 {v(vT)}, {v(V_LANE)}, 2, 2")
    st.e(f"v_lshrrev_b32 {v(vT + 1)}, 5, {v(V_LANE)}")
    st.e(f"v_lshl_add_u32 {v(vT)}, {v(vT + 1)}, 3, {v(vT)}")
    st.e(f"v_mul_u32_u24 {v(vT)}, 192, {v(vT)}")
    st.e(f"v_and_b32 {v(vT + 1)}, 3, {v(V_LANE)}")
    st.e(f"v_lshl_add_u32 {v(vT)}, {v(vT + 1)}, 3, {v(vT)}")
    st.e(f"v_bfe_u32 {v(vT + 1)}, {v(V_LANE)}, 4, 1")
    st.e(f"v_lshl_add_u32 {v(vT)}, {v(vT + 1)}, 5, {v(vT)}")
    st.e(f"v_add_u32 {v(vW)}, {O_W1}, {v(vT)}")
    srd(st, R_WS, P_WS, 0x10000000)
    st.vm(f"buffer_load_dword {v(V_EP)}, off, {s(R_WS, 4)}, 0 sc1")
    st.e(f"v_and_b32 {v(vT)}, 31, {v(V_LANE)}")
    st.e(f"s_mul_i32 {s(S_T0)}, {s(S_CS)}, 192")
    st.e(f"v_lshl_add_u32 {v(vT)}, {v(vT)}, 1, {s(S_T0)}")
    for b in range(3):
        idb = st.vm(f"global_load_ushort {v(bias + 4 * b)}, {v(vT)}, {s(P_B1, 2)} offset:{64 * b}")
    st.e(f"v_add_u32 {v(vL16b)}, 3072, {v(V_L16)}")
    st.e(f"v_add_u32 {v(vL16c)}, 4096, {v(V_L16)}")
    pack_flag_addr(st, vPF, vT)
    st.e(f"v_bfe_u32 {v(vT)}, {v(V_LANE)}, 2, 1")
    st.e(f"v_mul_u32_u24 {v(vT)}, {RTS}, {v(vT)}")
    st.e(f"v_lshrrev_b32 {v(vT + 1)}, 5, {v(V_LANE)}")
    st.e(f"v_lshl_add_u32 {v(vT)}, {v(vT + 1)}, 8, {v(vT)}")
    st.e(f"v_bfe_u32 {v(vT + 1)}, {v(V_LANE)}, 3, 2")
    st.e(f"v_lshl_add_u32 {v(vT)}, {v(vT + 1)}, 6, {v(vT)}")
    st.e(f"v_and_b32 {v(vT + 1)}, 3, {v(V_LANE)}")
    st.e(f"v_lshl_add_u32 {v(vHS)}, {v(vT + 1)}, 4, {v(vT)}")
    st.e(f"s_lshl_b32 {s(S_T0)}, {s(S_RB)}, 4")
    st.e(f"s_lshl_b32 {s(S_T1)}, {s(S_W)}, 2")
    st.e(f"s_add_u32 {s(S_T0)}, {s(S_T0)}, {s(S_T1)}")
    st.e(f"s_lshl_b32 {s(S_T0)}, {s(S_T0)}, 7")
    st.e(f"s_lshl_b32 {s(S_T1)}, {s(S_HH)}, 3")
    st.e(f"s_add_u32 {s(S_T0)}, {s(S_T0)}, {s(S_T1)}")
    st.e(f"s_add_u32 {s(S_T0)}, {s(S_T0)}, {WS_FM:#x}")
    st.e(f"v_bfe_u32 {v(vT)}, {v(V_LANE)}, 1, 2")
    st.e(f"v_and_b32 {v(vT + 1)}, 1, {v(V_LANE)}")
    st.e(f"v_lshlrev_b32 {v(vT + 1)}, 2, {v(vT + 1)}")
    st.e(f"v_lshl_add_u32 {v(vT)}, {v(vT)}, 7, {v(vT + 1)}")
    st.e(f"v_add_u32 {v(vFM)}, {s(S_T0)}, {v(vT)}")
    st.e(f"s_mul_i32 {s(sWg)}, {s(S_NS)}, {NSS}")
    st.e(f"s_mul_i32 {s(S_T0)}, {s(S_W)}, {12 * 5120}")
    st.e(f"s_add_u32 {s(sWg)}, {s(sWg)}, {s(S_T0)}")
    st.e(f"s_add_u32 {s(sWg)}, {s(sWg)}, {WS_W2P:#x}")
    st.e(f"s_add_u32 {s(sW2)}, {s(sWg)}, 3072")
    st.e(f"s_mul_i32 {s(sMP)}, {s(S_W)}, 24576")
    st.e(f"v_add_u32 {v(vLW)}, {s(sMP)}, {v(V_L16)}")
    st.e(f"s_mov_b32 {s(sFS)}, {WS_FS - WS_FM:#x}")
    st.e(f"s_lshl_b32 {s(S_T1)}, {s(S_RB)}, 1")
    st.e(f"s_add_u32 {s(S_T1)}, {s(S_T1)}, {s(S_HH)}")
    st.e(f"s_mul_i32 {s(S_T1)}, {s(S_T1)}, {4 * RTS}")
    st.e(f"s_mul_i32 {s(S_T2)}, {s(S_W)}, {12 * 1024}")
    st.e(f"s_add_u32 {s(S_T1)}, {s(S_T1)}, {s(S_T2)}")
    st.e(f"s_add_u32 {s(sH)}, {s(S_T1)}, {WS_H:#x}")
    for mt in range(1, 4):
        st.e(f"s_add_u32 {s(sH + mt)}, {s(sH + mt - 1)}, {RTS}")
    for b in range(3):
        for k in range(1, 4):
            st.e(f"v_mov_b32 {v(bias + 4 * b + k)}, 0")
    st.e(f"v_mov_b32 {v(bias + 12)}, 0x3f80")
    for k in range(1, 4):
        st.e(f"v_mov_b32 {v(bias + 12 + k)}, 0")

    DIST = OPT["dist"]
    for c in range(1, DIST):
        puts(st, dma_w(c) + dma_x(c))

    def reads(c, sidx):
        p = sidx & 1
        out = [("lg", f"ds_read_b128 {v(fX[p], 4)}, {v(vX + sidx)} offset:{(c % 4) * XS}")]
        for b in range(3):
            for e2 in range(2):
                off = (c % 3) * WSZ + sidx * 3072 + e2 * 768 + b * 64
                out.append(("lg", f"ds_read_b64_tr_b16 {v(fW[p][b] + 2 * e2, 2)}, {v(vW)} offset:{off}"))
        return out

    def mfmas(c, sidx):
        p = sidx & 1
        first = (c == 0 and sidx == 0)
        return [("e", f"v_mfma_f32_32x32x16_bf16 {v(acc1[b], 16)}, {v(fW[p][b], 4)}, {v(fX[p], 4)}, "
                      + ("0" if first else v(acc1[b], 16))) for b in range(3)]

    st.wait(vm=max(ids["x", 0], ids["w", 0]))
    st.e("s_barrier")
    stamp("B0")
    puts(st, reads(0, 0))
    pfl = f"buffer_load_dword {v(vPD)}, {v(vPF)}, {s(R_WS, 4)}, 0 offen sc1"

    def span(cb):
        return split_vm(dma_w(cb + DIST) + dma_x(cb + DIST), 4) if cb + DIST <= 9 else [[], [], [], []]

    sp = [[]] + split_vm(dma_w(DIST) + dma_x(DIST), 3)
    for c in range(10):
        for sidx in range(4):
            if sidx < 3:
                st.wait(lg="all")
                sides = reads(c, sidx + 1) + sp[sidx + 1]
                if c == 3 and sidx == 0:
                    assert ids["w", 3] > idb
                    sides = sides + [("e", f"v_cmp_gt_u32 vcc, 32, {v(V_LANE)}")] + nonce_items()
                    sides += [("e", f"v_cndmask_b32 {v(bias + 4 * b)}, 0, {v(bias + 4 * b)}, vcc") for b in range(3)]
                mains = mfmas(c, sidx)
                if c == 3 and sidx == 1:
                    mains += [("e", f"v_mfma_f32_32x32x16_bf16 {v(acc1[b], 16)}, {v(bias + 4 * b, 4)}, "
                                    f"{v(bias + 12, 4)}, {v(acc1[b], 16)}") for b in range(3)]
                interleave(st, mains, sides)
            else:
                if c < 9:
                    st.wait(vm=max(ids["x", c + 1], ids["w", c + 1]), lg="all")
                else:
                    st.wait(lg="all")
                st.e("s_barrier")
                if c in (2, 5, 8):
                    stamp(f"B{c + 1}")
                sp = span(c + 1)
                sides = reads(c + 1, 0) if c < 9 else [("vm", pfl, (ids, "pf"))]
                interleave(st, mfmas(c, sidx), sides + sp[0])
    stamp("loopend")
    if OPT["prioG"]:
        st.e(f"s_setprio {OPT['prioG']}")
    st.e(f"s_lshl_b32 {s(S_T0)}, {s(S_RB)}, 2")
    st.e(f"s_add_u32 {s(S_T0)}, {s(S_T0)}, {s(S_W)}")
    st.e(f"s_mul_i32 {s(S_T0)}, {s(S_T0)}, {2 * RTS}")
    st.e(f"s_mul_i32 {s(S_T1)}, {s(S_CS)}, {12 * 256}")
    st.e(f"s_add_u32 {s(S_T0)}, {s(S_T0)}, {s(S_T1)}")
    st.e(f"s_add_u32 {s(S_T0)}, {s(S_T0)}, {WS_H:#x}")
    st.nop(6)
    for b in range(3):
        for e2 in range(2):
            a0 = acc1[b] + 8 * e2
            for j in range(8):
                st.e(f"v_max_f32 {v(a0 + j)}, 0, {v(a0 + j)}")
            for j in range(0, 8, 2):
                st.e(f"v_pk_mul_f32 {v(a0 + j, 2)}, {v(a0 + j, 2)}, {v(a0 + j, 2)}")
            for j in range(4):
                st.e(f"v_cvt_pk_bf16_f32 {v(cv + 8 * b + 4 * e2 + j)}, {v(a0 + 2 * j)}, {v(a0 + 2 * j + 1)}")
            hst = st.vm(f"buffer_store_dwordx4 {v(cv + 8 * b + 4 * e2, 4)}, {v(vHS)}, {s(R_WS, 4)}, {s(S_T0)} "
                        f"offen offset:{b * 1024 + e2 * 512} sc1")
    stamp("Hstored")
    acc2 = BIG
    Hb = [BIG + 80 + 16 * d for d in range(D)]
    Wb = [BIG + 80 + 16 * D + 20 * d for d in range(D)]
    assert Wb[-1] + 20 <= 256
    NST = 22
    state = dict(w=0, h=0)
    last = {}

    def w_loads(i):
        out = []
        assert state["w"] == i
        if i == 12:
            out.append(("e", f"s_mul_i32 {s(S_T2)}, {s(S_W)}, {2 * 5120}"))
            out.append(("e", f"s_sub_u32 {s(sWg)}, {s(sWg)}, {s(S_T2)}"))
            out.append(("e", f"s_add_u32 {s(sWg)}, {s(sWg)}, {36 * 5120}"))
        for nt in (range(3) if i < 12 else range(5)):
            va, off = (V_L16, nt * 1024) if nt < 4 else (vL16c, 0)
            out.append(("vm", f"buffer_load_dwordx4 {v(Wb[i % D] + 4 * nt, 4)}, {v(va)}, {s(R_WS, 4)}, {s(sWg)} "
                              f"offen offset:{off} sc1", (last, ("w", i))))
        out.append(("e", f"s_add_u32 {s(sWg)}, {s(sWg)}, 5120"))
        state["w"] += 1
        return out

    def h_loads(i):
        out = []
        assert state["h"] == i
        j = i if i < 12 else i - 12
        if i == 12:
            out.append(("e", f"s_mul_i32 {s(S_T2)}, {s(S_W)}, {2 * 1024}"))
            out.append(("e", f"s_sub_u32 {s(S_T2)}, {36 * 1024 + 4096}, {s(S_T2)}"))
            for mt in range(4):
                out.append(("e", f"s_add_u32 {s(sH + mt)}, {s(sH + mt)}, {s(S_T2)}"))
        elif j % 4 == 0 and j > 0:
            for mt in range(4):
                out.append(("e", f"s_add_u32 {s(sH + mt)}, {s(sH + mt)}, 4096"))
        for mt in range(4):
            out.append(("vm", f"buffer_load_dwordx4 {v(Hb[i % D] + 4 * mt, 4)}, {v(V_L16)}, {s(R_WS, 4)}, {s(sH + mt)} "
                              f"offen offset:{(j % 4) * 1024} sc1", (last, ("h", i))))
        state["h"] += 1
        return out

    def tile_dma(g):
        return [("e", f"s_add_u32 m0, {s(sMP)}, {g * 4096}"),
                ("e", "s_nop 0"),
                ("vm", f"buffer_load_dwordx4 {v(V_L16)}, {s(R_WS, 4)}, {s(sW2)} offen sc1 lds"),
                ("vm", f"buffer_load_dwordx4 {v(V_L16)}, {s(R_WS, 4)}, {s(sW2)} offen offset:1024 sc1 lds"),
                ("vm", f"buffer_load_dwordx4 {v(vL16b)}, {s(R_WS, 4)}, {s(sW2)} offen offset:2048 sc1 lds"),
                ("vm", f"buffer_load_dwordx4 {v(vL16b)}, {s(R_WS, 4)}, {s(sW2)} offen offset:3072 sc1 lds", (last, ("t", g))),
                ("e", f"s_add_u32 {s(sW2)}, {s(sW2)}, {2 * 5120}")]

    def lds_w(i):
        return [("lg", f"ds_read_b128 {v(Wb[i % D] + 12 + 4 * k, 4)}, {v(vLW)} offset:{i * 2048 + k * 1024}")
                for k in range(2)]

    st.wait(vm=ids["pf"])
    flag_check(st, vPD, pfl)
    if OPT["prioG"]:
        st.e("s_setprio 0")
    pre = []
    for g in range(6):
        if 2 * g < D:
            pre += w_loads(2 * g)
        pre += tile_dma(g)
        if 2 * g + 1 < D:
            pre += w_loads(2 * g + 1)
    k, nvm = 0, 0
    while k < len(pre) and (nvm < OPT["npre"] or pre[k][0] != "e" or not pre[k][1].startswith("s_add_u32 m0")):
        put(st, pre[k])
        nvm += pre[k][0] == "vm"
        k += 1
    rest = pre[k:]
    st.e(f"s_lshl_b32 {s(S_T0)}, {s(S_RB)}, 4")
    st.e(f"s_add_u32 {s(S_T0)}, {s(S_T0)}, {s(S_CS)}")
    st.e(f"s_lshl_b32 {s(S_T0)}, {s(S_T0)}, 5")
    st.e(f"s_add_u32 {s(S_T0)}, {s(S_T0)}, {s(S_W)}")
    st.e(f"s_lshl_b32 {s(S_T0)}, {s(S_T0)}, 2")
    st.e(f"s_add_u32 {s(S_T0)}, {s(S_T0)}, {WS_FM:#x}")
    st.e(f"v_mov_b32 {v(vT)}, {s(S_NONCE)}")
    if OPT["prioG"]:
        st.e(f"s_setprio {OPT['prioG']}")
    st.wait(vm=hst)
    st.vm(one_lane_store(vT, s(S_T0)))
    stamp("FMset")

    def poll(reg, fs):
        return f"buffer_load_dword {v(vPD + reg)}, {v(vFM)}, {s(R_WS, 4)}, {s(sFS) if fs else 0} offen sc1"

    if OPT["prioG"]:
        st.e("s_setprio 0")
    nrest = sum(it[0] == "vm" for it in rest)
    k, nvm, pid = 0, 0, None
    for it in rest:
        if pid is None and nvm >= nrest - OPT["npost"] and it[1].startswith("s_add_u32 m0"):
            pid = st.vm(poll(0, False))
        put(st, it)
        nvm += it[0] == "vm"
    if pid is None:
        pid = st.vm(poll(0, False))
    st.wait(vm=pid)
    flag_check(st, vPD, poll(0, False), mask=0x3)
    stamp("FMok")
    for i in range(D - 1):
        puts(st, h_loads(i))
    st.wait(vm=last["t", 0])
    puts(st, lds_w(0))
    need = {3: (False, 1), 6: (False, 2), 9: (False, 3), 12: (True, 0), 14: (True, 1), 17: (True, 2), 19: (True, 3)}
    pollreg = {}
    vER = vDX
    epi = {}
    preg = 1
    for i in range(NST):
        p = i % D
        sides = []
        nxt = i + D - 1
        if nxt + 2 in need:
            fs, kk = need[nxt + 2]
            pollreg[nxt + 2] = preg
            sides.append(("vm", poll(preg, fs), (last, ("p", nxt + 2))))
            preg ^= 1
        w_ids = [last["h", i], last["w", i]]
        if i + 1 < 12:
            w_ids.append(last["t", (i + 1) >> 1])
        if nxt in need and ("p", nxt) in last:
            w_ids.append(last["p", nxt])
        st.wait(vm=max(w_ids), lg="all")
        if nxt in need:
            fs, kk = need[nxt]
            r = pollreg.get(nxt, 0)
            flag_check(st, vPD + r, poll(r, fs), mask=0x3 << (2 * kk))
            if nxt == 12:
                stamp("FSok")
        if i == 10:
            st.e(f"v_mov_b32 {v(vW)}, {SY}")
            lds_flag_wait(st, vW, 32, vT)
            st.e(f"v_and_b32 {v(vT)}, 15, {v(V_LANE)}")
            st.e(f"s_lshl_b32 {s(S_T0)}, {s(S_HH)}, 8")
            st.e(f"s_add_u32 {s(S_T0)}, {s(S_T0)}, {GB}")
            st.e(f"v_lshl_add_u32 {v(vT)}, {v(vT)}, 2, {s(S_T0)}")
            for mt in range(4):
                sides.append(("lg", f"ds_read_b32 {v(vG + mt)}, {v(vT)} offset:{64 * mt}"))
        if i == 11:
            for mt in range(4):
                sides.append(("e", f"v_sub_f32 {v(vG + mt)}, 1.0, {v(vG + mt)}"))
        if i == 12:
            stamp("mlpend")
            st.nop(4)
            for mt in range(4):
                for nt in range(5):
                    a0 = acc2 + 20 * mt + 4 * nt
                    for k in range(4):
                        st.e(f"v_mul_f32 {v(a0 + k)}, {v(vG + mt)}, {v(a0 + k)}")
            st.nop(2)
        if i == NST - 2:
            st.e("s_barrier")
        if nxt < NST:
            if nxt >= D:
                sides += w_loads(nxt)
            sides += h_loads(nxt)
        if i + 1 < 12:
            sides += lds_w(i + 1)
        if i == NST - D + 1:
            fr = Hb[(i - 1) % D]
            epi["x"], epi["dsk"], epi["b2"] = fr, fr + 12, fr + 14
            sides.append(("e", f"v_mul_u32_u24 {v(vER)}, 205, {v(V_LANE)}"))
            sides.append(("e", f"v_lshrrev_b32 {v(vER)}, 12, {v(vER)}"))
            sides.append(("e", f"v_mul_u32_u24 {v(vER + 1)}, 20, {v(vER)}"))
            sides.append(("e", f"v_sub_u32 {v(vER + 1)}, {v(V_LANE)}, {v(vER + 1)}"))
            sides.append(("e", f"s_mul_i32 {s(S_T0)}, {s(S_NS)}, 160"))
            sides.append(("e", f"v_lshl_add_u32 {v(vER + 2)}, {v(vER + 1)}, 3, {s(S_T0)}"))
            sides.append(("vm", f"global_load_dwordx2 {v(epi['dsk'], 2)}, {v(vER + 2)}, {s(P_DSK, 2)}"))
            sides.append(("vm", f"global_load_dwordx2 {v(epi['b2'], 2)}, {v(vER + 2)}, {s(P_B2, 2)}"))
            sides.append(("e", f"s_lshl_b32 {s(S_T1)}, {s(S_RB)}, 1"))
            sides.append(("e", f"s_add_u32 {s(S_T1)}, {s(S_T1)}, {s(S_HH)}"))
            sides.append(("e", f"s_lshl_b32 {s(S_T1)}, {s(S_T1)}, 2"))
            sides.append(("e", f"s_add_u32 {s(S_T1)}, {s(S_T1)}, {s(S_W)}"))
            sides.append(("e", f"s_mul_i32 {s(sOW)}, {s(S_T1)}, {16 * 1280}"))
            sides.append(("e", f"v_mul_u32_u24 {v(vER + 3)}, 1280, {v(vER)}"))
            sides.append(("e", f"v_add_u32 {v(vER + 3)}, {v(vER + 3)}, {v(vER + 2)}"))
            for k in range(6):
                sides.append(("vm", f"buffer_load_dwordx2 {v(epi['x'] + 2 * k, 2)}, {v(vER + 3)}, {s(R_X, 4)}, {s(sOW)} offen",
                              (epi, "id")))
                if k < 5:
                    sides.append(("e", f"s_add_u32 {s(sOW)}, {s(sOW)}, {3 * 1280}"))
        mains = []
        for mt in range(4):
            for nt in range(5):
                a0 = acc2 + 20 * mt + 4 * nt
                cin = "0" if i == 0 else v(a0, 4)
                mains.append(("e", f"v_mfma_f32_16x16x32_bf16 {v(a0, 4)}, {v(Wb[p] + 4 * nt, 4)}, {v(Hb[p] + 4 * mt, 4)}, {cin}"))
        interleave(st, mains, sides)
        if i == NST - 2:
            fe = Wb[(i - 1) % D]
            fe2 = Hb[(i - 1) % D]
            E = [fe + 4 * k for k in range(5)] + [fe2]
            un = fe2 + 4
            st.e(f"s_lshl_b32 {s(S_T0)}, {s(S_HH)}, 2")
            st.e(f"s_add_u32 {s(S_T0)}, {s(S_T0)}, {s(S_W)}")
            st.e(f"s_lshl_b32 {s(S_T0)}, {s(S_T0)}, 6")
            st.e(f"s_add_u32 {s(S_T0)}, {s(S_T0)}, {GB}")
            st.e(f"v_lshl_add_u32 {v(vT)}, {v(vER)}, 2, {s(S_T0)}")
            gks = [vX, vX + 1, vX + 2, vX + 3, vG, vG + 1]
            for k in range(6):
                st.lg(f"ds_read_b32 {v(gks[k])}, {v(vT)} offset:{12 * k}")
            st.e(f"v_mov_b32 {v(vT + 1)}, 0xffff0000")
            st.wait(vm=epi["id"], lg="all")
            for q, src in ((0, epi["dsk"]), (4, epi["b2"])):
                st.e(f"v_lshlrev_b32 {v(un + q)}, 16, {v(src)}")
                st.e(f"v_and_b32 {v(un + q + 1)}, {v(vT + 1)}, {v(src)}")
                st.e(f"v_lshlrev_b32 {v(un + q + 2)}, 16, {v(src + 1)}")
                st.e(f"v_and_b32 {v(un + q + 3)}, {v(vT + 1)}, {v(src + 1)}")
            for k in range(6):
                xs = epi["x"] + 2 * k
                st.e(f"v_lshlrev_b32 {v(E[k])}, 16, {v(xs)}")
                st.e(f"v_and_b32 {v(E[k] + 1)}, {v(vT + 1)}, {v(xs)}")
                st.e(f"v_lshlrev_b32 {v(E[k] + 2)}, 16, {v(xs + 1)}")
                st.e(f"v_and_b32 {v(E[k] + 3)}, {v(vT + 1)}, {v(xs + 1)}")
                for q in range(4):
                    st.e(f"v_fma_f32 {v(E[k] + q)}, {v(E[k] + q)}, {v(un + q)}, -{v(un + 4 + q)}")
                for q in range(4):
                    st.e(f"v_fma_f32 {v(E[k] + q)}, {v(E[k] + q)}, {v(gks[k])}, {v(un + 4 + q)}")
            epi["E"] = E
            st.e(f"v_and_b32 {v(vT)}, 15, {v(V_LANE)}")
            st.e(f"v_mul_u32_u24 {v(vT)}, 336, {v(vT)}")
            st.e(f"v_lshrrev_b32 {v(vT + 1)}, 4, {v(V_LANE)}")
            st.e(f"v_lshl_add_u32 {v(vT)}, {v(vT + 1)}, 4, {v(vT)}")
            st.e(f"s_mul_i32 {s(S_T0)}, {s(S_W)}, {PARTW}")
            st.e(f"v_add_u32 {v(vT)}, {s(S_T0)}, {v(vT)}")
            st.e(f"s_mul_i32 {s(S_T0)}, {s(S_W)}, {16 * 336}")
            st.e(f"v_mul_u32_u24 {v(vT + 1)}, 336, {v(vER)}")
            st.e(f"v_lshl_add_u32 {v(vT + 1)}, {v(vER + 1)}, 4, {v(vT + 1)}")
            st.e(f"v_add_u32 {v(vT + 1)}, {s(S_T0)}, {v(vT + 1)}")
            st.e(f"v_add_u32 {v(vT + 2)}, {2 * PARTW}, {v(vT + 1)}")
            srd(st, R_W1, P_OUT, 2048 * 2560)
            st.e(f"v_mul_u32_u24 {v(vER + 3)}, 2560, {v(vER)}")
            st.e(f"v_lshl_add_u32 {v(vER + 3)}, {v(vER + 2)}, 1, {v(vER + 3)}")
            st.e(f"v_cmp_gt_u32 vcc, 60, {v(V_LANE)}")
            st.e(f"v_mov_b32 {v(vER + 2)}, 0x80000000")
            st.e(f"s_mul_i32 {s(sOW)}, {s(S_T1)}, {16 * 2560}")
            st.e(f"v_cndmask_b32 {v(vER + 3)}, {v(vER + 2)}, {v(vER + 3)}, vcc")
            st.e(f"v_cmp_gt_u32 vcc, 20, {v(V_LANE)}")
            st.e("s_nop 1")
            st.e(f"v_cndmask_b32 {v(vER + 2)}, {v(vER + 2)}, {v(vER + 3)}, vcc")
    stamp("kend")
    R_O = R_W1
    for mt in range(4):
        for nt in range(5):
            if mt == 3 and nt == 0:
                st.wait(lg=st.lg_issued - 4)
            st.lg(f"ds_write_b128 {v(vT)}, {v(acc2 + 20 * mt + 4 * nt, 4)} offset:{mt * 16 * 336 + nt * 64}")
    st.wait(lg="all")
    st.e("s_barrier")
    stamp("red")
    E = epi["E"]
    busy = set()
    for r in E:
        busy.update(range(r, r + 4))
    free = [r for r in range(BIG, 256, 4) if not (set(range(r, r + 4)) & busy)]
    rd = {(k, pw): free[4 * k + pw] for k in range(6) for pw in range(4)}
    lgid = {}

    def issue_reads(k):
        for pw in range(4):
            ra = vT + 1 + (pw >> 1)
            lgid[k] = st.lg(f"ds_read_b128 {v(rd[k, pw], 4)}, {v(ra)} offset:{(pw & 1) * PARTW + k * 3 * 336}")

    opol = {0: "", 1: " sc1", 2: " nt", 3: " sc0 sc1", 4: " sc1 nt"}[OPT["outpol"]]
    for k in range(3):
        issue_reads(k)
    for k in range(6):
        st.wait(lg=lgid[k])
        if k + 3 < 6:
            issue_reads(k + 3)
        for q in (0, 2):
            st.e(f"v_pk_add_f32 {v(rd[k, 0] + q, 2)}, {v(rd[k, 0] + q, 2)}, {v(rd[k, 1] + q, 2)}")
            st.e(f"v_pk_add_f32 {v(rd[k, 2] + q, 2)}, {v(rd[k, 2] + q, 2)}, {v(rd[k, 3] + q, 2)}")
        for q in (0, 2):
            st.e(f"v_pk_add_f32 {v(E[k] + q, 2)}, {v(E[k] + q, 2)}, {v(rd[k, 0] + q, 2)}")
        for q in (0, 2):
            st.e(f"v_pk_add_f32 {v(E[k] + q, 2)}, {v(E[k] + q, 2)}, {v(rd[k, 2] + q, 2)}")
        st.vm(f"buffer_store_dwordx4 {v(E[k], 4)}, {v(vER + 3 if k < 5 else vER + 2)}, {s(R_O, 4)}, {s(sOW)} offen{opol}")
        if k < 5:
            st.e(f"s_add_u32 {s(sOW)}, {s(sOW)}, {3 * 2560}")
    skip = newlabel("noep")
    st.e(f"s_lshl_b32 {s(S_T0)}, {s(S_CS)}, 2")
    st.e(f"s_add_u32 {s(S_T0)}, {s(S_T0)}, {s(S_W)}")
    st.e(f"s_lshl_b32 {s(S_T0)}, {s(S_T0)}, 4")
    st.e(f"s_add_u32 {s(S_T0)}, {s(S_T0)}, {s(S_RB)}")
    st.e(f"s_cmp_lg_u32 {s(S_T0)}, 15")
    st.e(f"s_cbranch_scc1 {skip}")
    st.e(f"v_mov_b32 {v(vT)}, {s(S_NONCE)}")
    st.e(one_lane_store(vT, "0"))
    st.label(skip)
    stamp("end")
    stamp.flush(vT)
    if OPT["pad"]:
        if OPT["cycA"]:
            st.e("s_waitcnt lgkmcnt(0)")
            st.e("s_sub_u32 s98, s100, s98")
            st.e("s_lshr_b32 s98, s98, 3")
            st.e(f"s_add_u32 {s(stamp.rt0)}, {s(stamp.rt0)}, s98")
        st.label("L_pad")
        st.e(f"s_memrealtime {s(S_T0, 2)}")
        st.e("s_waitcnt lgkmcnt(0)")
        st.e(f"s_sub_u32 {s(S_T0)}, {s(S_T0)}, {s(stamp.rt0)}")
        st.e(f"s_cmp_lt_i32 {s(S_T0)}, {OPT['pad'] * 100}")
        st.e("s_cbranch_scc1 L_pad")
    st.e("s_endpgm")
    return stamp.names


def gen_S(st):
    sr = Regs("s", S_FREE, 102)
    vr = Regs("v", 4, 256)
    st.label("L_S")
    R_A = sr.alloc("R_A", 4, 4)
    R_B = sr.alloc("R_B", 4, 4)
    sE5 = sr.alloc("sE5", 2)
    sOA, sOB, sMA, sMB, sTy = [sr.alloc(n) for n in ("sOA", "sOB", "sMA", "sMB", "sTy")]
    sP = sr.alloc("sP", 4)
    sQ = sr.alloc("sQ", 4)
    R_P, R_Q = 20, 4
    sMask = [P_X, P_DSK, P_BX, P_B1, P_B2, P_OUT, P_DBG]
    vDA = vr.alloc("vDA", 3)
    vX = vr.alloc("vX", 4)
    vB = vr.alloc("vB", 4)
    vB2 = vr.alloc("vB2", 4)
    vPK = vr.alloc("vPK")
    vPR = vr.alloc("vPR")
    vSig = vr.alloc("vSig")
    vSgn = vr.alloc("vSgn")
    vDum = vr.alloc("vDum")
    vA = vr.alloc("vA", 6)
    vC = vr.alloc("vC", 4)
    vT = vr.alloc("vT", 4, 4)
    acc = [vr.alloc(f"acc{b}", 16, 4) for b in range(3)]
    frag = vr.alloc("frag", 32, 4)
    fX = [frag + 16 * p for p in range(2)]
    fB = [[frag + 16 * p + 4 + 4 * b for b in range(3)] for p in range(2)]
    names = ["lr", "li", "l16r", "l16i", "psr", "psi", "qr", "qi", "r8r", "r8i", "A", "Bc"]
    K = {n: [vr.alloc(f"{n}{b}") for b in range(3)] for n in names}
    tn = ["Lr", "Li", "dt", "la", "rv", "m", "an", "cs", "liu"]
    Tm = {n: [vr.alloc(f"t{n}{b}") for b in range(3)] for n in tn}
    big = vr.alloc("big", 48, 4)

    st.e(f"s_sub_u32 {s(S_W)}, {s(S_W)}, 4")
    ncp = 0
    if OPT["cpf"]:
        skip = newlabel("nocp")
        st.e(f"s_cmp_lg_u32 {s(S_W)}, 3")
        st.e(f"s_cbranch_scc1 {skip}")
        st.e(f"s_getpc_b64 {s(S_T2, 2)}")
        st.label("L_pc")
        st.e(f"s_sub_u32 {s(S_T2)}, {s(S_T2)}, L_pc-{NAME}_kernel")
        st.e(f"s_subb_u32 {s(S_T3)}, {s(S_T3)}, 0")
        st.e(f"v_and_b32 {v(vC + 1)}, 7, {v(V_LANE)}")
        st.e(f"v_lshl_add_u32 {v(vC + 1)}, {v(vC + 1)}, 5, {s(S_T1)}")
        st.e(f"v_min_u32 {v(vC + 1)}, (L_end-{NAME}_kernel)/128, {v(vC + 1)}")
        st.e(f"v_lshlrev_b32 {v(vC + 1)}, 7, {v(vC + 1)}")
        st.e("s_mov_b64 exec, 0xff")
        st.e(f"global_load_dword {v(vC + 2)}, {v(vC + 1)}, {s(S_T2, 2)}")
        st.e("s_mov_b64 exec, -1")
        st.label(skip)
    st.e(f"v_lshrrev_b32 {v(vT)}, 3, {v(V_LANE)}")
    st.e(f"v_mul_u32_u24 {v(vT)}, 1280, {v(vT)}")
    st.e(f"v_and_b32 {v(vT + 1)}, 7, {v(V_LANE)}")
    st.e(f"v_lshl_add_u32 {v(vPK)}, {v(vT + 1)}, 4, {v(vT)}")
    st.e(f"s_lshr_b32 {s(S_T0)}, {s(S_W)}, 1")
    st.e(f"s_and_b32 {s(S_T1)}, {s(S_W)}, 1")
    st.e(f"s_xor_b32 {s(S_T2)}, {s(S_T0)}, {s(S_T1)}")
    st.e(f"s_lshl_b32 {s(S_T2)}, {s(S_T2)}, 2")
    st.e(f"v_lshrrev_b32 {v(vT + 1)}, 4, {v(V_LANE)}")
    st.e(f"v_xor_b32 {v(vT + 1)}, {s(S_T2)}, {v(vT + 1)}")
    st.e(f"v_lshlrev_b32 {v(vT + 1)}, 4, {v(vT + 1)}")
    st.e(f"v_xor_b32 {v(vDA)}, {v(vT + 1)}, {v(vPK)}")
    st.e(f"v_xor_b32 {v(vDA + 1)}, 64, {v(vDA)}")
    st.e(f"v_add_u32 {v(vDA + 1)}, {10240 - 1024}, {v(vDA + 1)}")
    st.e(f"v_add_u32 {v(vDA + 2)}, {2 * 10240}, {v(vDA)}")
    st.e(f"s_mul_i32 {s(sOA)}, {s(S_CS)}, {40 * 1280}")
    st.e(f"s_mul_i32 {s(S_T2)}, {s(S_T1)}, {24 * 1280}")
    st.e(f"s_add_u32 {s(sOA)}, {s(sOA)}, {s(S_T2)}")
    st.e(f"s_mul_i32 {s(sMA)}, {s(S_T0)}, 5120")
    st.e(f"s_mul_i32 {s(S_T2)}, {s(S_T1)}, 3072")
    st.e(f"s_add_u32 {s(sMA)}, {s(sMA)}, {s(S_T2)}")
    st.e(f"s_add_u32 {s(sMA)}, {s(sMA)}, {O_B}")
    st.e(f"s_add_u32 {s(sMB)}, {s(sMA)}, 2048")
    st.e(f"s_cmp_eq_u32 {s(S_T1)}, 0")
    st.e(f"s_cselect_b64 vcc, -1, 0")
    st.e(f"s_cselect_b32 {s(sOB)}, {s(sOA)}, 0")
    st.e(f"s_cselect_b32 {s(sMB)}, {s(sMB)}, {O_B + 10240}")
    st.e(f"s_cselect_b64 {s(sE5, 2)}, -1, 0xff")
    st.e(f"v_cndmask_b32 {v(vDA + 2)}, {v(V_L16)}, {v(vDA + 2)}, vcc")
    if OPT["pf"] >= 2:
        st.e(f"s_lshl_b32 {s(sQ)}, {s(S_RB)}, 4")
        st.e(f"s_add_u32 {s(sQ)}, {s(sQ)}, {s(S_CS)}")
        st.e(f"s_mul_i32 {s(sQ)}, {s(sQ)}, {8 * 1280}")
        st.e(f"s_mul_i32 {s(sQ + 1)}, {s(S_W)}, 8192")
        st.e(f"s_add_u32 {s(sQ)}, {s(sQ)}, {s(sQ + 1)}")
        st.e(f"s_and_b32 {s(sQ + 1)}, {s(S_RB)}, 7")
        st.e(f"s_mul_i32 {s(sQ + 1)}, {s(sQ + 1)}, 5")
        st.e(f"s_mul_i32 {s(sQ + 2)}, {s(S_CS)}, 40")
        st.e(f"s_add_u32 {s(sQ + 1)}, {s(sQ + 1)}, {s(sQ + 2)}")
        st.e(f"s_mul_i32 {s(sQ + 1)}, {s(sQ + 1)}, 1280")
        st.e(f"s_mul_i32 {s(sQ + 2)}, s2, 7680")
        st.e(f"s_mov_b32 {s(sQ + 3)}, 63")
        st.e(f"s_cmp_eq_u32 {s(S_W)}, 1")
        st.e(f"s_cselect_b32 {s(sQ + 3)}, 15, {s(sQ + 3)}")
        st.e(f"s_cmp_eq_u32 {s(S_W)}, 2")
        st.e(f"s_cselect_b32 {s(sQ + 3)}, 49, {s(sQ + 3)}")
        st.e(f"s_cselect_b32 {s(sQ)}, {s(sQ + 1)}, {s(sQ)}")
        st.e(f"s_cmp_eq_u32 {s(S_W)}, 3")
        st.e(f"s_cselect_b32 {s(sQ + 3)}, 59, {s(sQ + 3)}")
        st.e(f"s_cselect_b32 {s(sQ)}, {s(sQ + 2)}, {s(sQ)}")
        st.e(f"v_min_u32 {v(vC)}, {s(sQ + 3)}, {v(V_LANE)}")
        st.e(f"v_lshl_add_u32 {v(vC)}, {v(vC)}, 7, {s(sQ)}")
    st.e("s_waitcnt lgkmcnt(0)")
    if OPT["pf"] >= 2:
        st.e(f"s_cmp_lt_u32 {s(S_RB)}, 8")
        st.e(f"s_cselect_b64 {s(sP, 2)}, {s(P_BRE, 2)}, {s(P_BIM, 2)}")
        st.e(f"s_cmp_eq_u32 {s(S_W)}, 3")
        st.e(f"s_cselect_b64 {s(sP, 2)}, {s(P_W1, 2)}, {s(sP, 2)}")
        st.e(f"s_cmp_lt_u32 {s(S_W)}, 2")
        st.e(f"s_cselect_b64 {s(sP, 2)}, {s(P_X, 2)}, {s(sP, 2)}")
        st.vm(f"global_load_dword {v(vDum)}, {v(vC)}, {s(sP, 2)}" + (" nt" if OPT["pf"] == 3 else ""))
        st.e("s_barrier")
    stamp = Stamper(st, sr, "S", 11)
    stamp("start")
    st.e(f"s_cmp_eq_u32 {s(S_T0)}, 0")
    st.e(f"s_cselect_b32 {s(R_A)}, {s(P_BRE)}, {s(P_BIM)}")
    st.e(f"s_cselect_b32 {s(R_A + 1)}, {s(P_BRE + 1)}, {s(P_BIM + 1)}")
    st.e(f"s_mov_b32 {s(R_A + 2)}, {640 * 1280:#x}")
    st.e(f"s_mov_b32 {s(R_A + 3)}, 0x20000")
    st.e(f"s_cmp_eq_u32 {s(S_T1)}, 0")
    st.e(f"s_cselect_b32 {s(R_B)}, {s(R_A)}, {s(P_GATE)}")
    st.e(f"s_cselect_b32 {s(R_B + 1)}, {s(R_A + 1)}, {s(P_GATE + 1)}")
    st.e(f"s_cselect_b32 {s(R_B + 2)}, {s(R_A + 2)}, 1280")
    st.e(f"s_mov_b32 {s(R_B + 3)}, 0x20000")
    ids = {}

    def dma_b(c):
        so = (c % 4) * BS
        return [("e", f"s_add_u32 m0, {s(sMA)}, {so}"),
                ("e", "s_nop 0"),
                ("vm", f"buffer_load_dwordx4 {v(vDA)}, {s(R_A, 4)}, {s(sOA)} offen lds"),
                ("vm", f"buffer_load_dwordx4 {v(vDA + 1)}, {s(R_A, 4)}, {s(sOA)} offen offset:1024 lds"),
                ("e", f"s_add_u32 m0, {s(sMB)}, {so}"),
                ("e", f"s_add_u32 {s(sOA)}, {s(sOA)}, 128"),
                ("vm", f"s_mov_b64 exec, {s(sE5, 2)}\n"
                       f"    buffer_load_dwordx4 {v(vDA + 2)}, {s(R_B, 4)}, {s(sOB)} offen lds\n"
                       f"    s_mov_b64 exec, -1", (ids, ("b", c))),
                ("e", f"s_add_u32 {s(sOB)}, {s(sOB)}, 128")]

    puts(st, dma_b(0))
    xread_addrs(st, vX, vT)
    st.e(f"v_and_b32 {v(vT)}, 1, {v(V_LANE)}")
    st.e(f"v_bfe_u32 {v(vT + 1)}, {v(V_LANE)}, 1, 4")
    st.e(f"v_mad_u32_u24 {v(vT + 1)}, {v(vT)}, 40, {v(vT + 1)}")
    st.e(f"v_bfe_u32 {v(vT + 2)}, {v(vT + 1)}, 1, 3")
    st.e(f"v_lshrrev_b32 {v(vT + 3)}, 5, {v(V_LANE)}")
    st.e(f"v_xor_b32 {v(vT + 2)}, {v(vT + 2)}, {v(vT + 3)}")
    st.e(f"v_lshlrev_b32 {v(vT + 2)}, 4, {v(vT + 2)}")
    st.e(f"v_lshl_add_u32 {v(vT + 1)}, {v(vT + 1)}, 7, {v(vT + 2)}")
    st.e(f"v_add_u32 {v(vB)}, {O_B}, {v(vT + 1)}")
    st.e(f"v_add_u32 {v(vB2)}, 4096, {v(vB)}")
    st.e(f"v_lshlrev_b32 {v(vT + 1)}, 4, {v(vT + 3)}")
    st.e(f"v_add_u32 {v(vT + 1)}, {O_B + 10240}, {v(vT + 1)}")
    st.e(f"v_and_b32 {v(vT + 2)}, 16, {v(V_LANE)}")
    st.e(f"v_cmp_eq_u32 vcc, 0, {v(vT + 2)}")
    st.e(f"s_lshl_b32 {s(S_T0)}, {s(S_W)}, 1")
    st.e(f"v_add_u32 {v(vSig)}, {s(S_T0)}, {v(vT + 3)}")
    st.e(f"v_cndmask_b32 {v(vB2)}, {v(vT + 1)}, {v(vB2)}, vcc")
    for base in (vB, vB2):
        for k in range(1, 4):
            st.e(f"v_xor_b32 {v(base + k)}, {32 * k}, {v(base)}")
    st.e(f"v_cvt_f32_u32 {v(vT)}, {v(vT)}")
    st.e(f"v_fma_f32 {v(vSgn)}, {v(vT)}, 2.0, -1.0")
    if OPT["pf"] == 1:
        l1, l2, le = newlabel("pf"), newlabel("pf"), newlabel("pfe")
        st.e(f"v_mul_u32_u24 {v(vT)}, 43, {v(V_LANE)}")
        st.e(f"v_lshrrev_b32 {v(vT)}, 8, {v(vT)}")
        st.e(f"v_mul_u32_u24 {v(vT + 1)}, {1280 - 6 * 128}, {v(vT)}")
        st.e(f"v_lshl_add_u32 {v(vT + 1)}, {v(V_LANE)}, 7, {v(vT + 1)}")
        st.e(f"s_cmp_eq_u32 {s(S_W)}, 1")
        st.e(f"s_cbranch_scc1 {l1}")
        st.e(f"s_cmp_ge_u32 {s(S_W)}, 2")
        st.e(f"s_cbranch_scc1 {l2}")
        st.e(f"s_lshl_b32 {s(S_T0)}, {s(S_RB)}, 4")
        st.e(f"s_add_u32 {s(S_T0)}, {s(S_T0)}, {s(S_CS)}")
        st.e(f"s_mul_i32 {s(S_T0)}, {s(S_T0)}, {8 * 1280}")
        st.e(f"s_add_u32 {s(S_T0)}, {s(S_T0)}, 512")
        st.e(f"v_add_u32 {v(vT + 1)}, {s(S_T0)}, {v(vT + 1)}")
        st.e(f"s_mov_b64 {s(S_T2, 2)}, {s(P_X, 2)}")
        st.e("s_mov_b32 exec_hi, 0xffff")
        st.e(f"s_branch {le}")
        st.label(l1)
        st.e(f"s_and_b32 {s(S_T0)}, {s(S_RB)}, 7")
        st.e(f"s_mul_i32 {s(S_T0)}, {s(S_T0)}, 5")
        st.e(f"s_mul_i32 {s(S_T1)}, {s(S_CS)}, 40")
        st.e(f"s_add_u32 {s(S_T0)}, {s(S_T0)}, {s(S_T1)}")
        st.e(f"s_mul_i32 {s(S_T0)}, {s(S_T0)}, 1280")
        st.e(f"s_add_u32 {s(S_T0)}, {s(S_T0)}, 512")
        st.e(f"v_add_u32 {v(vT + 1)}, {s(S_T0)}, {v(vT + 1)}")
        st.e(f"s_cmp_lt_u32 {s(S_RB)}, 8")
        st.e(f"s_cselect_b64 {s(S_T2, 2)}, {s(P_BRE, 2)}, {s(P_BIM, 2)}")
        st.e("s_mov_b64 exec, 0x3fffffff")
        st.e(f"s_branch {le}")
        st.label(l2)
        st.e(f"s_lshl_b32 {s(S_T0)}, s2, 1")
        st.e(f"s_add_u32 {s(S_T0)}, {s(S_T0)}, {s(S_W)}")
        st.e(f"s_mul_i32 {s(S_T0)}, {s(S_T0)}, {21 * 128}")
        st.e(f"s_add_u32 {s(S_T0)}, {s(S_T0)}, {192 * 3072 - 2 * 21 * 128}")
        st.e(f"v_lshl_add_u32 {v(vT + 1)}, {v(V_LANE)}, 7, {s(S_T0)}")
        st.e(f"s_mov_b64 {s(S_T2, 2)}, {s(P_W1, 2)}")
        st.e("s_mov_b64 exec, 0x1fffff")
        st.label(le)
        st.vm(f"global_load_dword {v(vDum)}, {v(vT + 1)}, {s(S_T2, 2)}")
        st.e("s_mov_b64 exec, -1")
    srd(st, R_WS, P_WS, 0x10000000)
    st.vm(f"buffer_load_dword {v(V_EP)}, off, {s(R_WS, 4)}, 0 sc1")
    st.e(f"v_bfe_u32 {v(vT)}, {v(V_LANE)}, 1, 4")
    st.e(f"s_mul_i32 {s(S_T0)}, {s(S_CS)}, 40")
    st.e(f"v_add_u32 {v(vT)}, {s(S_T0)}, {v(vT)}")
    st.e(f"v_add_u32 {v(vT + 1)}, 32, {v(vT)}")
    st.e(f"v_min_u32 {v(vT + 1)}, 639, {v(vT + 1)}")
    st.e(f"v_lshlrev_b32 {v(vT)}, 1, {v(vT)}")
    st.e(f"v_lshlrev_b32 {v(vT + 1)}, 1, {v(vT + 1)}")
    for n, ptr in (("Lr", P_LRE), ("Li", P_LIM), ("dt", P_LDT)):
        st.vm(f"global_load_ushort {v(Tm[n][0])}, {v(vT)}, {s(ptr, 2)}")
        st.vm(f"global_load_ushort {v(Tm[n][1])}, {v(vT)}, {s(ptr, 2)} offset:32")
        par_id = st.vm(f"global_load_ushort {v(Tm[n][2])}, {v(vT + 1)}, {s(ptr, 2)}")
    st.e(f"v_mov_b32 {v(vT + 1)}, {SY}")
    st.e(f"v_lshl_add_u32 {v(vT + 1)}, {v(V_LANE)}, 2, {v(vT + 1)}")
    st.e(f"v_mov_b32 {v(vT + 2)}, 0")
    st.e("s_mov_b64 exec, 0xffff")
    st.lg(f"ds_write_b32 {v(vT + 1)}, {v(vT + 2)}")
    st.e("s_mov_b64 exec, -1")
    lC, lJ = newlabel("packC"), newlabel("packJ")
    st.e(f"s_lshl_b32 {s(S_T0)}, s2, 2")
    st.e(f"s_add_u32 {s(S_T0)}, {s(S_T0)}, {s(S_W)}")
    st.e(f"s_sub_u32 {s(S_T1)}, {s(S_T0)}, 880")
    st.e(f"s_cselect_b32 {s(S_T0)}, {s(S_T0)}, {s(S_T1)}")
    st.e(f"s_sub_u32 {s(S_T1)}, {s(S_T0)}, 480")
    st.e(f"s_cselect_b32 {s(sTy)}, 0, 1")
    st.e(f"s_cselect_b32 {s(S_T1)}, {s(S_T0)}, {s(S_T1)}")
    st.e(f"s_mul_i32 {s(S_T2)}, {s(S_T1)}, 6554")
    st.e(f"s_lshr_b32 {s(S_T2)}, {s(S_T2)}, 16")
    st.e(f"s_mul_i32 {s(S_T3)}, {s(S_T2)}, 10")
    st.e(f"s_sub_u32 {s(S_T3)}, {s(S_T1)}, {s(S_T3)}")
    st.e(f"s_lshl_b32 {s(S_T0)}, {s(S_W)}, 12")
    st.e(f"s_add_u32 {s(S_T0)}, {s(S_T0)}, {PS}")
    st.e(f"v_lshrrev_b32 {v(vT + 1)}, 5, {v(V_LANE)}")
    st.e(f"s_cmp_eq_u32 {s(sTy)}, 1")
    st.e(f"s_cbranch_scc1 {lC}")
    st.e(f"v_bfe_u32 {v(vT)}, {v(V_LANE)}, 2, 3")
    st.e(f"v_lshl_add_u32 {v(vT)}, {v(vT + 1)}, 4, {v(vT)}")
    st.e(f"v_and_b32 {v(vT + 1)}, 3, {v(V_LANE)}")
    st.e(f"v_lshlrev_b32 {v(vT + 1)}, 3, {v(vT + 1)}")
    st.e(f"v_lshl_add_u32 {v(vT)}, {v(vT)}, 7, {v(vT + 1)}")
    st.e(f"v_add_u32 {v(vPR)}, {s(S_T0)}, {v(vT)}")
    srd(st, R_P, P_W2, 1536 * 1280)
    srd(st, R_Q, P_W2, 1536 * 1280)
    st.e(f"s_mul_i32 {s(sQ)}, {s(S_T2)}, {32 * 1280}")
    st.e(f"s_lshl_b32 {s(S_T0)}, {s(S_T3)}, 7")
    st.e(f"s_add_u32 {s(sQ)}, {s(sQ)}, {s(S_T0)}")
    st.e(f"s_add_u32 {s(sQ + 1)}, {s(sQ)}, {10240 - 1024}")
    st.e(f"s_add_u32 {s(sQ + 2)}, {s(sQ)}, {2 * 10240}")
    st.e(f"s_add_u32 {s(sQ + 3)}, {s(sQ)}, {3 * 10240 - 1024}")
    st.e(f"s_mul_i32 {s(S_T2)}, {s(S_T2)}, 5120")
    st.e(f"s_add_u32 {s(S_T2)}, {s(S_T2)}, {WS_W2P:#x}")
    st.e(f"s_lshl_b32 {s(S_T3)}, {s(S_T3)}, 2")
    for k in range(4):
        st.e(f"s_add_u32 {s(S_T0)}, {s(S_T3)}, {k}")
        st.e(f"s_mul_i32 {s(S_T1)}, {s(S_T0)}, 205")
        st.e(f"s_lshr_b32 {s(S_T1)}, {s(S_T1)}, 10")
        st.e(f"s_mul_i32 {s(S_T1)}, {s(S_T1)}, {NSS - 5 * 1024}")
        st.e(f"s_lshl_b32 {s(S_T0)}, {s(S_T0)}, 10")
        st.e(f"s_add_u32 {s(S_T0)}, {s(S_T0)}, {s(S_T1)}")
        st.e(f"s_add_u32 {s(sP + k)}, {s(S_T0)}, {s(S_T2)}")
    st.e(f"s_branch {lJ}")
    st.label(lC)
    st.e(f"v_and_b32 {v(vT)}, 31, {v(V_LANE)}")
    st.e(f"v_lshlrev_b32 {v(vT + 1)}, 4, {v(vT + 1)}")
    st.e(f"v_lshl_add_u32 {v(vT)}, {v(vT)}, 7, {v(vT + 1)}")
    st.e(f"v_add_u32 {v(vPR)}, {s(S_T0)}, {v(vT)}")
    srd(st, R_P, P_CRE, 640 * 1280)
    srd(st, R_Q, P_CIM, 640 * 1280)
    st.e(f"s_mul_i32 {s(sQ)}, {s(S_T2)}, {16 * 1280}")
    st.e(f"s_lshl_b32 {s(S_T0)}, {s(S_T3)}, 7")
    st.e(f"s_add_u32 {s(sQ)}, {s(sQ)}, {s(S_T0)}")
    st.e(f"s_add_u32 {s(sQ + 1)}, {s(sQ)}, {10240 - 1024}")
    st.e(f"s_mov_b32 {s(sQ + 2)}, {s(sQ)}")
    st.e(f"s_mov_b32 {s(sQ + 3)}, {s(sQ + 1)}")
    st.e(f"s_mul_i32 {s(S_T1)}, {s(S_T2)}, 205")
    st.e(f"s_lshr_b32 {s(S_T1)}, {s(S_T1)}, 10")
    st.e(f"s_mul_i32 {s(S_T1)}, {s(S_T1)}, {NSS - 5 * 1024}")
    st.e(f"s_lshl_b32 {s(S_T2)}, {s(S_T2)}, 10")
    st.e(f"s_add_u32 {s(S_T1)}, {s(S_T1)}, {s(S_T2)}")
    st.e(f"s_mul_i32 {s(S_T3)}, {s(S_T3)}, {4 * 5120}")
    st.e(f"s_add_u32 {s(S_T1)}, {s(S_T1)}, {s(S_T3)}")
    st.e(f"s_add_u32 {s(sP)}, {s(S_T1)}, {WS_W2P + 48 * 5120:#x}")
    for k in range(1, 4):
        st.e(f"s_add_u32 {s(sP + k)}, {s(sP + k - 1)}, 5120")
    st.label(lJ)

    PNT = " nt" if OPT["packnt"] else ""

    def pack_loads():
        return [("e", f"s_lshl_b32 {s(S_T0)}, {s(S_W)}, 12"),
                ("e", f"s_add_u32 m0, {s(S_T0)}, {PS}"),
                ("e", "s_nop 0"),
                ("vm", f"buffer_load_dwordx4 {v(vPK)}, {s(R_P, 4)}, {s(sQ)} offen{PNT} lds"),
                ("vm", f"buffer_load_dwordx4 {v(vPK)}, {s(R_P, 4)}, {s(sQ + 1)} offen offset:1024{PNT} lds"),
                ("e", f"s_add_u32 m0, {s(S_T0)}, {PS + 2048}"),
                ("e", "s_nop 0"),
                ("vm", f"buffer_load_dwordx4 {v(vPK)}, {s(R_Q, 4)}, {s(sQ + 2)} offen{PNT} lds"),
                ("vm", f"buffer_load_dwordx4 {v(vPK)}, {s(R_Q, 4)}, {s(sQ + 3)} offen offset:1024{PNT} lds", (ids, "pl"))]

    def pack_reads(o):
        a, b = newlabel("prC"), newlabel("prJ")
        o.e(f"s_cmp_eq_u32 {s(sTy)}, 1")
        o.e(f"s_cbranch_scc1 {a}")
        for k in range(4):
            for e2 in range(2):
                o.e(f"ds_read_b64_tr_b16 {v(big + 4 * k + 2 * e2, 2)}, {v(vPR)} offset:{e2 * 1024 + k * 32}")
        o.e(f"s_branch {b}")
        o.label(a)
        for k in range(4):
            o.e(f"ds_read_b128 {v(big + 4 * k, 4)}, {v(vPR)} offset:{k * 32}")
        o.label(b)

    def pack_stores():
        return [("vm", f"buffer_store_dwordx4 {v(big + 4 * k, 4)}, {v(V_L16)}, {s(R_WS, 4)}, {s(sP + k)} offen sc1",
                 (ids, "ps")) for k in range(4)]

    fill = []

    def f3(fmt):
        for b in range(3):
            m = {k: v(val[b]) for k, val in {**K, **Tm}.items()}
            fill.append(("e", fmt.format(**m)))

    sg, sig = v(vSgn), v(vSig)
    fill += nonce_items()
    f3("v_lshlrev_b32 {dt}, 16, {dt}")
    f3("v_lshlrev_b32 {Lr}, 16, {Lr}")
    f3("v_lshlrev_b32 {Li}, 16, {Li}")
    f3("v_mul_f32 {dt}, " + LOG2E + ", {dt}")
    f3("v_exp_f32 {dt}, {dt}")
    f3("v_cvt_pk_bf16_f32 {dt}, {dt}, {dt}")
    f3("v_lshlrev_b32 {dt}, 16, {dt}")
    f3("v_mul_f32 {la}, {dt}, {Lr}")
    f3("v_mul_f32 {rv}, {dt}, {Li}")
    f3("v_mul_f32 {la}, " + LOG2E + ", {la}")
    f3("v_mul_f32 {rv}, 0.15915494, {rv}")

    def powr(nop, r, i, keep=False):
        if nop is None:
            f3("v_exp_f32 {m}, {la}")
            f3("v_fract_f32 {an}, {rv}")
        else:
            f3("v_mul_f32 {m}, " + nop + ", {la}")
            f3("v_mul_f32 {an}, " + nop + ", {rv}")
            f3("v_exp_f32 {m}, {m}")
            f3("v_fract_f32 {an}, {an}")
        f3("v_cos_f32 {cs}, {an}")
        f3("v_sin_f32 {an}, {an}")
        f3("v_mul_f32 {" + r + "}, {m}, {cs}")
        if keep:
            f3("v_mul_f32 {liu}, {m}, {an}")
            f3("v_mul_f32 {" + i + "}, " + sg + ", {liu}")
        else:
            f3("v_mul_f32 {m}, " + sg + ", {m}")
            f3("v_mul_f32 {" + i + "}, {m}, {an}")

    powr(None, "lr", "li", keep=True)
    f3("v_add_f32 {cs}, -1.0, {lr}")
    f3("v_mul_f32 {m}, {Lr}, {Lr}")
    f3("v_fmac_f32 {m}, {Li}, {Li}")
    f3("v_rcp_f32 {m}, {m}")
    f3("v_mul_f32 {A}, {cs}, {Lr}")
    f3("v_fmac_f32 {A}, {liu}, {Li}")
    f3("v_mul_f32 {Bc}, {liu}, {Lr}")
    f3("v_fma_f32 {Bc}, -{cs}, {Li}, {Bc}")
    f3("v_mul_f32 {m}, -2.0, {m}")
    f3("v_mul_f32 {A}, {m}, {A}")
    f3("v_mul_f32 {Bc}, {m}, {Bc}")
    f3("v_mul_f32 {A}, " + sg + ", {A}")
    powr("0x41800000", "l16r", "l16i")
    fill.append(("e", f"v_cvt_f32_u32 {v(vT + 2)}, {sig}"))
    fill.append(("e", f"v_mul_f32 {v(vT + 2)}, 0x41800000, {v(vT + 2)}"))
    fill.append(("e", f"v_mul_f32 {v(vT + 3)}, 0x41000000, {v(vT + 2)}"))
    powr(v(vT + 2), "psr", "psi")
    powr(v(vT + 3), "qr", "qi")
    powr("0x44800000", "r8r", "r8i")
    for j in range(1, 8):
        fill.append(("e", f"v_cmp_eq_u32 {s(sMask[j - 1], 2)}, {j}, {sig}"))
    vEXr, vEXw, vSYa, vSYw, vM1, vTo = [vA + k for k in range(6)]
    fill += [("e", t) for t in (
        f"v_and_b32 {v(vT + 2)}, 31, {v(V_LANE)}",
        f"v_lshlrev_b32 {v(vT + 2)}, 5, {v(vT + 2)}",
        f"v_add_u32 {v(vEXr)}, {EX1}, {v(vT + 2)}",
        f"v_lshl_add_u32 {v(vEXw)}, {v(vSig)}, 2, {v(vEXr)}",
        f"v_mov_b32 {v(vSYa)}, {SY}",
        f"v_lshl_add_u32 {v(vSYw)}, {s(S_W)}, 2, {v(vSYa)}",
        f"v_mov_b32 {v(vM1)}, -1",
        f"s_cmp_eq_u32 {s(S_W)}, 0\n    s_cselect_b32 {s(sQ)}, 0, 0x80000000",
        f"v_lshl_add_u32 {v(vTo)}, {v(V_LANE)}, 3, {s(sQ)}",
        f"s_lshl_b32 {s(sQ + 1)}, {s(S_RB)}, 4",
        f"s_add_u32 {s(sQ + 1)}, {s(sQ + 1)}, {s(S_CS)}",
        f"s_mul_i32 {s(sQ + 1)}, {s(sQ + 1)}, 768",
        f"s_add_u32 {s(sQ + 1)}, {s(sQ + 1)}, {WS_T:#x}")]
    F0 = 4 * 2
    per = -(-len(fill) // (39 - F0))

    def reads(c, sidx):
        p = sidx & 1
        out = [("lg", f"ds_read_b128 {v(fX[p], 4)}, {v(vX + sidx)} offset:{(c % 4) * XS}")]
        for b in range(3):
            base = vB if b < 2 else vB2
            off = (c % 4) * BS + (2048 * b if b < 2 else 0)
            out.append(("lg", f"ds_read_b128 {v(fB[p][b], 4)}, {v(base + sidx)} offset:{off}"))
        return out

    def mfmas(c, sidx):
        p = sidx & 1
        first = (c == 0 and sidx == 0)
        return [("e", f"v_mfma_f32_32x32x16_bf16 {v(acc[b], 16)}, {v(fX[p], 4)}, {v(fB[p][b], 4)}, "
                      + ("0" if first else v(acc[b], 16))) for b in range(3)]

    DIST = OPT["dist"]
    for c in range(1, DIST):
        puts(st, dma_b(c))
    st.wait(vm=ids["b", 0], lg="all")
    st.e("s_barrier")
    stamp("B0", (0,))
    puts(st, reads(0, 0))
    PA = OPT["packat"]
    assert PA + 2 * DIST <= 9

    def span(cb):
        d = dma_b(cb + DIST) if cb + DIST <= 9 else []
        if cb == PA:
            a = split_vm(pack_loads(), 2)
            b = split_vm(d, 2)
            return a + b
        if cb == PA + DIST:
            assert ids["b", cb] > ids["pl"]
            a = split_vm(pack_stores(), 2)
            return [[("fn", pack_reads)], a[0], a[1], d]
        out = split_vm(d, 4) if d else [[], [], [], []]
        if cb == PA + 2 * DIST:
            assert ids["b", cb] > ids["ps"]
            out[0] = [("e", f"s_lshl_b32 {s(S_T0)}, s2, 5"),
                      ("e", f"s_add_u32 {s(S_T0)}, {s(S_T0)}, {s(S_W)}"),
                      ("e", f"s_lshl_b32 {s(S_T0)}, {s(S_T0)}, 2"),
                      ("e", f"s_add_u32 {s(S_T0)}, {s(S_T0)}, {WS_FP:#x}"),
                      ("e", f"v_mov_b32 {v(vT)}, {s(S_NONCE)}"),
                      ("vm", one_lane_store(vT, s(S_T0)))] + out[0]
        return out

    sp = [[]] + split_vm(dma_b(DIST), 3)
    for c in range(10):
        for sidx in range(4):
            fl = []
            if 4 * c + sidx >= F0:
                assert ids["b", F0 // 4] > par_id
                fl, fill = fill[:per], fill[per:]
            if sidx < 3:
                st.wait(lg="all")
                interleave(st, mfmas(c, sidx), reads(c, sidx + 1) + sp[sidx + 1] + fl)
            else:
                if c < 9:
                    st.wait(vm=ids["b", c + 1], lg="all")
                else:
                    st.wait(lg="all")
                st.e("s_barrier")
                sp = span(c + 1)
                sides = reads(c + 1, 0) if c < 9 else []
                interleave(st, mfmas(c, sidx), sides + sp[0] + fl)
    assert not fill
    stamp("loopend")
    if OPT["prioS"]:
        st.e(f"s_setprio {OPT['prioS']}")
    hA = [frag + b for b in range(3)]
    hB = [frag + 3 + b for b in range(3)]
    Pv = [frag + 6 + b for b in range(3)]
    Tv = [frag + 10 + 2 * b for b in range(3)]
    st.nop(6)
    for b in range(3):
        st.e(f"v_mov_b32 {v(Pv[b])}, 0")
        st.e(f"v_mov_b32 {v(Tv[b] + 1)}, {s(S_NONCE)}")
    cur = [acc[b] for b in range(3)]
    for j in range(1, 16):
        dst = hA if j & 1 else hB
        for b in range(3):
            st.e(f"v_fma_f32 {v(dst[b])}, {v(K['lr'][b])}, {v(cur[b])}, {v(acc[b] + j)}")
        for b in range(3):
            st.e(f"v_fmac_f32_dpp {v(dst[b])}, {v(cur[b])}, {v(K['li'][b])} {DPP}")
        cur = dst
    stamp("pass1", (1,))
    for b in range(3):
        st.lg(f"ds_write_b32 {v(vEXw)}, {v(cur[b])} offset:{1024 * b}")
    st.lg(f"ds_write_b32 {v(vSYw)}, {v(vM1)}")
    Ev = [big + 8 * b for b in range(3)]

    def ex_reads(base):
        return [f"ds_read_b128 {v(Ev[b] + 4 * q, 4)}, {v(vEXr)} offset:{base + 1024 * b + 16 * q}"
                for b in range(3) for q in range(2)]

    lds_flag_wait(st, vSYa, 0, vT, ex_reads(0))
    stamp("sync1", (1,))
    cur = [Ev[b] for b in range(3)]
    for j in range(1, 8):
        dst = Tv if j == 7 else (hA if j & 1 else hB)
        for b in range(3):
            st.e(f"v_fma_f32 {v(dst[b])}, {v(K['l16r'][b])}, {v(cur[b])}, {v(Ev[b] + j)}")
        for b in range(3):
            st.e(f"v_fmac_f32_dpp {v(dst[b])}, {v(cur[b])}, {v(K['l16i'][b])} {DPP}")
        if j < 7:
            for b in range(3):
                st.e(f"v_cndmask_b32 {v(Pv[b])}, {v(Pv[b])}, {v(cur[b])}, {s(sMask[j - 1], 2)}")
        prev, cur = cur, dst
    st.e("s_mov_b32 exec_hi, 0")
    for b in range(3):
        st.vm(f"buffer_store_dwordx2 {v(Tv[b], 2)}, {v(vTo)}, {s(R_WS, 4)}, {s(sQ + 1)} offen offset:{256 * b} sc1")
    st.e("s_mov_b32 exec_hi, -1")
    for b in range(3):
        st.e(f"v_cndmask_b32 {v(Pv[b])}, {v(Pv[b])}, {v(prev[b])}, {s(sMask[6], 2)}")
    stamp("Tpub")
    gv = big + 24
    st.e(f"v_lshlrev_b32 {v(vT)}, 6, {v(vSig)}")
    st.e(f"v_add_u32 {v(vX)}, {GS}, {v(vT)}")
    st.e("s_mov_b32 exec_lo, 0x10000")
    st.e("s_mov_b32 exec_hi, 0x10000")
    for q in range(4):
        st.lg(f"ds_write_b128 {v(vX)}, {v(acc[2] + 4 * q, 4)} offset:{16 * q}")
    st.e("s_mov_b64 exec, -1")
    st.e(f"v_and_b32 {v(vT)}, 31, {v(V_LANE)}")
    st.e(f"s_lshl_b32 {s(S_T0)}, {s(S_W)}, 7")
    st.e(f"s_add_u32 {s(S_T0)}, {s(S_T0)}, {GS}")
    st.e(f"v_lshl_add_u32 {v(vX + 1)}, {v(vT)}, 2, {s(S_T0)}")
    st.lg(f"ds_read_b32 {v(vX + 2)}, {v(vX + 1)}")
    mk = [P_BRE, P_BIM, P_CRE, P_CIM]
    st.e(f"s_sub_u32 {s(S_T0)}, {s(S_RB)}, 1")
    st.e(f"v_sub_u32 {v(vT)}, {s(S_T0)}, {v(vSig)}")
    st.e(f"v_and_b32 {v(vT + 1)}, 31, {v(V_LANE)}")
    st.e(f"s_mul_i32 {s(S_T1)}, {s(S_CS)}, 768")
    st.e(f"s_add_u32 {s(S_T1)}, {s(S_T1)}, {WS_T:#x}")
    st.e(f"v_lshl_add_u32 {v(vT + 1)}, {v(vT + 1)}, 3, {s(S_T1)}")
    st.e(f"v_mov_b32 {v(vT + 3)}, 0x80000000")
    st.e(f"s_mov_b32 {s(S_T2)}, 0xffff0000")
    st.e(f"s_mov_b32 {s(S_T3)}, 0xffff0000")
    for dl in range(2):
        if dl:
            st.e(f"v_subrev_u32 {v(vT)}, 8, {v(vT)}")
        st.e(f"v_cmp_gt_i32 {s(mk[2 * dl], 2)}, 0, {v(vT)}")
        st.e(f"v_mul_i32_i24 {v(vT + 2)}, {16 * 768}, {v(vT)}")
        st.e(f"v_add_u32 {v(vT + 2)}, {v(vT + 2)}, {v(vT + 1)}")
        st.e(f"s_or_b64 {s(mk[2 * dl + 1], 2)}, {s(mk[2 * dl], 2)}, {s(S_T2, 2)}")
        st.e(f"v_cndmask_b32 {v(vC + 2 * dl)}, {v(vT + 2)}, {v(vT + 3)}, {s(mk[2 * dl], 2)}")
        st.e(f"v_cndmask_b32 {v(vC + 2 * dl + 1)}, {v(vT + 2)}, {v(vT + 3)}, {s(mk[2 * dl + 1], 2)}")
    st.wait(lg="all")
    st.e(f"v_mul_f32 {v(vX + 2)}, {NLOG2E}, {v(vX + 2)}")
    st.e(f"v_exp_f32 {v(vX + 2)}, {v(vX + 2)}")
    st.e("s_nop 0")
    st.e(f"v_add_f32 {v(vX + 2)}, 1.0, {v(vX + 2)}")
    st.e(f"v_rcp_f32 {v(vX + 2)}, {v(vX + 2)}")
    st.e("s_nop 0")
    st.lg(f"ds_write_b32 {v(vX + 1)}, {v(vX + 2)} offset:512")
    st.lg(f"ds_write_b32 {v(vSYw)}, {v(vM1)} offset:32")
    for q in range(4):
        st.lg(f"ds_read_b128 {v(gv + 4 * q, 4)}, {v(vX)} offset:{512 + 16 * q}")
    Cv = [[big + 4 * b + 2 * dl for dl in range(2)] for b in range(3)]
    tt = [frag + 16 + k for k in range(6)]
    for j in range(16):
        for b in range(3):
            st.e(f"v_mul_f32_dpp {v(tt[3 * (j & 1) + b])}, {v(acc[b] + j)}, {v(K['Bc'][b])} {DPP}")
        for b in range(3):
            st.e(f"v_fma_f32 {v(acc[b] + j)}, {v(K['A'][b])}, {v(acc[b] + j)}, {v(tt[3 * (j & 1) + b])}")
    st.e(f"s_mul_i32 {s(S_T0)}, {s(S_W)}, 7680")
    st.e(f"s_add_u32 {s(S_T0)}, {s(S_T0)}, {TS}")
    st.e(f"v_and_b32 {v(vT)}, 31, {v(V_LANE)}")
    st.e(f"v_mul_u32_u24 {v(vT)}, 80, {v(vT)}")
    st.e(f"v_and_b32 {v(vT + 1)}, 32, {v(V_LANE)}")
    st.e(f"v_add3_u32 {v(vB2)}, {v(vT)}, {v(vT + 1)}, {s(S_T0)}")
    st.e(f"v_bfe_u32 {v(vT)}, {v(V_LANE)}, 2, 2")
    st.e(f"v_bfe_u32 {v(vT + 2)}, {v(V_LANE)}, 4, 1")
    st.e(f"v_lshl_add_u32 {v(vT)}, {v(vT)}, 1, {v(vT + 2)}")
    st.e(f"v_mul_u32_u24 {v(vT)}, 80, {v(vT)}")
    st.e(f"v_and_b32 {v(vT + 3)}, 3, {v(V_LANE)}")
    st.e(f"v_lshl_add_u32 {v(vT)}, {v(vT + 3)}, 3, {v(vT)}")
    st.e(f"v_add3_u32 {v(vB2 + 1)}, {v(vT)}, {v(vT + 1)}, {s(S_T0)}")
    st.e(f"v_lshrrev_b32 {v(vT)}, 5, {v(V_LANE)}")
    st.e(f"v_mul_u32_u24 {v(vT)}, {RTS - 512}, {v(vT)}")
    st.e(f"v_add_u32 {v(vB2 + 2)}, {v(vT)}, {v(V_L16)}")
    st.e(f"s_lshl_b32 {s(sP)}, {s(S_RB)}, 2")
    st.e(f"s_add_u32 {s(sP)}, {s(sP)}, {s(S_W)}")
    st.e(f"s_mul_i32 {s(sP)}, {s(sP)}, {2 * RTS}")
    st.e(f"s_mul_i32 {s(S_T1)}, {s(S_CS)}, 2560")
    st.e(f"s_add_u32 {s(sP)}, {s(sP)}, {s(S_T1)}")
    st.e(f"s_add_u32 {s(sP)}, {s(sP)}, {WS_H + 192 * 256:#x}")
    st.e(f"s_lshl_b32 {s(sP + 1)}, {s(S_RB)}, 4")
    st.e(f"s_add_u32 {s(sP + 1)}, {s(sP + 1)}, {s(S_CS)}")
    st.e(f"s_lshl_b32 {s(sP + 1)}, {s(sP + 1)}, 5")
    st.e(f"s_add_u32 {s(sP + 1)}, {s(sP + 1)}, {s(S_W)}")
    st.e(f"s_lshl_b32 {s(sP + 1)}, {s(sP + 1)}, 2")
    st.e(f"s_add_u32 {s(sP + 1)}, {s(sP + 1)}, {WS_FS:#x}")
    st.e(f"v_mov_b32 {v(vB2 + 3)}, {s(S_NONCE)}")
    stamp("win")
    top, done = newlabel("cp"), newlabel("cok")
    st.e(f"s_mov_b32 {s(S_SPIN)}, {OPT['spin']}")
    st.label(top)
    for dl in range(2):
        for b in range(3):
            ra = vC + 2 * dl + (1 if b == 2 else 0)
            st.e(f"buffer_load_dwordx2 {v(Cv[b][dl], 2)}, {v(ra)}, {s(R_WS, 4)}, 0 offen offset:{256 * b} sc1")
    st.e(f"s_mov_b64 {s(S_T0, 2)}, -1")
    st.e("s_waitcnt vmcnt(0)")
    for dl in range(2):
        for b in range(3):
            st.e(f"v_cmp_eq_u32 vcc, {s(S_NONCE)}, {v(Cv[b][dl] + 1)}")
            st.e("s_nop 0")
            st.e(f"s_or_b64 vcc, vcc, {s(mk[2 * dl + (1 if b == 2 else 0)], 2)}")
            st.e(f"s_and_b64 {s(S_T0, 2)}, {s(S_T0, 2)}, vcc")
    st.e(f"s_cmp_eq_u64 {s(S_T0, 2)}, -1")
    st.e(f"s_cbranch_scc1 {done}")
    st.e("s_sleep 1")
    st.e(f"s_sub_u32 {s(S_SPIN)}, {s(S_SPIN)}, 1")
    st.e(f"s_cbranch_scc0 {top}")
    st.label(done)
    stamp("carry")
    for b in range(3):
        st.e(f"v_fma_f32 {v(hA[b])}, {v(K['r8r'][b])}, {v(Cv[b][1])}, {v(Cv[b][0])}")
    for b in range(3):
        st.e(f"v_fmac_f32_dpp {v(hA[b])}, {v(Cv[b][1])}, {v(K['r8i'][b])} {DPP}")
    for b in range(3):
        st.e(f"v_mul_f32 {v(hB[b])}, {v(K['qr'][b])}, {v(hA[b])}")
    for b in range(3):
        st.e(f"v_fmac_f32_dpp {v(hB[b])}, {v(hA[b])}, {v(K['qi'][b])} {DPP}")
    for b in range(3):
        st.lg(f"ds_write_b32 {v(vEXw)}, {v(hB[b])} offset:{3072 + 1024 * b}")
    st.lg(f"ds_write_b32 {v(vSYw)}, {v(vM1)} offset:16")
    lds_flag_wait(st, vSYa, 16, vT, ex_reads(3072))
    stamp("sync2")
    for q in (0, 2):
        for b in range(3):
            st.e(f"v_pk_add_f32 {v(Ev[b] + q, 2)}, {v(Ev[b] + q, 2)}, {v(Ev[b] + 4 + q, 2)}")
    for b in range(3):
        st.e(f"v_pk_add_f32 {v(Ev[b], 2)}, {v(Ev[b], 2)}, {v(Ev[b] + 2, 2)}")
    for b in range(3):
        st.e(f"v_add_f32 {v(hA[b])}, {v(Ev[b])}, {v(Ev[b] + 1)}")
    for b in range(3):
        st.e(f"v_fmac_f32 {v(Pv[b])}, {v(K['psr'][b])}, {v(hA[b])}")
    for b in range(3):
        st.e(f"v_fmac_f32_dpp {v(Pv[b])}, {v(hA[b])}, {v(K['psi'][b])} {DPP}")
    for b in range(3):
        st.e(f"v_mul_f32 {v(hB[b])}, {v(K['A'][b])}, {v(Pv[b])}")
    for b in range(3):
        st.e(f"v_fmac_f32_dpp {v(hB[b])}, {v(Pv[b])}, {v(K['Bc'][b])} {DPP}")
    pk = [big + 8 * b for b in range(3)]
    sc = [frag + 16 + 2 * b for b in range(3)]
    for j in range(16):
        prev = [hB[b] if j == 0 else acc[b] + j - 1 for b in range(3)]
        for b in range(3):
            st.e(f"v_fmac_f32 {v(acc[b] + j)}, {v(K['lr'][b])}, {v(prev[b])}")
        for b in range(3):
            st.e(f"v_fmac_f32_dpp {v(acc[b] + j)}, -{v(prev[b])}, {v(K['li'][b])} {DPP}")
        if j & 1:
            for b in range(3):
                st.e(f"v_pk_mul_f32 {v(sc[b], 2)}, {v(acc[b] + j - 1, 2)}, {v(gv + j - 1, 2)}")
            for b in range(3):
                st.e(f"v_cvt_pk_bf16_f32 {v(pk[b] + (j >> 1))}, {v(sc[b])}, {v(sc[b] + 1)}")
        if j in (7, 15):
            for b in range(3):
                st.lg(f"ds_write_b128 {v(vB2)}, {v(pk[b] + (4 if j == 15 else 0), 4)} "
                      f"offset:{2560 * b + (16 if j == 15 else 0)}")
    stamp("pass2", (1,))
    rid = []
    for k in range(5):
        for e2 in range(2):
            r = st.lg(f"ds_read_b64_tr_b16 {v(acc[0] + 4 * k + 2 * e2, 2)}, {v(vB2 + 1)} offset:{k * 1280 + e2 * 640}")
        rid.append(r)
    for k in range(5):
        st.wait(lg=rid[k])
        st.vm(f"buffer_store_dwordx4 {v(acc[0] + 4 * k, 4)}, {v(vB2 + 2)}, {s(R_WS, 4)}, {s(sP)} offen offset:{512 * k} sc1")
    stamp("hst")
    st.wait(vm="all")
    st.vm(one_lane_store(vB2 + 3, s(sP + 1)))
    stamp("end")
    stamp.flush(vT)
    st.e("s_endpgm")
    return stamp.names


HEADER = """; gated mix of an S5 state-space branch and a squared-relu MLP branch, one persistent launch.
; 256 workgroups x 8 waves: waves 0-3 MLP GEMM1 + output GEMM, waves 4-7 SSM GEMM1 + chunked scan.
; @launch grid=(256,1,1) block=(512,1,1) lds={lds}
.amdgcn_target "amdgcn-amd-amdhsa--gfx950"
.text
.globl {name}_kernel
.p2align 8
.type {name}_kernel,@function
{name}_kernel:
"""
FOOTER = """.section .rodata,"a"
.p2align 6
.amdhsa_kernel {name}_kernel
  .amdhsa_next_free_vgpr 256
  .amdhsa_next_free_sgpr 102
  .amdhsa_accum_offset 256
  .amdhsa_group_segment_fixed_size 0
  .amdhsa_kernarg_size 144
  .amdhsa_user_sgpr_count 2
  .amdhsa_user_sgpr_kernarg_segment_ptr 1
  .amdhsa_system_sgpr_workgroup_id_x 1
  .amdhsa_float_denorm_mode_32 3
.end_amdhsa_kernel
"""


def main():
    c = Stream()
    gen_common(c)
    g = Stream()
    gn = gen_G(g)
    sst = Stream()
    sn = gen_S(sst)
    slow = "".join(o.text() for o in SLOW)
    text = (HEADER.format(lds=LDS_BYTES, name=NAME) + c.text() + g.text() + slow + ".p2align 6\n" + sst.text()
            + "L_end:\n    s_endpgm\n" + FOOTER.format(name=NAME))
    open(sys.argv[1], "w").write(text)
    if STAMPS:
        import json
        json.dump(dict(G=gn, S=sn), open(sys.argv[1] + ".stamps.json", "w"))


if __name__ == "__main__":
    main()
```

```python
class Regs:
    def __init__(self, kind, start, limit):
        self.kind = kind
        self.next = start
        self.limit = limit
        self.names = {}
        self.high = start

    def alloc(self, name, n=1, align=1):
        if n >= 2 and align < 2:
            align = 2
        base = (self.next + align - 1) // align * align
        assert base + n <= self.limit, f"out of {self.kind} regs at {name}: {base}+{n} > {self.limit}"
        self.names[name] = (base, n)
        self.next = base + n
        self.high = max(self.high, self.next)
        return base

    def mark(self):
        return self.next

    def reset(self, mark):
        self.next = mark


def v(i, n=1):
    return f"v{i}" if n == 1 else f"v[{i}:{i + n - 1}]"


def s(i, n=1):
    return f"s{i}" if n == 1 else f"s[{i}:{i + n - 1}]"


class Stream:
    def __init__(self):
        self.lines = []
        self.vm_issued = 0
        self.lg_issued = 0
        self.lg_done = 0

    def e(self, text):
        self.lines.append("    " + text)

    def label(self, name):
        self.lines.append(name + ":")

    def c(self, text):
        self.lines.append("    ; " + text)

    def vm(self, text):
        self.e(text)
        self.vm_issued += 1
        return self.vm_issued

    def lg(self, text):
        if self.lg_issued - self.lg_done >= 15:
            self.wait(lg=self.lg_issued - 9)
        self.e(text)
        self.lg_issued += 1
        return self.lg_issued

    def wait(self, vm=None, lg=None):
        parts = []
        if vm is not None:
            n = 0 if vm == "all" else self.vm_issued - vm
            assert n >= 0
            parts.append(f"vmcnt({min(n, 63)})")
        if lg is not None and lg != "all" and lg <= self.lg_done:
            lg = None
        if lg is not None:
            n = 0 if lg == "all" else self.lg_issued - lg
            assert 0 <= n <= 15
            self.lg_done = max(self.lg_done, self.lg_issued - n)
            parts.append(f"lgkmcnt({n})")
        if parts:
            self.e("s_waitcnt " + " ".join(parts))

    def nop(self, states):
        while states > 0:
            k = min(states, 16)
            self.e(f"s_nop {k - 1}")
            states -= k

    def text(self):
        return "\n".join(self.lines) + "\n"
```

```python
import sys
from asmlib import Regs, Stream, v, s

NAME = "gated_mix__ssm_conv_s5__dense_activation_squared_relu__prompt"
OPT = dict(stamps=0, spin=1 << 14, pad=0, prioS=3, prioG=2, pf=3, cpf=1, outpol=1, sset=0, wpf=8, m0at=8, m1at=9, sleep=2, bar1=0, early=8, la=5, prioG2=0, prioW=0, rts=0, xmap=0, pfrom=3, m2at=10, fa=18)
OPT["padat"] = "start"
OPT["cycA"] = ""
OPT["cycB"] = ""
for a in sys.argv[2:]:
    k, val = a.split("=")
    assert k in OPT, k
    OPT[k] = val if k in ("padat", "cycA", "cycB") else int(val)
STAMPS = bool(OPT["stamps"])

WS_EPOCH = 0
WS_FM = 0x60000
WS_FS = 0x80000
WS_FX = 0xa0000
WS_T = 0x20000
WS_H = 0x800000
WS_PX = 0x1400000
PXW = 2560
WS_ST = 0x3000000
RTS = 352 * 256
SL = 39040
O_X, O_B, O_GATE, O_W1 = 0, 16384, 26624, 26752
R0 = 30720
MG = [0, R0 + SL, R0 + 2 * SL, R0]
TS0, TS3 = R0 + 30720, R0 + 3 * SL
EX1 = TS3 + 7680
EX2 = EX1 + 3072
SY = EX2 + 3072
GS = SY + 64
GB = GS + 512
LDS_BYTES = GB + 512 + 64
assert LDS_BYTES <= 163840
DIST = 2

DPP = "quad_perm:[1,0,3,2] row_mask:0xf bank_mask:0xf"
LOG2E = "0x3fb8aa3b"
NLOG2E = "0xbfb8aa3b"

P_X, P_LRE, P_LIM, P_BRE, P_BIM, P_CRE, P_CIM, P_LDT = 4, 6, 8, 10, 12, 14, 16, 18
P_DSK, P_BX, P_W1, P_B1, P_W2, P_B2, P_GATE, P_OUT = 20, 22, 24, 26, 28, 30, 32, 34
P_DBG, P_WS = 36, 38
R_WS = 40
S_RB, S_CS, S_KQ, S_NQ, S_W, S_NONCE, S_T0, S_T1, S_T2, S_T3 = 44, 45, 46, 47, 48, 49, 50, 51, 52, 53
S_SPIN = 3
S_FREE = 54
V_LANE = 1
V_L16 = 2
V_EP = 3


def srd(st, base, ptr, size):
    st.e(f"s_mov_b32 {s(base)}, {s(ptr)}")
    st.e(f"s_mov_b32 {s(base + 1)}, {s(ptr + 1)}")
    st.e(f"s_mov_b32 {s(base + 2)}, {size:#x}")
    st.e(f"s_mov_b32 {s(base + 3)}, 0x20000")


class Stamper:
    def __init__(self, st, sr, role, n):
        self.st, self.role, self.n, self.max = st, role, 0, n
        self.base = sr.alloc("stamps", 2 * n, 2) if STAMPS else None
        self.rt0 = 96 if (role == "G" and (STAMPS or OPT["pad"])) else None
        self.names = []

    def __call__(self, name, sets=None):
        if self.rt0 is not None and name == OPT["padat"]:
            self.st.e(f"s_memrealtime {s(self.rt0, 2)}")
        if self.rt0 is not None and name == OPT["cycA"]:
            self.st.e("s_memtime s[98:99]")
        if self.rt0 is not None and name == OPT["cycB"]:
            self.st.e("s_memtime s[100:101]")
        if not STAMPS or (sets is not None and OPT["sset"] not in sets):
            return
        if OPT["sset"] == 9 and name not in ("start", "end"):
            return
        assert self.n < self.max, name
        self.st.e(f"{'s_memrealtime' if OPT['rts'] else 's_memtime'} {s(self.base + 2 * self.n, 2)}")
        self.names.append(name)
        self.n += 1

    def flush(self, vt):
        if not STAMPS:
            return
        st = self.st
        st.e(f"s_memrealtime {s(S_T0, 2)}")
        st.e("s_waitcnt lgkmcnt(0)")
        st.e(f"v_mov_b32 {v(vt)}, 0")
        for i in range(self.n):
            st.e(f"v_writelane_b32 {v(vt)}, {s(self.base + 2 * i)}, {i}")
        st.e(f"v_writelane_b32 {v(vt)}, {s(S_T0)}, 15")
        if self.rt0 is not None:
            st.e(f"v_writelane_b32 {v(vt)}, {s(self.rt0)}, 14")
        st.e(f"s_lshl_b32 {s(S_T0)}, s2, 3")
        st.e(f"s_add_u32 {s(S_T0)}, {s(S_T0)}, {s(S_W)}")
        if self.role == "S":
            st.e(f"s_add_u32 {s(S_T0)}, {s(S_T0)}, 4")
        st.e(f"s_lshl_b32 {s(S_T0)}, {s(S_T0)}, 6")
        st.e(f"s_add_u32 {s(S_T0)}, {s(S_T0)}, {WS_ST:#x}")
        st.e(f"v_lshlrev_b32 {v(vt + 1)}, 2, {v(V_LANE)}")
        st.e("s_mov_b64 exec, 0xffff")
        st.e(f"buffer_store_dword {v(vt)}, {v(vt + 1)}, {s(R_WS, 4)}, {s(S_T0)} offen")
        st.e("s_mov_b64 exec, -1")


_lbl = [0]


def newlabel(p):
    _lbl[0] += 1
    return f"L_{p}_{_lbl[0]}"


def nonce_items():
    return [("e", f"v_readfirstlane_b32 {s(S_NONCE)}, {v(V_EP)}"),
            ("e", "s_nop 3"),
            ("e", f"s_mul_i32 {s(S_NONCE)}, {s(S_NONCE)}, 0x9e3779b1"),
            ("e", f"s_add_u32 {s(S_NONCE)}, {s(S_NONCE)}, 0x7f4a7c15")]


SLOW = []


def flag_check(st, vdata, reload_text, mask=None):
    slow, done = newlabel("slow"), newlabel("ok")

    def test(o):
        o.e(f"v_cmp_ne_u32 vcc, {s(S_NONCE)}, {v(vdata)}")
        o.e("s_nop 1")
        if mask is None:
            o.e("s_cmp_lg_u64 vcc, 0")
        else:
            o.e(f"s_and_b32 {s(S_T3)}, vcc_lo, {mask}")

    test(st)
    st.e(f"s_cbranch_scc1 {slow}")
    st.label(done)
    o = Stream()
    o.label(slow)
    o.e(f"s_mov_b32 {s(S_SPIN)}, {OPT['spin']}")
    top = newlabel("spin")
    o.label(top)
    o.e(reload_text)
    o.e(f"s_sub_u32 {s(S_SPIN)}, {s(S_SPIN)}, 1")
    o.e(f"s_cbranch_scc1 {done}")
    o.e("s_waitcnt vmcnt(0)")
    test(o)
    o.e(f"s_cbranch_scc0 {done}")
    o.e(f"s_sleep {OPT['sleep']}")
    o.e(f"s_branch {top}")
    SLOW.append(o)


def lds_flag_wait(st, vaddr, off, vtmp, extra=()):
    top, done = newlabel("lw"), newlabel("lok")
    st.e(f"s_mov_b32 {s(S_SPIN)}, {OPT['spin'] * 8}")
    st.label(top)
    st.e(f"ds_read_b128 {v(vtmp, 4)}, {v(vaddr)} offset:{off}")
    for t in extra:
        st.e(t)
    st.e(f"s_sub_u32 {s(S_SPIN)}, {s(S_SPIN)}, 1")
    st.e(f"s_cbranch_scc1 {done}")
    st.e(f"s_waitcnt lgkmcnt({len(extra)})")
    st.e(f"v_and_b32 {v(vtmp)}, {v(vtmp)}, {v(vtmp + 1)}")
    st.e(f"v_and_b32 {v(vtmp + 2)}, {v(vtmp + 2)}, {v(vtmp + 3)}")
    st.e(f"v_and_b32 {v(vtmp)}, {v(vtmp)}, {v(vtmp + 2)}")
    st.e(f"v_cmp_ne_u32 vcc, -1, {v(vtmp)}")
    st.e("s_nop 1")
    st.e("s_cmp_lg_u64 vcc, 0")
    st.e(f"s_cbranch_scc1 {top}")
    st.label(done)
    st.e("s_waitcnt lgkmcnt(0)")


def xread_addrs(st, vX, vt, natural):
    if natural:
        st.e(f"v_bfe_u32 {v(vt)}, {v(V_LANE)}, 2, 2")
        st.e(f"v_bfe_u32 {v(vt + 1)}, {v(V_LANE)}, 4, 1")
        st.e(f"v_lshl_add_u32 {v(vt)}, {v(vt)}, 1, {v(vt + 1)}")
        st.e(f"v_and_b32 {v(vt + 1)}, 3, {v(V_LANE)}")
        st.e(f"v_lshl_add_u32 {v(vt)}, {v(vt)}, 2, {v(vt + 1)}")
    else:
        st.e(f"v_and_b32 {v(vt)}, 31, {v(V_LANE)}")
    st.e(f"v_bfe_u32 {v(vt + 1)}, {v(vt)}, 1, 3")
    st.e(f"v_lshrrev_b32 {v(vt + 2)}, 5, {v(V_LANE)}")
    st.e(f"v_xor_b32 {v(vt + 1)}, {v(vt + 1)}, {v(vt + 2)}")
    st.e(f"v_lshlrev_b32 {v(vt + 1)}, 4, {v(vt + 1)}")
    st.e(f"v_lshl_add_u32 {v(vt)}, {v(vt)}, 7, {v(vt + 1)}")
    st.e(f"s_lshl_b32 {s(S_T0)}, {s(S_W)}, 12")
    st.e(f"s_add_u32 {s(S_T0)}, {s(S_T0)}, {R0}")
    st.e(f"v_add_u32 {v(vX)}, {s(S_T0)}, {v(vt)}")
    for k in range(1, 4):
        st.e(f"v_xor_b32 {v(vX + k)}, {32 * k}, {v(vX)}")
    for k in range(4):
        st.e(f"v_add_u32 {v(vX + 4 + k)}, {2 * SL}, {v(vX + k)}")


def slot_addr(lo, hi, slot, off):
    return (hi, off) if slot == 2 else (lo, off + slot * SL)


def put(st, item):
    kind, text = item[0], item[1]
    r = None
    if kind == "vm":
        r = st.vm(text)
    elif kind == "lg":
        r = st.lg(text)
    elif kind == "fn":
        text(st)
    else:
        st.e(text)
    if len(item) > 2:
        item[2][0][item[2][1]] = r
    return r


def puts(st, items):
    for it in items:
        put(st, it)


def interleave(st, mains, sides):
    n, k = len(mains), 0
    for i, m in enumerate(mains):
        put(st, m)
        upto = (len(sides) * (i + 1) + n - 1) // n
        while k < upto:
            put(st, sides[k])
            k += 1


def split_vm(items, n):
    groups, cur = [], []
    for it in items:
        cur.append(it)
        if it[0] == "vm":
            groups.append(cur)
            cur = []
    if cur:
        if groups:
            groups[-1] += cur
        else:
            groups.append(cur)
    parts = [[] for _ in range(n)]
    for k, g in enumerate(groups):
        parts[min(n - 1, k * n // len(groups))] += g
    return parts


def one_lane_store(vdata, soff):
    return (f"s_mov_b64 exec, 1\n    buffer_store_dword {v(vdata)}, off, {s(R_WS, 4)}, {soff} sc1\n"
            f"    s_mov_b64 exec, -1")


def gen_common(st):
    if OPT["padat"] == "entry":
        st.e("s_memrealtime s[96:97]")
    st.e("s_cmp_ge_u32 s2, 256")
    st.e("s_cbranch_scc1 L_end")
    st.e("s_load_dwordx16 s[4:19], s[0:1], 0")
    st.e("s_load_dwordx16 s[20:35], s[0:1], 64")
    st.e("s_load_dwordx4 s[36:39], s[0:1], 128")
    st.e(f"v_lshrrev_b32 {v(V_EP)}, 6, v0")
    st.e(f"v_and_b32 {v(V_LANE)}, 63, v0")
    st.e(f"v_readfirstlane_b32 {s(S_W)}, {v(V_EP)}")
    st.e(f"v_lshlrev_b32 {v(V_L16)}, 4, {v(V_LANE)}")
    st.e(f"s_lshr_b32 {s(S_T1)}, s2, 3")
    st.e(f"s_bfe_u32 {s(S_RB)}, s2, 0x20001")
    if OPT["xmap"]:
        st.e(f"s_lshr_b32 {s(S_T2)}, {s(S_RB)}, 1")
        st.e(f"s_xor_b32 {s(S_RB)}, {s(S_RB)}, {s(S_T2)}")
    st.e(f"s_lshl_b32 {s(S_RB)}, {s(S_RB)}, 2")
    st.e(f"s_lshr_b32 {s(S_T2)}, {s(S_T1)}, 3")
    st.e(f"s_add_u32 {s(S_RB)}, {s(S_RB)}, {s(S_T2)}")
    st.e(f"s_and_b32 {s(S_T0)}, s2, 1")
    st.e(f"s_lshl_b32 {s(S_CS)}, {s(S_T0)}, 3")
    st.e(f"s_and_b32 {s(S_T2)}, {s(S_T1)}, 7")
    st.e(f"s_add_u32 {s(S_CS)}, {s(S_CS)}, {s(S_T2)}")
    st.e(f"s_lshr_b32 {s(S_KQ)}, {s(S_CS)}, 2")
    st.e(f"s_and_b32 {s(S_NQ)}, {s(S_CS)}, 3")
    st.e(f"s_cmp_ge_u32 {s(S_W)}, 4")
    st.e("s_cbranch_scc1 L_S")


def gen_G(st):
    sr = Regs("s", S_FREE, 102)
    R_X = sr.alloc("R_X", 4, 4)
    R_W1 = sr.alloc("R_W1", 4, 4)
    R_W2 = sr.alloc("R_W2", 4, 4)
    sOX, sOW = sr.alloc("sOX"), sr.alloc("sOW")
    sMX, sMW, sM, sM2, sMd, sH0, sH1, sHb = 6, 7, 8, 9, 10, 11, 12, 13
    sFS, sMk = 18, 19
    sPX, sA = 22, 23
    vDX, vDW, vDl, vX, vW, vM = 4, 8, 11, 12, 20, 22
    vHS, vFM, vSYw, vPD, vF, vT = 27, 28, 29, 30, 32, 36
    BIG = 40
    acc1 = [BIG + 16 * b for b in range(3)]
    fX = [BIG + 48 + 16 * p for p in range(2)]
    fW = [[BIG + 48 + 16 * p + 4 + 4 * b for b in range(3)] for p in range(2)]
    acc2 = BIG
    cv = BIG + 80
    NF, LA = 6, 5
    HS = [cv + 8 * d for d in range(10)]
    Wf = cv + 80
    EE = Wf + 4 * NF
    bias = Wf
    vRtmp = EE + 24
    assert vRtmp + 8 == 256
    st.e(f"v_lshrrev_b32 {v(vT)}, 3, {v(V_LANE)}")
    st.e(f"v_and_b32 {v(vT + 1)}, 3, {v(vT)}")
    st.e(f"v_lshrrev_b32 {v(vT)}, 2, {v(vT)}")
    st.e(f"v_lshl_add_u32 {v(vT)}, {v(vT)}, 4, {v(vT + 1)}")
    st.e(f"v_mul_u32_u24 {v(vT)}, 1280, {v(vT)}")
    st.e(f"v_lshrrev_b32 {v(vT + 1)}, 4, {v(V_LANE)}")
    st.e(f"v_and_b32 {v(vT + 2)}, 7, {v(V_LANE)}")
    st.e(f"v_xor_b32 {v(vT + 1)}, {v(vT + 1)}, {v(vT + 2)}")
    st.e(f"v_lshl_add_u32 {v(vDX)}, {v(vT + 1)}, 4, {v(vT)}")
    st.e(f"v_xor_b32 {v(vDX + 1)}, 64, {v(vDX)}")
    st.e(f"v_add_u32 {v(vDX + 1)}, {4096}, {v(vDX + 1)}")
    st.e(f"v_add_u32 {v(vDX + 2)}, {8192}, {v(vDX)}")
    st.e(f"v_add_u32 {v(vDX + 3)}, {8192}, {v(vDX + 1)}")
    st.e(f"s_lshl_b32 {s(S_T0)}, {s(S_RB)}, 2")
    st.e(f"s_add_u32 {s(S_T0)}, {s(S_T0)}, {s(S_W)}")
    st.e(f"s_mul_i32 {s(sOX)}, {s(S_T0)}, {32 * 1280}")
    for i in range(3):
        if i:
            st.e(f"v_add_u32 {v(vT)}, {64 * i}, {v(V_LANE)}")
        q = V_LANE if i == 0 else vT
        st.e(f"v_mul_u32_u24 {v(vT + 1)}, 43691, {v(q)}")
        st.e(f"v_lshrrev_b32 {v(vT + 1)}, 19, {v(vT + 1)}")
        st.e(f"v_mul_u32_u24 {v(vT + 1)}, {3072 - 192}, {v(vT + 1)}")
        st.e(f"v_add_u32 {v(vDW + i)}, {v(vT + 1)}, {v(V_L16)}")
    st.e(f"s_mul_i32 {s(sOW)}, {s(S_CS)}, 192")
    st.e(f"s_mul_i32 {s(S_T1)}, {s(S_W)}, {16 * 3072}")
    st.e(f"s_add_u32 {s(sOW)}, {s(sOW)}, {s(S_T1)}")
    st.e("s_waitcnt lgkmcnt(0)")
    stamp = Stamper(st, sr, "G", 13)
    stamp("start")
    st.e(f"s_lshl_b32 {s(sMX)}, {s(S_W)}, 12")
    st.e(f"s_mul_i32 {s(sMW)}, {s(S_W)}, 3072")
    srd(st, R_W1, P_W1, 640 * 3072)
    srd(st, R_X, P_X, 2048 * 1280)
    ids = {}

    def dma_w(c):
        out = [("e", f"s_add_u32 m0, {s(sMW)}, {R0 + (c % 3) * SL + O_W1}"), ("e", "s_nop 0")]
        for i in range(3):
            out.append(("vm", f"buffer_load_dwordx4 {v(vDW + i)}, {s(R_W1, 4)}, {s(sOW)} offen offset:{1024 * i} lds",
                        (ids, ("w", c))))
        out.append(("e", f"s_add_u32 {s(sOW)}, {s(sOW)}, {64 * 3072}"))
        return out

    def dma_x(c):
        out = [("e", f"s_add_u32 m0, {s(sMX)}, {R0 + (c % 3) * SL + O_X}"), ("e", "s_nop 0")]
        for i in range(4):
            out.append(("vm", f"buffer_load_dwordx4 {v(vDX + i)}, {s(R_X, 4)}, {s(sOX)} offen offset:{1024 * i} lds",
                        (ids, ("x", c))))
        out.append(("e", f"s_add_u32 {s(sOX)}, {s(sOX)}, 128"))
        return out

    if OPT["pf"] == 2:
        st.e("s_barrier")
    puts(st, dma_w(0) + dma_x(0))
    xread_addrs(st, vX, vT, True)
    st.e(f"v_bfe_u32 {v(vT)}, {v(V_LANE)}, 2, 2")
    st.e(f"v_lshrrev_b32 {v(vT + 1)}, 5, {v(V_LANE)}")
    st.e(f"v_lshl_add_u32 {v(vT)}, {v(vT + 1)}, 3, {v(vT)}")
    st.e(f"v_mul_u32_u24 {v(vT)}, 192, {v(vT)}")
    st.e(f"v_and_b32 {v(vT + 1)}, 3, {v(V_LANE)}")
    st.e(f"v_lshl_add_u32 {v(vT)}, {v(vT + 1)}, 3, {v(vT)}")
    st.e(f"v_bfe_u32 {v(vT + 1)}, {v(V_LANE)}, 4, 1")
    st.e(f"v_lshl_add_u32 {v(vT)}, {v(vT + 1)}, 5, {v(vT)}")
    st.e(f"v_add_u32 {v(vW)}, {R0 + O_W1}, {v(vT)}")
    st.e(f"v_add_u32 {v(vW + 1)}, {R0 + O_W1 + 2 * SL}, {v(vT)}")
    srd(st, R_WS, P_WS, 0x10000000)
    st.vm(f"buffer_load_dword {v(V_EP)}, off, {s(R_WS, 4)}, 0 sc1")
    st.e(f"v_and_b32 {v(vT)}, 31, {v(V_LANE)}")
    st.e(f"s_mul_i32 {s(S_T0)}, {s(S_CS)}, 192")
    st.e(f"v_lshl_add_u32 {v(vT)}, {v(vT)}, 1, {s(S_T0)}")
    for b in range(3):
        idb = st.vm(f"global_load_ushort {v(bias + 4 * b)}, {v(vT)}, {s(P_B1, 2)} offset:{64 * b}")
    for c in range(1, DIST):
        puts(st, dma_w(c) + dma_x(c))
    fill = []

    def F(t):
        fill.append(("e", t))

    for b in range(3):
        for k in range(1, 4):
            F(f"v_mov_b32 {v(bias + 4 * b + k)}, 0")
    F(f"v_mov_b32 {v(bias + 12)}, 0x3f80")
    for k in range(1, 4):
        F(f"v_mov_b32 {v(bias + 12 + k)}, 0")
    for m in range(5):
        F(f"v_add_u32 {v(vT)}, {64 * m}, {v(V_LANE)}")
        F(f"v_mul_u32_u24 {v(vT + 1)}, 3277, {v(vT)}")
        F(f"v_lshrrev_b32 {v(vT + 1)}, 16, {v(vT + 1)}")
        F(f"v_mul_u32_u24 {v(vT + 2)}, 20, {v(vT + 1)}")
        F(f"v_sub_u32 {v(vT)}, {v(vT)}, {v(vT + 2)}")
        F(f"v_lshrrev_b32 {v(vT + 2)}, 1, {v(vT + 1)}")
        F(f"v_and_b32 {v(vT + 2)}, 2, {v(vT + 2)}")
        F(f"v_xor_b32 {v(vT)}, {v(vT)}, {v(vT + 2)}")
        F(f"v_mul_u32_u24 {v(vT + 1)}, 1280, {v(vT + 1)}")
        F(f"v_lshl_add_u32 {v(vM + m)}, {v(vT)}, 4, {v(vT + 1)}")
    for k, t in enumerate((s(P_W2), s(P_W2 + 1), f"{1536 * 1280:#x}", "0x20000")):
        F(f"s_mov_b32 {s(R_W2 + k)}, {t}")
    F(f"s_mul_i32 {s(sMd)}, {s(S_W)}, 7680")
    F(f"v_bfe_u32 {v(vT)}, {v(V_LANE)}, 2, 3")
    F(f"v_lshrrev_b32 {v(vT + 1)}, 5, {v(V_LANE)}")
    F(f"v_lshl_add_u32 {v(vT)}, {v(vT + 1)}, 4, {v(vT)}")
    F(f"v_mul_u32_u24 {v(vT)}, 320, {v(vT)}")
    F(f"v_and_b32 {v(vT + 1)}, 3, {v(V_LANE)}")
    F(f"v_lshl_add_u32 {v(vT)}, {v(vT + 1)}, 3, {v(vT)}")
    F(f"v_and_b32 {v(vT + 1)}, 16, {v(V_LANE)}")
    F(f"v_lshlrev_b32 {v(vT + 1)}, 1, {v(vT + 1)}")
    F(f"v_add_u32 {v(vRtmp)}, {v(vT)}, {v(vT + 1)}")
    F(f"v_sub_u32 {v(vRtmp + 1)}, {v(vT)}, {v(vT + 1)}")
    F(f"v_add_u32 {v(vRtmp + 1)}, 32, {v(vRtmp + 1)}")
    F(f"v_add_u32 {v(vRtmp + 2)}, {MG[1]}, {v(vRtmp)}")
    F(f"v_add_u32 {v(vRtmp + 3)}, {MG[1]}, {v(vRtmp + 1)}")
    F(f"v_bfe_u32 {v(vT)}, {v(V_LANE)}, 4, 1")
    F(f"v_mul_u32_u24 {v(vT)}, {RTS}, {v(vT)}")
    F(f"v_lshrrev_b32 {v(vT + 1)}, 5, {v(V_LANE)}")
    F(f"v_lshl_add_u32 {v(vT)}, {v(vT + 1)}, 8, {v(vT)}")
    F(f"v_and_b32 {v(vT + 1)}, 15, {v(V_LANE)}")
    F(f"v_lshl_add_u32 {v(vHS)}, {v(vT + 1)}, 4, {v(vT)}")
    F(f"s_lshl_b32 {s(sA)}, {s(S_RB)}, 2")
    F(f"s_add_u32 {s(sHb)}, {s(sA)}, {s(S_W)}")
    F(f"s_mul_i32 {s(sHb)}, {s(sHb)}, {2 * RTS}")
    F(f"s_add_u32 {s(sHb)}, {s(sHb)}, {WS_H:#x}")
    F(f"s_add_u32 {s(sA)}, {s(sA)}, {s(S_KQ)}")
    F(f"s_lshl4_add_u32 {s(sA)}, {s(sA)}, {s(S_W)}")
    F(f"s_lshl_b32 {s(sA)}, {s(sA)}, 7")
    F(f"s_add_u32 {s(sA)}, {s(sA)}, {WS_FM:#x}")
    F(f"v_and_b32 {v(vT)}, 3, {v(V_LANE)}")
    F(f"v_lshl_add_u32 {v(vFM)}, {v(vT)}, 9, {s(sA)}")
    F(f"s_mov_b32 {s(sFS)}, {WS_FS - WS_FM:#x}")
    F(f"v_mov_b32 {v(vSYw)}, {SY + 48}")
    F(f"v_lshl_add_u32 {v(vSYw)}, {s(S_W)}, 2, {v(vSYw)}")
    per = -(-len(fill) // 22)

    def dma_m(g):
        out = [("e", f"s_add_u32 {s(sM)}, {s(S_NQ)}, {g}"),
               ("e", f"s_and_b32 {s(sM)}, {s(sM)}, 3"),
               ("e", f"s_lshl2_add_u32 {s(sM)}, {s(S_KQ)}, {s(sM)}"),
               ("e", f"s_lshl2_add_u32 {s(sM)}, {s(sM)}, {s(S_W)}"),
               ("e", f"s_mul_i32 {s(sM)}, {s(sM)}, {24 * 1280}"),
               ("e", f"s_mul_i32 {s(sM2)}, {s(S_NQ)}, 320"),
               ("e", f"s_add_u32 {s(sM)}, {s(sM)}, {s(sM2)}"),
               ("e", f"s_add_u32 {s(sM2)}, {s(sM)}, {16 * 1280}")]
        for i in range(8):
            out.append(("e", f"s_add_u32 m0, {s(sMd)}, {MG[g] + 1024 * i}"))
            ld = f"buffer_load_dwordx4 {v(vM + i % 5)}, {s(R_W2, 4)}, {s(sM if i < 5 else sM2)} offen lds"
            if i == 7:
                ld = f"s_mov_b32 exec_hi, 0\n    {ld}\n    s_mov_b32 exec_hi, -1"
            else:
                ld = "s_nop 0\n    " + ld
            out.append(("vm", ld, (ids, ("m", g))))
        return out

    def reads(c, sidx):
        p, slot = sidx & 1, c % 3
        ra, off = slot_addr(vX + sidx, vX + 4 + sidx, slot, 0)
        out = [("lg", f"ds_read_b128 {v(fX[p], 4)}, {v(ra)} offset:{off}")]
        for b in range(3):
            for e2 in range(2):
                ra, off = slot_addr(vW, vW + 1, slot, sidx * 3072 + e2 * 768 + b * 64)
                out.append(("lg", f"ds_read_b64_tr_b16 {v(fW[p][b] + 2 * e2, 2)}, {v(ra)} offset:{off}"))
        return out

    def mfmas(c, sidx):
        p = sidx & 1
        first = (c == 0 and sidx == 0)
        return [("e", f"v_mfma_f32_32x32x16_bf16 {v(acc1[b], 16)}, {v(fW[p][b], 4)}, {v(fX[p], 4)}, "
                      + ("0" if first else v(acc1[b], 16))) for b in range(3)]

    def span(cb):
        d = dma_w(cb + DIST) + dma_x(cb + DIST) if cb + DIST <= 9 else []
        m = []
        if cb == OPT["m0at"]:
            m += dma_m(0)
        if cb == OPT["m1at"] and cb < 10:
            m += dma_m(1)
        if cb == OPT["m2at"] and cb < 10:
            m += dma_m(2)
        if m and not d:
            return [[]] + split_vm(m, 3)
        return split_vm(d + m, 4) if d else [[], [], [], []]

    assert OPT["m1at"] >= 8 and OPT["m0at"] >= 6 and OPT["m2at"] >= 9
    st.wait(vm=max(ids["x", 0], ids["w", 0]))
    st.e("s_barrier")
    stamp("B0", (0, 1))
    puts(st, reads(0, 0))
    sp = [[]] + split_vm(dma_w(DIST) + dma_x(DIST), 3)
    for c in range(10):
        for sidx in range(4):
            fl, fill = fill[:per], fill[per:]
            if sidx < 3:
                st.wait(lg="all")
                sides = reads(c, sidx + 1) + sp[sidx + 1] + fl
                if c == 3 and sidx == 0:
                    assert ids["w", 3] > idb
                    sides = sides + [("e", f"v_cmp_gt_u32 vcc, 32, {v(V_LANE)}")] + nonce_items()
                    sides += [("e", f"v_cndmask_b32 {v(bias + 4 * b)}, 0, {v(bias + 4 * b)}, vcc") for b in range(3)]
                mains = mfmas(c, sidx)
                if c == 3 and sidx == 2:
                    mains += [("e", f"v_mfma_f32_32x32x16_bf16 {v(acc1[b], 16)}, {v(bias + 4 * b, 4)}, "
                                    f"{v(bias + 12, 4)}, {v(acc1[b], 16)}") for b in range(3)]
                interleave(st, mains, sides)
            else:
                if c < 9:
                    st.wait(vm=max(ids["x", c + 1], ids["w", c + 1]), lg="all")
                else:
                    st.wait(lg="all")
                st.e("s_barrier")
                if c in (2, 5, 8):
                    stamp(f"B{c + 1}", (0,))
                sp = span(c + 1)
                interleave(st, mfmas(c, sidx), (reads(c + 1, 0) if c < 9 else []) + sp[0] + fl)
    assert not fill
    stamp("loopend", (0, 1))
    if OPT["prioG"]:
        st.e(f"s_setprio {OPT['prioG']}")
    st.e(f"s_mul_i32 {s(S_T0)}, {s(S_CS)}, {12 * 256}")
    st.e(f"s_add_u32 {s(S_T0)}, {s(S_T0)}, {s(sHb)}")
    vRE, vRO = [vX, vX + 2], [vX + 1, vX + 3]
    for k in range(4):
        st.e(f"v_mov_b32 {v(vX + k)}, {v(vRtmp + k)}")
    st.nop(6)
    for b in range(3):
        for e2 in range(2):
            a0 = acc1[b] + 8 * e2
            for j in range(8):
                st.e(f"v_max_f32 {v(a0 + j)}, 0, {v(a0 + j)}")
            for j in range(0, 8, 2):
                st.e(f"v_pk_mul_f32 {v(a0 + j, 2)}, {v(a0 + j, 2)}, {v(a0 + j, 2)}")
            for j in range(4):
                st.e(f"v_cvt_pk_bf16_f32 {v(cv + 8 * b + 4 * e2 + j)}, {v(a0 + 2 * j)}, {v(a0 + 2 * j + 1)}")
            hst = st.vm(f"buffer_store_dwordx4 {v(cv + 8 * b + 4 * e2, 4)}, {v(vHS)}, {s(R_WS, 4)}, {s(S_T0)} "
                        f"offen offset:{b * 1024 + e2 * 512} sc1")
            if OPT["bar1"] and 2 * b + e2 + 1 == OPT["bar1"]:
                st.e("s_barrier")
    stamp("Hstored", (0, 1))
    if OPT["prioG"]:
        st.e("s_setprio 0")
    vSYa = vHS

    def publish(val, read=True):
        return [("e", f"v_mov_b32 {v(vT + 3)}, {val}"),
                ("lg", f"ds_write_b32 {v(vSYw)}, {v(vT + 3)}")] + \
            ([("lg", f"ds_read_b128 {v(vF, 4)}, {v(vSYa)} offset:16")] if read else [])

    def check(val, vF=vF, off=16):
        slow, done = newlabel("gslow"), newlabel("gok")

        def test(o):
            o.e(f"v_min3_u32 {v(vF)}, {v(vF)}, {v(vF + 1)}, {v(vF + 2)}")
            o.e(f"v_min_u32 {v(vF)}, {v(vF)}, {v(vF + 3)}")
            o.e(f"v_cmp_gt_u32 vcc, {val}, {v(vF)}")
            o.e("s_nop 1")
            o.e("s_cmp_lg_u64 vcc, 0")

        test(st)
        st.e(f"s_cbranch_scc1 {slow}")
        st.label(done)
        o = Stream()
        o.label(slow)
        o.e(f"s_mov_b32 {s(S_SPIN)}, {OPT['spin'] * 8}")
        top = newlabel("gspin")
        o.label(top)
        o.e(f"ds_read_b128 {v(vF, 4)}, {v(vSYa)} offset:{off}")
        o.e(f"s_sub_u32 {s(S_SPIN)}, {s(S_SPIN)}, 1")
        o.e("s_waitcnt lgkmcnt(0)")
        o.e(f"s_cbranch_scc1 {done}")
        test(o)
        o.e(f"s_cbranch_scc1 {top}")
        o.e(f"s_branch {done}")
        SLOW.append(o)

    st.e(f"v_mov_b32 {v(vSYa)}, {SY + 32}")
    assert ("m", 1) in ids
    st.wait(vm=max(ids["m", 0], ids["m", 1]))
    puts(st, publish(1))
    early3 = ("m", 2) in ids
    puts(st, ([] if ("m", 1) in ids else dma_m(1)) + (dma_m(3) if early3 else dma_m(2)))
    for b in range(3):
        for k in range(4):
            st.e(f"v_permlane32_swap_b32 {v(cv + 8 * b + k)}, {v(cv + 8 * b + 4 + k)}")
    for b in range(3):
        for k in range(4):
            st.e(f"v_permlane16_swap_b32 {v(cv + 8 * b + k)}, {v(cv + 8 * b + 4 + k)}")
    st.wait(lg="all")
    check(1)

    vCo, vCH, vHR, vG, vER = vDW, vDW + 2, vW, vM, vDX
    vCR = [vX + 4, vX]
    R_C = R_W1
    vSYw2 = vM + 2
    seq = [(i, nt) for i in range(12) for nt in range(10)]
    seq += [(i, 5 * hf + q) for hf in range(2) for i in range(12, 22) for q in range(5)]

    def hslot(i):
        return HS[i % 8] if i < 12 else HS[i - 12]

    def frag_reads(f):
        i, nt = seq[f]
        d = Wf + 4 * (f % NF)
        if i < 12:
            g, j = divmod(i, 3)
            hi = g in (1, 2)
            base = MG[g] - (MG[1] if hi else 0) + j * 10240 + nt * 32 - (32 if nt & 1 else 0)
            ra = (vRO if nt & 1 else vRE)[hi]
            return [f"ds_read_b64_tr_b16 {v(d + 2 * e2, 2)}, {v(ra)} offset:{base + e2 * 2560}" for e2 in range(2)]
        if 16 <= i < 18:
            return [f"ds_read_b128 {v(d, 4)}, {v(vHR + i - 16)} offset:{nt * 1024}"]
        return [f"ds_read_b128 {v(d, 4)}, {v(vCR[0] + i - 12 if i < 16 else vCR[1] + i - 18)} offset:{nt * 2048}"]

    def h_loads(i):
        out = []
        if i < 12:
            g, j = divmod(i, 3)
            if j == 0:
                out += [("e", f"s_add_u32 {s(sH0)}, {s(S_NQ)}, {g}"),
                        ("e", f"s_and_b32 {s(sH0)}, {s(sH0)}, 3"),
                        ("e", f"s_lshl2_add_u32 {s(sH0)}, {s(S_KQ)}, {s(sH0)}"),
                        ("e", f"s_mul_i32 {s(sH0)}, {s(sH0)}, 3072")]
        else:
            j = i - (12 if i < 16 else 16 if i < 18 else 18)
            if j == 0:
                ev, od = {12: (0, 2), 16: (8, 0), 18: (4, 6)}[i]
                out += [("e", f"s_bitcmp1_b32 {s(S_KQ)}, 0\n    s_cselect_b32 {s(sH1)}, {48 + od}, {48 + ev}"),
                        ("e", f"s_mul_i32 {s(sH0)}, {s(S_KQ)}, 10"),
                        ("e", f"s_add_u32 {s(sH0)}, {s(sH0)}, {s(sH1)}"),
                        ("e", f"s_lshl_b32 {s(sH0)}, {s(sH0)}, 10")]
        if j == 0:
            out += [("e", f"s_add_u32 {s(sH0)}, {s(sH0)}, {s(sHb)}"),
                    ("e", f"s_add_u32 {s(sH1)}, {s(sH0)}, {RTS}")]
        for mt in range(2):
            out.append(("vm", f"buffer_load_dwordx4 {v(hslot(i) + 4 * mt, 4)}, {v(V_L16)}, {s(R_WS, 4)}, "
                              f"{s(sH0 + mt)} offen offset:{j * 1024} sc1", (ids, ("h", i))))
        return out

    def dma_c(gi):
        ev, od = ((0, 64), (128, 192), (256, 0))[gi]
        out = [("e", f"s_bitcmp1_b32 {s(S_KQ)}, 0\n    s_cselect_b32 {s(sM2)}, {od}, 0"
                     if ev == 0 else
                     f"s_movk_i32 {s(sM2)}, {ev}\n    s_bitcmp1_b32 {s(S_KQ)}, 0\n    s_cselect_b32 {s(sM2)}, {od}, {s(sM2)}"),
               ("e", f"s_add_u32 {s(sM)}, {s(sA)}, {s(sM2)}")]
        if gi == 2:
            out.append(("e", f"s_mul_i32 {s(sMd)}, {s(S_W)}, 5120"))
        else:
            out.append(("e", f"s_mul_i32 {s(sMd)}, {s(S_W)}, 10240"))
            out.append(("e", f"s_add_u32 {s(sMd)}, {s(sMd)}, {MG[1 + gi]}"))
            out.append(("e", f"s_cmp_eq_u32 {s(S_W)}, 3\n    s_cselect_b32 {s(sMd)}, {(20480, MG[3])[gi]}, {s(sMd)}"))
        n = 5 if gi == 2 else 10
        for i in range(n):
            va = vCH if gi == 2 else vCo + (i & 1)
            out.append(("e", f"s_add_u32 m0, {s(sMd)}, {1024 * i}"))
            out.append(("vm", f"s_nop 0\n    buffer_load_dwordx4 {v(va)}, {s(R_C, 4)}, {s(sM)} offen lds", (ids, ("c", gi))))
            if i < n - 1:
                out.append(("e", f"s_add_u32 {s(sM)}, {s(sM)}, {20480 if gi == 2 else 10240}"))
        return out

    def poll(reg, fs):
        return (f"s_mov_b64 exec, 15\n    buffer_load_dword {v(vPD + reg)}, {v(vFM)}, {s(R_WS, 4)}, {s(sFS) if fs else 0} offen sc1\n"
                f"    s_mov_b64 exec, -1")

    def fm_check(g, reg):
        st.e(f"s_add_u32 {s(sMk)}, {s(S_NQ)}, {g}")
        st.e(f"s_and_b32 {s(sMk)}, {s(sMk)}, 3")
        st.e(f"s_lshl_b32 {s(sMk)}, 1, {s(sMk)}")
        flag_check(st, vPD + reg, poll(reg, False), mask=s(sMk))

    fid = {}

    def issue_frag(f):
        for t in frag_reads(f):
            fid[f] = st.lg(t)

    def c_addresses():
        st.e(f"s_cmp_lt_u32 {s(S_W)}, 2")
        st.e(f"s_cselect_b32 {s(R_C)}, {s(P_CRE)}, {s(P_CIM)}")
        st.e(f"s_cselect_b32 {s(R_C + 1)}, {s(P_CRE + 1)}, {s(P_CIM + 1)}")
        st.e(f"s_mov_b32 {s(R_C + 2)}, {640 * 1280:#x}")
        st.e(f"s_mov_b32 {s(R_C + 3)}, 0x20000")
        st.e(f"s_and_b32 {s(S_T0)}, {s(S_W)}, 1")
        st.e(f"s_lshl1_add_u32 {s(S_T0)}, {s(S_NQ)}, {s(S_T0)}")
        st.e(f"s_mul_i32 {s(sA)}, {s(S_T0)}, {80 * 1280}")
        st.e(f"s_mul_i32 {s(S_T0)}, {s(S_KQ)}, 320")
        st.e(f"s_add_u32 {s(sA)}, {s(sA)}, {s(S_T0)}")
        st.e(f"v_lshrrev_b32 {v(vT)}, 3, {v(V_LANE)}")
        st.e(f"v_mul_u32_u24 {v(vT)}, 1280, {v(vT)}")
        st.e(f"v_lshrrev_b32 {v(vT + 1)}, 4, {v(V_LANE)}")
        st.e(f"v_and_b32 {v(vT + 2)}, 7, {v(V_LANE)}")
        st.e(f"v_xor_b32 {v(vT + 2)}, {v(vT + 1)}, {v(vT + 2)}")
        st.e(f"v_lshl_add_u32 {v(vCo)}, {v(vT + 2)}, 4, {v(vT)}")
        st.e(f"v_xor_b32 {v(vCo + 1)}, 64, {v(vCo)}")
        st.e(f"v_lshrrev_b32 {v(vT)}, 2, {v(V_LANE)}")
        st.e(f"v_mul_u32_u24 {v(vT)}, 1280, {v(vT)}")
        st.e(f"v_and_b32 {v(vT + 2)}, 3, {v(V_LANE)}")
        st.e(f"v_xor_b32 {v(vT + 2)}, {v(vT + 1)}, {v(vT + 2)}")
        st.e(f"v_lshl_add_u32 {v(vCH)}, {v(vT + 2)}, 4, {v(vT)}")
        st.e(f"v_and_b32 {v(vT + 1)}, 1, {v(vT + 1)}")
        st.e(f"v_mov_b32 {v(vDl)}, {v(vT + 1)}")
        st.e(f"v_mul_u32_u24 {v(vT)}, 10240, {v(vT + 1)}")
        st.e(f"v_lshrrev_b32 {v(vT + 1)}, 5, {v(V_LANE)}")
        st.e(f"v_bfe_u32 {v(vT + 2)}, {v(V_LANE)}, 1, 3")
        st.e(f"v_xor_b32 {v(vT + 2)}, {v(vT + 1)}, {v(vT + 2)}")
        st.e(f"v_lshlrev_b32 {v(vT + 2)}, 4, {v(vT + 2)}")
        st.e(f"v_lshl_add_u32 {v(vT + 2)}, {v(vT)}, 1, {v(vT + 2)}")
        st.e(f"v_and_b32 {v(vT + 3)}, 15, {v(V_LANE)}")
        st.e(f"v_lshl_add_u32 {v(vT + 2)}, {v(vT + 3)}, 7, {v(vT + 2)}")
        st.e(f"v_add_u32 {v(vCR[0])}, {MG[1]}, {v(vT + 2)}")
        for k in range(1, 4):
            st.e(f"v_xor_b32 {v(vCR[0] + k)}, {32 * k}, {v(vCR[0])}")
        st.e(f"v_bfe_u32 {v(vT + 2)}, {v(V_LANE)}, 2, 2")
        st.e(f"v_xor_b32 {v(vT + 2)}, {v(vT + 1)}, {v(vT + 2)}")
        st.e(f"v_lshl_add_u32 {v(vT + 2)}, {v(vT + 2)}, 4, {v(vT)}")
        st.e(f"v_lshl_add_u32 {v(vHR)}, {v(vT + 3)}, 6, {v(vT + 2)}")
        st.e(f"v_xor_b32 {v(vHR + 1)}, 32, {v(vHR)}")

    def e_block():
        E = [EE + 4 * k for k in range(6)]
        un = [vRtmp + k for k in range(8)]
        gks = [vM + 1, vM + 3, vM + 4, vPD, vF, vF + 1]
        st.e(f"s_lshl_b32 {s(S_T0)}, {s(S_T1)}, 6")
        st.e(f"s_add_u32 {s(S_T0)}, {s(S_T0)}, {GB}")
        st.e(f"v_lshl_add_u32 {v(vT)}, {v(vER)}, 2, {s(S_T0)}")
        for k in range(6):
            st.lg(f"ds_read_b32 {v(gks[k])}, {v(vT)} offset:{12 * k}")
        st.e(f"v_mov_b32 {v(vT + 1)}, 0xffff0000")
        st.wait(lg="all")
        for q, src in ((0, epi["dsk"]), (4, epi["b2"])):
            st.e(f"v_lshlrev_b32 {v(un[q])}, 16, {v(src)}")
            st.e(f"v_and_b32 {v(un[q + 1])}, {v(vT + 1)}, {v(src)}")
            st.e(f"v_lshlrev_b32 {v(un[q + 2])}, 16, {v(src + 1)}")
            st.e(f"v_and_b32 {v(un[q + 3])}, {v(vT + 1)}, {v(src + 1)}")
        for k in range(6):
            xs = epi["x"] + 2 * k
            st.e(f"v_lshlrev_b32 {v(E[k])}, 16, {v(xs)}")
            st.e(f"v_and_b32 {v(E[k] + 1)}, {v(vT + 1)}, {v(xs)}")
            st.e(f"v_lshlrev_b32 {v(E[k] + 2)}, 16, {v(xs + 1)}")
            st.e(f"v_and_b32 {v(E[k] + 3)}, {v(vT + 1)}, {v(xs + 1)}")
            for q in range(4):
                st.e(f"v_fma_f32 {v(E[k] + q)}, {v(E[k] + q)}, {v(un[q])}, -{v(un[4 + q])}")
            for q in range(4):
                st.e(f"v_fma_f32 {v(E[k] + q)}, {v(E[k] + q)}, {v(gks[k])}, {v(un[4 + q])}")
        epi["E"] = E

    def x_addresses():
        st.e(f"s_lshl2_add_u32 {s(sPX)}, {s(S_RB)}, {s(S_NQ)}")
        st.e(f"s_lshl4_add_u32 {s(sMk)}, {s(sPX)}, {s(S_W)}")
        st.e(f"s_lshl_b32 {s(sMk)}, {s(sMk)}, 7")
        st.e(f"s_add_u32 {s(sMk)}, {s(sMk)}, {WS_FX:#x}")
        st.e(f"s_lshl_b32 {s(S_T0)}, {s(S_KQ)}, 9")
        st.e(f"s_add_u32 {s(sFS)}, {s(sMk)}, {s(S_T0)}")
        st.e(f"s_and_b32 {s(S_T0)}, {s(S_KQ)}, 1")
        st.e(f"s_lshl_b32 {s(S_T0)}, {s(S_T0)}, 17")
        st.e(f"s_add_u32 {s(sMk)}, {s(sMk)}, {s(S_T0)}")
        st.e(f"v_and_b32 {v(vT)}, 3, {v(V_LANE)}")
        st.e(f"v_lshl_add_u32 {v(vFM)}, {v(vT)}, 9, {s(sMk)}")
        st.e(f"s_lshl_b32 {s(sMk)}, 1, {s(S_KQ)}")
        st.e(f"s_xor_b32 {s(sMk)}, {s(sMk)}, 15")
        st.e(f"s_lshl_b32 {s(sPX)}, {s(sPX)}, 6")
        st.e(f"s_add_u32 {s(sPX)}, {s(sPX)}, {s(S_W)}")
        st.e(f"s_mul_i32 {s(sPX)}, {s(sPX)}, {PXW}")
        st.e(f"s_add_u32 {s(sPX)}, {s(sPX)}, {WS_PX:#x}")
        st.e(f"s_mul_i32 {s(sM)}, {s(S_KQ)}, {4 * PXW}")
        st.e(f"s_add_u32 {s(sM)}, {s(sM)}, {s(sPX)}")
        st.e(f"s_mul_i32 {s(sM2)}, {s(S_KQ)}, {16 * PXW}")
        st.e(f"s_add_u32 {s(sM2)}, {s(sM2)}, {s(sPX)}")
        st.e(f"v_lshlrev_b32 {v(vSYw2)}, 3, {v(V_LANE)}")
        R_O = R_W1
        srd(st, R_O, P_OUT, 2048 * 2560)
        st.e(f"s_mul_i32 {s(S_T0)}, {s(S_W)}, {SL}")
        st.e(f"s_add_u32 {s(S_T0)}, {s(S_T0)}, {TS0}")
        st.e(f"s_cmp_eq_u32 {s(S_W)}, 3")
        st.e(f"s_cselect_b32 {s(S_T0)}, {TS3}, {s(S_T0)}")
        st.e(f"v_and_b32 {v(vM)}, 15, {v(V_LANE)}")
        st.e(f"v_mul_u32_u24 {v(vM)}, 336, {v(vM)}")
        st.e(f"v_lshrrev_b32 {v(vM + 1)}, 4, {v(V_LANE)}")
        st.e(f"v_lshl_add_u32 {v(vM)}, {v(vM + 1)}, 4, {v(vM)}")
        st.e(f"v_add_u32 {v(vM)}, {s(S_T0)}, {v(vM)}")
        st.e(f"v_mul_u32_u24 {v(vM + 1)}, 336, {v(vER)}")
        st.e(f"v_lshl_add_u32 {v(vM + 1)}, {v(vER + 1)}, 4, {v(vM + 1)}")
        st.e(f"v_add_u32 {v(vM + 1)}, {s(S_T0)}, {v(vM + 1)}")
        st.e(f"v_mul_u32_u24 {v(vER + 3)}, 2560, {v(vER)}")
        st.e(f"v_lshl_add_u32 {v(vER + 3)}, {v(vER + 2)}, 1, {v(vER + 3)}")
        st.e(f"v_cmp_gt_u32 vcc, 60, {v(V_LANE)}")
        st.e(f"v_mov_b32 {v(vER + 2)}, 0x80000000")
        st.e(f"s_mul_i32 {s(sOW)}, {s(S_T2)}, {16 * 2560}")
        st.e(f"v_cndmask_b32 {v(vER + 3)}, {v(vER + 2)}, {v(vER + 3)}, vcc")
        st.e(f"v_cmp_gt_u32 vcc, 20, {v(V_LANE)}")
        st.e(f"v_mov_b32 {v(vT)}, {s(S_NONCE)}")
        st.e(f"v_mov_b32 {v(vT + 1)}, 0xffff0000")
        st.e(f"v_cndmask_b32 {v(vER + 2)}, {v(vER + 2)}, {v(vER + 3)}, vcc")

    for f in range(LA):
        issue_frag(f)
    st.e(f"s_lshl4_add_u32 {s(S_T0)}, {s(S_RB)}, {s(S_CS)}")
    st.e(f"s_lshl2_add_u32 {s(S_T0)}, {s(S_T0)}, {s(S_W)}")
    st.e(f"s_lshl_b32 {s(S_T0)}, {s(S_T0)}, 7")
    st.e(f"s_add_u32 {s(S_T0)}, {s(S_T0)}, {WS_FM:#x}")
    st.e(f"v_mov_b32 {v(vT)}, {s(S_NONCE)}")
    if OPT["prioG"]:
        st.e(f"s_setprio {OPT['prioG']}")
    st.wait(vm=hst)
    st.vm(one_lane_store(vT, s(S_T0)))
    stamp("FMset", (1,))
    if OPT["prioG"]:
        st.e(f"s_setprio {OPT['prioG2']}")
    epi = {}
    sRdy = sOX

    def guarded(items, cmp):
        def fn(o):
            skip = newlabel("ng")
            o.e(f"{cmp} {s(S_W)}, 3")
            o.e(f"s_cbranch_scc1 {skip}")
            for it in items:
                o.e(it[1])
            o.label(skip)
        return fn

    def pairs(f0, n, vms, hook=None, last=None):
        k = 0
        for x in range(n):
            f = f0 + x
            i, nt = seq[f]
            if hook:
                hook(x, vms)
            st.wait(lg=fid[f])
            for mt in range(2):
                a0 = acc2 + 40 * mt + 4 * nt
                cin = "0" if i == 0 else v(a0, 4)
                st.e(f"v_mfma_f32_16x16x32_bf16 {v(a0, 4)}, {v(Wf + 4 * (f % NF), 4)}, {v(hslot(i) + 4 * mt, 4)}, {cin}")
                if mt == 0 and f + LA <= last:
                    issue_frag(f + LA)
            upto = (len(vms) * (x + 1) + n - 1) // n
            while k < upto:
                put(st, vms[k])
                k += 1

    pubs = {3: [("m", 2)], 6: [("m", 3)], 9: []}
    chks = {4: 5, 7: 8, 10: 11}
    cq = []
    for i in range(12):
        if i == 2:
            c_addresses()
            st.wait(vm=ids["p", 2])
            fm_check(1, 0)
            stamp("FMok")
            for k in range(3, 6):
                puts(st, h_loads(k))
        if i >= 3:
            stamp(f"top{i}", (2,))
        need = ([ids["h", i]] if i >= 3 else []) + [ids[k] for k in pubs.get(i, [])]
        if i == 10:
            need.append(epi["id"])
        if need:
            st.wait(vm=max(need))
        if i in pubs:
            puts(st, publish(i + 2, False))
        if i in chks:
            check(chks[i])
        if i == 9:
            st.lg(f"ds_read_b128 {v(vF, 4)}, {v(vSYa)}")
        pub_id = st.lg_issued
        vms = []
        if i == 1:
            vms.append(("vm", poll(0, False), (ids, ("p", 2))))
        if i == 3:
            fm_check(2, 0)
        if i == 5:
            vms.append(("vm", poll(0, False), (ids, ("p", 6))))
        if i == 6:
            st.wait(vm=ids["p", 6])
            fm_check(3, 0)
        if 3 <= i <= 8:
            vms += h_loads(i + 3)
        if i == 10:
            e_block()
        if i == 11:
            vms.append(("vm", poll(1, True), (ids, ("p", 12))))
        if i == 2 and not early3:
            cq = split_vm(dma_m(3), 2)
        if i == 4:
            cq = split_vm(dma_c(2), 2)
        if i == 7:
            cq = split_vm(dma_c(0), 3)
        if i == 10:
            cq = [[("fn", guarded(p, "s_cmp_eq_u32"))for p in ps] for ps in
                  [split_vm(x, 2) for x in split_vm(dma_c(1), 2)]]
        if cq:
            vms += cq.pop(0)
        if i == 6:
            epi["x"], epi["dsk"], epi["b2"] = HS[8], HS[8] + 12, HS[8] + 14
            vms += [("e", f"v_mul_u32_u24 {v(vER)}, 205, {v(V_LANE)}"),
                    ("e", f"v_lshrrev_b32 {v(vER)}, 12, {v(vER)}"),
                    ("e", f"v_mul_u32_u24 {v(vER + 1)}, 20, {v(vER)}"),
                    ("e", f"v_sub_u32 {v(vER + 1)}, {v(V_LANE)}, {v(vER + 1)}"),
                    ("e", f"s_and_b32 {s(S_T0)}, {s(S_KQ)}, 1"),
                    ("e", f"s_lshl1_add_u32 {s(S_T0)}, {s(S_NQ)}, {s(S_T0)}"),
                    ("e", f"s_mul_i32 {s(S_T0)}, {s(S_T0)}, 160"),
                    ("e", f"v_lshl_add_u32 {v(vER + 2)}, {v(vER + 1)}, 3, {s(S_T0)}"),
                    ("vm", f"global_load_dwordx2 {v(epi['dsk'], 2)}, {v(vER + 2)}, {s(P_DSK, 2)}"),
                    ("vm", f"global_load_dwordx2 {v(epi['b2'], 2)}, {v(vER + 2)}, {s(P_B2, 2)}"),
                    ("e", f"s_lshr_b32 {s(S_T1)}, {s(S_KQ)}, 1"),
                    ("e", f"s_lshl1_add_u32 {s(S_T1)}, {s(S_W)}, {s(S_T1)}"),
                    ("e", f"s_lshl3_add_u32 {s(S_T2)}, {s(S_RB)}, {s(S_T1)}"),
                    ("e", f"s_mul_i32 {s(sOW)}, {s(S_T2)}, {16 * 1280}"),
                    ("e", f"v_mul_u32_u24 {v(vER + 3)}, 1280, {v(vER)}"),
                    ("e", f"v_add_u32 {v(vER + 3)}, {v(vER + 3)}, {v(vER + 2)}")]
            for k in range(6):
                vms.append(("vm", f"buffer_load_dwordx2 {v(epi['x'] + 2 * k, 2)}, {v(vER + 3)}, {s(R_X, 4)}, {s(sOW)} offen",
                            (epi, "id")))
                if k < 5:
                    vms.append(("e", f"s_add_u32 {s(sOW)}, {s(sOW)}, {3 * 1280}"))

        def hook(x, vms, i=i, pub_id=pub_id):
            if x == 6 and i + 1 in chks:
                st.lg(f"ds_read_b128 {v(vF, 4)}, {v(vSYa)} offset:16")
            if x != 10 - LA:
                return
            if i == 9:
                st.wait(lg=pub_id)
                check(1, vF, 0)
                st.e(f"v_and_b32 {v(vT)}, 15, {v(V_LANE)}")
                st.e(f"s_lshl_b32 {s(S_T0)}, {s(S_W)}, 7")
                st.e(f"s_add_u32 {s(S_T0)}, {s(S_T0)}, {GB}")
                st.e(f"v_lshl_add_u32 {v(vT)}, {v(vT)}, 2, {s(S_T0)}")
                for mt in range(2):
                    st.lg(f"ds_read_b32 {v(vG + 2 * mt)}, {v(vT)} offset:{64 * mt}")

        pairs(10 * i, 10, vms, hook, last=119)
    stamp("mlpend")
    st.wait(vm=ids["p", 12])
    puts(st, publish(14))
    hq = [it for k in range(12, 22) for it in h_loads(k)]
    c1 = dma_c(1)
    st.e(f"v_cmp_ne_u32 vcc, {s(S_NONCE)}, {v(vPD + 1)}")
    for mt in range(2):
        st.e(f"v_sub_f32 {v(vG + 2 * mt)}, 1.0, {v(vG + 2 * mt)}")
    st.e(f"s_and_b32 {s(sRdy)}, vcc_lo, 15")
    nr, jn = newlabel("nr"), newlabel("jn")
    st.e(f"s_cbranch_scc1 {nr}")
    for it in hq:
        st.e(it[1])
    st.label(nr)
    for nt in range(10):
        for mt in range(2):
            a0 = acc2 + 40 * mt + 4 * nt
            for k in (0, 2):
                st.e(f"v_pk_mul_f32 {v(a0 + k, 2)}, {v(a0 + k, 2)}, {v(vG + 2 * mt, 2)} op_sel_hi:[1,0]")
    for k in range(4):
        st.e(f"v_add_u32 {v(vCR[1] + k)}, {MG[2] - MG[1]}, {v(vCR[0] + k)}")
    st.wait(lg="all")
    check(14)
    for f in range(120, 120 + LA):
        issue_frag(f)
    guarded(c1, "s_cmp_lg_u32")(st)
    st.e(f"s_cmp_eq_u32 {s(sRdy)}, 0")
    st.e(f"s_cbranch_scc1 {jn}")
    st.e(poll(1, True))
    st.e("s_waitcnt vmcnt(0)")
    flag_check(st, vPD + 1, poll(1, True), mask="15")
    for it in hq:
        st.e(it[1])
    st.label(jn)
    for it in hq:
        if it[0] == "vm":
            st.vm_issued += 1
            it[2][0][it[2][1]] = st.vm_issued
    stamp("FSok", (1,))
    x_addresses()

    def send(j):
        a0 = acc2 + 20 * j
        out = [("e", f"s_add_u32 {s(sA)}, {s(sM)}, {j * 16 * PXW}")]
        for k0, k1 in ((0, 4), (4, 8), (8, 10)):
            skip = newlabel("ns")
            t = [f"s_cmp_eq_u32 {s(S_KQ)}, {j}", f"s_cbranch_scc1 {skip}"]
            t += [f"v_cvt_pk_bf16_f32 {v(a0 + k)}, {v(a0 + 2 * k)}, {v(a0 + 2 * k + 1)}" for k in range(k0, k1)]
            if k1 < 10:
                t.append(f"buffer_store_dwordx4 {v(a0 + k0, 4)}, {v(V_L16)}, {s(R_WS, 4)}, {s(sA)} offen offset:{256 * k0} sc1")
            else:
                t.append(f"buffer_store_dwordx2 {v(a0 + k0, 2)}, {v(vSYw2)}, {s(R_WS, 4)}, {s(sA)} offen offset:2048 sc1")
            out.append(("e", "\n    ".join(t) + f"\n{skip}:"))
        return out

    RX = [HS[0] + 10 * d for d in range(3)]
    OWN = HS[4]

    def px_loads():
        for d in range(3):
            st.e(f"s_add_u32 {s(S_T0)}, {s(S_KQ)}, {d + 1}")
            st.e(f"s_and_b32 {s(S_T0)}, {s(S_T0)}, 3")
            st.e(f"s_mul_i32 {s(S_T0)}, {s(S_T0)}, {4 * PXW}")
            st.e(f"s_add_u32 {s(S_T0)}, {s(S_T0)}, {s(sM2)}")
            st.e(f"buffer_load_dwordx4 {v(RX[d], 4)}, {v(V_L16)}, {s(R_WS, 4)}, {s(S_T0)} offen sc1")
            st.e(f"buffer_load_dwordx4 {v(RX[d] + 4, 4)}, {v(V_L16)}, {s(R_WS, 4)}, {s(S_T0)} offen offset:1024 sc1")
            st.e(f"buffer_load_dwordx2 {v(RX[d] + 8, 2)}, {v(vSYw2)}, {s(R_WS, 4)}, {s(S_T0)} offen offset:2048 sc1")

    for hf in range(2):
        for i in range(12, 22):
            f0 = 120 + 50 * hf + 5 * (i - 12)
            vms = []
            if hf == 0:
                st.wait(vm="all" if i == 16 else ids["h", i])
                if i == 16:
                    puts(st, publish(15))
                if i == 17:
                    check(15)
                if i == 18:
                    vms = [("e", f"v_mul_u32_u24 {v(vT + 2)}, {MG[1] + 10240}, {v(vDl)}")]
                    vms += [("e", f"v_sub_u32 {v(vCR[0] + k)}, {v(vCR[0] + k)}, {v(vT + 2)}") for k in range(4)]
            else:
                if i == 12:
                    vms = [("e", f"v_mul_u32_u24 {v(vT + 2)}, {MG[2]}, {v(vDl)}")]
                    vms += [("e", f"v_sub_u32 {v(vCR[1] + k)}, {v(vCR[1] + k)}, {v(vT + 2)}") for k in range(4)]
                if i in (13, 15):
                    vms = send(i - 13)
            pairs(f0, 5, vms, last=219)
    stamp("kend", (0, 1))
    if OPT["prioG"]:
        st.e(f"s_setprio {OPT['prioG']}")
    st.e("s_waitcnt vmcnt(0)")
    st.e(one_lane_store(vT, s(sFS)))
    st.e(f"s_add_u32 {s(sFS)}, {s(sFS)}, 0x20000")
    st.nop(2)
    puts(st, send(1) + send(3))
    for j in range(4):
        nxt = newlabel("nx")
        st.e(f"s_cmp_lg_u32 {s(S_KQ)}, {j}")
        st.e(f"s_cbranch_scc1 {nxt}")
        for k in range(0, 20, 2):
            st.e(f"v_mov_b64 {v(OWN + k, 2)}, {v(acc2 + 20 * j + k, 2)}")
        st.label(nxt)
    st.e("s_waitcnt vmcnt(0)")
    st.e(one_lane_store(vT, s(sFS)))
    stamp("PXset", (1,))
    st.e(poll(0, False))
    st.e("s_waitcnt vmcnt(0)")
    flag_check(st, vPD, poll(0, False), mask=s(sMk))
    px_loads()
    stamp("PXok", (0, 1))
    R_O = R_W1
    tmp = HS[7]
    for d in range(3):
        st.e(f"s_waitcnt vmcnt({6 - 3 * d})")
        for k in range(10):
            t = tmp + 2 * (k & 3)
            st.e(f"v_lshlrev_b32 {v(t)}, 16, {v(RX[d] + k)}")
            st.e(f"v_and_b32 {v(t + 1)}, {v(vT + 1)}, {v(RX[d] + k)}")
            st.e(f"v_pk_add_f32 {v(OWN + 2 * k, 2)}, {v(OWN + 2 * k, 2)}, {v(t, 2)}")
            if d == 2 and k & 1:
                st.lg(f"ds_write_b128 {v(vM)}, {v(OWN + 2 * k - 2, 4)} offset:{(k >> 1) * 64}")
    E = epi["E"]
    rd = [HS[0] + 4 * k for k in range(6)]
    lgid = [st.lg(f"ds_read_b128 {v(rd[k], 4)}, {v(vM + 1)} offset:{k * 3 * 336}") for k in range(6)]
    opol = {0: "", 1: " sc1", 2: " nt", 3: " sc0 sc1", 4: " sc1 nt"}[OPT["outpol"]]
    for k in range(6):
        st.wait(lg=lgid[k])
        for q in (0, 2):
            st.e(f"v_pk_add_f32 {v(E[k] + q, 2)}, {v(E[k] + q, 2)}, {v(rd[k] + q, 2)}")
        st.vm(f"buffer_store_dwordx4 {v(E[k], 4)}, {v(vER + 3 if k < 5 else vER + 2)}, {s(R_O, 4)}, {s(sOW)} offen{opol}")
        if k < 5:
            st.e(f"s_add_u32 {s(sOW)}, {s(sOW)}, {3 * 2560}")
    skip = newlabel("noep")
    st.e(f"s_lshl_b32 {s(S_T0)}, {s(S_CS)}, 2")
    st.e(f"s_add_u32 {s(S_T0)}, {s(S_T0)}, {s(S_W)}")
    st.e(f"s_lshl_b32 {s(S_T0)}, {s(S_T0)}, 4")
    st.e(f"s_add_u32 {s(S_T0)}, {s(S_T0)}, {s(S_RB)}")
    st.e(f"s_cmp_lg_u32 {s(S_T0)}, 15")
    st.e(f"s_cbranch_scc1 {skip}")
    st.e(one_lane_store(vT, "0"))
    st.label(skip)
    stamp("end")
    stamp.flush(vT)
    if OPT["pad"]:
        if OPT["cycA"]:
            st.e("s_waitcnt lgkmcnt(0)")
            st.e("s_sub_u32 s98, s100, s98")
            st.e("s_lshr_b32 s98, s98, 3")
            st.e(f"s_add_u32 {s(stamp.rt0)}, {s(stamp.rt0)}, s98")
        st.label("L_pad")
        st.e(f"s_memrealtime {s(S_T0, 2)}")
        st.e("s_waitcnt lgkmcnt(0)")
        st.e(f"s_sub_u32 {s(S_T0)}, {s(S_T0)}, {s(stamp.rt0)}")
        st.e(f"s_cmp_lt_i32 {s(S_T0)}, {OPT['pad'] * 100}")
        st.e("s_cbranch_scc1 L_pad")
    st.e("s_endpgm")
    return stamp.names


def gen_S(st):
    sr = Regs("s", S_FREE, 102)
    vr = Regs("v", 4, 256)
    st.label("L_S")
    R_A = sr.alloc("R_A", 4, 4)
    R_B = sr.alloc("R_B", 4, 4)
    sE5 = sr.alloc("sE5", 2)
    sOA, sOB, sMA, sMB = [sr.alloc(n) for n in ("sOA", "sOB", "sMA", "sMB")]
    sP = sr.alloc("sP", 4)
    sQ = sr.alloc("sQ", 4)
    sMask = [P_X, P_DSK, P_BX, P_B1, P_B2, P_OUT, P_DBG]
    vDA = vr.alloc("vDA", 3)
    vX = vr.alloc("vX", 8)
    vB = vr.alloc("vB", 8)
    vB2 = vr.alloc("vB2", 8)
    vPK = vr.alloc("vPK")
    vSig = vr.alloc("vSig")
    vSgn = vr.alloc("vSgn")
    vDum = vr.alloc("vDum")
    vA = vr.alloc("vA", 6)
    vC = vr.alloc("vC", 4)
    vTR = vr.alloc("vTR", 4)
    sH = sr.alloc("sH", 2)
    vT = vr.alloc("vT", 4, 4)
    acc = [vr.alloc(f"acc{b}", 16, 4) for b in range(3)]
    frag = vr.alloc("frag", 32, 4)
    fX = [frag + 16 * p for p in range(2)]
    fB = [[frag + 16 * p + 4 + 4 * b for b in range(3)] for p in range(2)]
    names = ["lr", "li", "l16r", "l16i", "psr", "psi", "qr", "qi", "r8r", "r8i", "A", "Bc"]
    K = {n: [vr.alloc(f"{n}{b}") for b in range(3)] for n in names}
    tn = ["Lr", "Li", "dt", "la", "rv", "m", "an", "cs", "liu"]
    Tm = {n: [vr.alloc(f"t{n}{b}") for b in range(3)] for n in tn}
    big = vr.alloc("big", 48, 4)

    st.e(f"s_sub_u32 {s(S_W)}, {s(S_W)}, 4")
    ncp = 0
    if OPT["cpf"]:
        skip = newlabel("nocp")
        st.e(f"s_cmp_lg_u32 {s(S_W)}, 3")
        st.e(f"s_cbranch_scc1 {skip}")
        st.e(f"s_getpc_b64 {s(S_T2, 2)}")
        st.label("L_pc")
        st.e(f"s_sub_u32 {s(S_T2)}, {s(S_T2)}, L_pc-{NAME}_kernel")
        st.e(f"s_subb_u32 {s(S_T3)}, {s(S_T3)}, 0")
        st.e(f"v_and_b32 {v(vC + 1)}, 7, {v(V_LANE)}")
        st.e(f"v_lshl_add_u32 {v(vC + 1)}, {v(vC + 1)}, 5, {s(S_T1)}")
        st.e(f"v_min_u32 {v(vC + 1)}, (L_end-{NAME}_kernel)/128, {v(vC + 1)}")
        st.e(f"v_lshlrev_b32 {v(vC + 1)}, 7, {v(vC + 1)}")
        st.e("s_mov_b64 exec, 0xff")
        st.e(f"global_load_dword {v(vC + 2)}, {v(vC + 1)}, {s(S_T2, 2)}")
        st.e("s_mov_b64 exec, -1")
        st.label(skip)
    st.e(f"v_lshrrev_b32 {v(vT)}, 3, {v(V_LANE)}")
    st.e(f"v_mul_u32_u24 {v(vT)}, 1280, {v(vT)}")
    st.e(f"v_and_b32 {v(vT + 1)}, 7, {v(V_LANE)}")
    st.e(f"v_lshl_add_u32 {v(vPK)}, {v(vT + 1)}, 4, {v(vT)}")
    st.e(f"s_lshr_b32 {s(S_T0)}, {s(S_W)}, 1")
    st.e(f"s_and_b32 {s(S_T1)}, {s(S_W)}, 1")
    st.e(f"s_xor_b32 {s(S_T2)}, {s(S_T0)}, {s(S_T1)}")
    st.e(f"s_lshl_b32 {s(S_T2)}, {s(S_T2)}, 2")
    st.e(f"v_lshrrev_b32 {v(vT + 1)}, 4, {v(V_LANE)}")
    st.e(f"v_xor_b32 {v(vT + 1)}, {s(S_T2)}, {v(vT + 1)}")
    st.e(f"v_lshlrev_b32 {v(vT + 1)}, 4, {v(vT + 1)}")
    st.e(f"v_xor_b32 {v(vDA)}, {v(vT + 1)}, {v(vPK)}")
    st.e(f"v_xor_b32 {v(vDA + 1)}, 64, {v(vDA)}")
    st.e(f"v_add_u32 {v(vDA + 1)}, {10240 - 1024}, {v(vDA + 1)}")
    st.e(f"v_add_u32 {v(vDA + 2)}, {2 * 10240}, {v(vDA)}")
    st.e(f"s_mul_i32 {s(sOA)}, {s(S_CS)}, {40 * 1280}")
    st.e(f"s_mul_i32 {s(S_T2)}, {s(S_T1)}, {24 * 1280}")
    st.e(f"s_add_u32 {s(sOA)}, {s(sOA)}, {s(S_T2)}")
    st.e(f"s_mul_i32 {s(sMA)}, {s(S_T0)}, 5120")
    st.e(f"s_mul_i32 {s(S_T2)}, {s(S_T1)}, 3072")
    st.e(f"s_add_u32 {s(sMA)}, {s(sMA)}, {s(S_T2)}")
    st.e(f"s_add_u32 {s(sMA)}, {s(sMA)}, {R0 + O_B}")
    st.e(f"s_add_u32 {s(sMB)}, {s(sMA)}, 2048")
    st.e(f"s_cmp_eq_u32 {s(S_T1)}, 0")
    st.e(f"s_cselect_b64 vcc, -1, 0")
    st.e(f"s_cselect_b32 {s(sOB)}, {s(sOA)}, 0")
    st.e(f"s_cselect_b32 {s(sMB)}, {s(sMB)}, {R0 + O_GATE}")
    st.e(f"s_cselect_b64 {s(sE5, 2)}, -1, 0xff")
    st.e(f"v_cndmask_b32 {v(vDA + 2)}, {v(V_L16)}, {v(vDA + 2)}, vcc")
    PF0 = 0 if OPT["pf"] == 2 else OPT["pfrom"]
    NL = 10 - PF0
    if OPT["pf"]:
        st.e(f"s_lshl4_add_u32 {s(sQ)}, {s(S_RB)}, {s(S_CS)}")
        st.e(f"s_lshl1_add_u32 {s(sQ)}, {s(sQ)}, {s(S_W)}")
        st.e(f"s_mul_i32 {s(sQ)}, {s(sQ)}, {4 * 1280}")
        st.e(f"s_and_b32 {s(sQ + 1)}, {s(S_RB)}, 7")
        st.e(f"s_mul_i32 {s(sQ + 1)}, {s(sQ + 1)}, 5")
        st.e(f"s_mul_i32 {s(sQ + 2)}, {s(S_CS)}, 40")
        st.e(f"s_add_u32 {s(sQ + 1)}, {s(sQ + 1)}, {s(sQ + 2)}")
        st.e(f"s_mul_i32 {s(sQ + 1)}, {s(sQ + 1)}, 1280")
        st.e(f"s_mul_i32 {s(sQ + 2)}, s2, {6 * NL * 128}")
        st.e(f"s_add_u32 {s(sQ + 2)}, {s(sQ + 2)}, {PF0 * 64 * 3072 - PF0 * 128}")
        st.e(f"s_mov_b32 {s(sQ + 3)}, {4 * NL - 1}")
        st.e(f"s_cmp_eq_u32 {s(S_W)}, 2")
        st.e(f"s_cselect_b32 {s(sQ + 3)}, {5 * NL - 1}, {s(sQ + 3)}")
        st.e(f"s_cselect_b32 {s(sQ)}, {s(sQ + 1)}, {s(sQ)}")
        st.e(f"s_movk_i32 {s(sQ + 1)}, {1280 - NL * 128}")
        st.e(f"s_cmp_eq_u32 {s(S_W)}, 3")
        st.e(f"s_cselect_b32 {s(sQ + 3)}, {6 * NL - 1}, {s(sQ + 3)}")
        st.e(f"s_cselect_b32 {s(sQ)}, {s(sQ + 2)}, {s(sQ)}")
        st.e(f"s_cselect_b32 {s(sQ + 1)}, 0, {s(sQ + 1)}")
        st.e(f"s_add_u32 {s(sQ)}, {s(sQ)}, {PF0 * 128}")
        st.e(f"v_min_u32 {v(vC)}, {s(sQ + 3)}, {v(V_LANE)}")
        st.e(f"v_mul_u32_u24 {v(vC + 3)}, {-(-4096 // NL)}, {v(vC)}")
        st.e(f"v_lshrrev_b32 {v(vC + 3)}, 12, {v(vC + 3)}")
        st.e(f"v_mul_u32_u24 {v(vC + 3)}, {s(sQ + 1)}, {v(vC + 3)}")
        st.e(f"v_lshl_add_u32 {v(vC)}, {v(vC)}, 7, {v(vC + 3)}")
        st.e(f"v_add_u32 {v(vC)}, {s(sQ)}, {v(vC)}")
        assert all((l * -(-4096 // NL)) >> 12 == l // NL for l in range(64))
    st.e("s_waitcnt lgkmcnt(0)")

    def in_prefetch():
        st.e(f"s_cmp_lt_u32 {s(S_RB)}, 8")
        st.e(f"s_cselect_b64 {s(sP, 2)}, {s(P_BRE, 2)}, {s(P_BIM, 2)}")
        st.e(f"s_cmp_eq_u32 {s(S_W)}, 3")
        st.e(f"s_cselect_b64 {s(sP, 2)}, {s(P_W1, 2)}, {s(sP, 2)}")
        st.e(f"s_cmp_lt_u32 {s(S_W)}, 2")
        st.e(f"s_cselect_b64 {s(sP, 2)}, {s(P_X, 2)}, {s(sP, 2)}")
        st.vm(f"global_load_dword {v(vDum)}, {v(vC)}, {s(sP, 2)}")

    if OPT["pf"] == 2:
        in_prefetch()
        st.e("s_barrier")
    stamp = Stamper(st, sr, "S", 11)
    stamp("start")
    st.e(f"s_cmp_eq_u32 {s(S_T0)}, 0")
    st.e(f"s_cselect_b32 {s(R_A)}, {s(P_BRE)}, {s(P_BIM)}")
    st.e(f"s_cselect_b32 {s(R_A + 1)}, {s(P_BRE + 1)}, {s(P_BIM + 1)}")
    st.e(f"s_mov_b32 {s(R_A + 2)}, {640 * 1280:#x}")
    st.e(f"s_mov_b32 {s(R_A + 3)}, 0x20000")
    st.e(f"s_cmp_eq_u32 {s(S_T1)}, 0")
    st.e(f"s_cselect_b32 {s(R_B)}, {s(R_A)}, {s(P_GATE)}")
    st.e(f"s_cselect_b32 {s(R_B + 1)}, {s(R_A + 1)}, {s(P_GATE + 1)}")
    st.e(f"s_cselect_b32 {s(R_B + 2)}, {s(R_A + 2)}, 1280")
    st.e(f"s_mov_b32 {s(R_B + 3)}, 0x20000")
    ids = {}

    def dma_b(c):
        so = (c % 3) * SL
        return [("e", f"s_add_u32 m0, {s(sMA)}, {so}"),
                ("e", "s_nop 0"),
                ("vm", f"buffer_load_dwordx4 {v(vDA)}, {s(R_A, 4)}, {s(sOA)} offen lds"),
                ("vm", f"buffer_load_dwordx4 {v(vDA + 1)}, {s(R_A, 4)}, {s(sOA)} offen offset:1024 lds"),
                ("e", f"s_add_u32 m0, {s(sMB)}, {so}"),
                ("e", f"s_add_u32 {s(sOA)}, {s(sOA)}, 128"),
                ("vm", f"s_mov_b64 exec, {s(sE5, 2)}\n"
                       f"    buffer_load_dwordx4 {v(vDA + 2)}, {s(R_B, 4)}, {s(sOB)} offen lds\n"
                       f"    s_mov_b64 exec, -1", (ids, ("b", c))),
                ("e", f"s_add_u32 {s(sOB)}, {s(sOB)}, 128")]

    puts(st, dma_b(0))
    if OPT["pf"] == 1:
        in_prefetch()
    xread_addrs(st, vX, vT, False)
    st.e(f"v_and_b32 {v(vT)}, 1, {v(V_LANE)}")
    st.e(f"v_bfe_u32 {v(vT + 1)}, {v(V_LANE)}, 1, 4")
    st.e(f"v_mad_u32_u24 {v(vT + 1)}, {v(vT)}, 40, {v(vT + 1)}")
    st.e(f"v_bfe_u32 {v(vT + 2)}, {v(vT + 1)}, 1, 3")
    st.e(f"v_lshrrev_b32 {v(vT + 3)}, 5, {v(V_LANE)}")
    st.e(f"v_xor_b32 {v(vT + 2)}, {v(vT + 2)}, {v(vT + 3)}")
    st.e(f"v_lshlrev_b32 {v(vT + 2)}, 4, {v(vT + 2)}")
    st.e(f"v_lshl_add_u32 {v(vT + 1)}, {v(vT + 1)}, 7, {v(vT + 2)}")
    st.e(f"v_add_u32 {v(vB)}, {R0 + O_B}, {v(vT + 1)}")
    st.e(f"v_add_u32 {v(vB2)}, 4096, {v(vB)}")
    st.e(f"v_lshlrev_b32 {v(vT + 1)}, 4, {v(vT + 3)}")
    st.e(f"v_add_u32 {v(vT + 1)}, {R0 + O_GATE}, {v(vT + 1)}")
    st.e(f"v_and_b32 {v(vT + 2)}, 16, {v(V_LANE)}")
    st.e(f"v_cmp_eq_u32 vcc, 0, {v(vT + 2)}")
    st.e(f"s_lshl_b32 {s(S_T0)}, {s(S_W)}, 1")
    st.e(f"v_add_u32 {v(vSig)}, {s(S_T0)}, {v(vT + 3)}")
    st.e(f"v_cndmask_b32 {v(vB2)}, {v(vT + 1)}, {v(vB2)}, vcc")
    for base in (vB, vB2):
        for k in range(1, 4):
            st.e(f"v_xor_b32 {v(base + k)}, {32 * k}, {v(base)}")
        for k in range(4):
            st.e(f"v_add_u32 {v(base + 4 + k)}, {2 * SL}, {v(base + k)}")
    st.e(f"v_cvt_f32_u32 {v(vT)}, {v(vT)}")
    st.e(f"v_fma_f32 {v(vSgn)}, {v(vT)}, 2.0, -1.0")
    srd(st, R_WS, P_WS, 0x10000000)
    st.vm(f"buffer_load_dword {v(V_EP)}, off, {s(R_WS, 4)}, 0 sc1")
    st.e(f"v_bfe_u32 {v(vT)}, {v(V_LANE)}, 1, 4")
    st.e(f"s_mul_i32 {s(S_T0)}, {s(S_CS)}, 40")
    st.e(f"v_add_u32 {v(vT)}, {s(S_T0)}, {v(vT)}")
    st.e(f"v_add_u32 {v(vT + 1)}, 32, {v(vT)}")
    st.e(f"v_min_u32 {v(vT + 1)}, 639, {v(vT + 1)}")
    st.e(f"v_lshlrev_b32 {v(vT)}, 1, {v(vT)}")
    st.e(f"v_lshlrev_b32 {v(vT + 1)}, 1, {v(vT + 1)}")
    for n, ptr in (("Lr", P_LRE), ("Li", P_LIM), ("dt", P_LDT)):
        st.vm(f"global_load_ushort {v(Tm[n][0])}, {v(vT)}, {s(ptr, 2)}")
        st.vm(f"global_load_ushort {v(Tm[n][1])}, {v(vT)}, {s(ptr, 2)} offset:32")
        par_id = st.vm(f"global_load_ushort {v(Tm[n][2])}, {v(vT + 1)}, {s(ptr, 2)}")
    st.e(f"v_mov_b32 {v(vT + 1)}, {SY}")
    st.e(f"v_lshl_add_u32 {v(vT + 1)}, {v(V_LANE)}, 2, {v(vT + 1)}")
    st.e(f"v_mov_b32 {v(vT + 2)}, 0")
    st.e("s_mov_b64 exec, 0xffff")
    st.lg(f"ds_write_b32 {v(vT + 1)}, {v(vT + 2)}")
    st.e("s_mov_b64 exec, -1")

    def w2_prefetch():
        return [("e", f"s_cmp_eq_u32 {s(S_W)}, 1\n    s_cselect_b64 {s(sP, 2)}, {s(P_CRE, 2)}, {s(P_CIM, 2)}"),
                ("e", f"s_cmp_eq_u32 {s(S_W)}, 0\n    s_cselect_b64 {s(sP, 2)}, {s(P_W2, 2)}, {s(sP, 2)}\n"
                      f"    s_cselect_b32 {s(sP + 2)}, 60, 25"),
                ("e", f"s_mul_i32 {s(sP + 3)}, {s(sP + 2)}, s2"),
                ("e", f"s_sub_u32 {s(sP + 2)}, {s(sP + 2)}, 1"),
                ("e", f"v_min_u32 {v(vPK)}, {s(sP + 2)}, {v(V_LANE)}"),
                ("e", f"v_add_lshl_u32 {v(vPK)}, {v(vPK)}, {s(sP + 3)}, 7"),
                ("vm", f"global_load_dword {v(vDum)}, {v(vPK)}, {s(sP, 2)}")]

    fill = []

    def f3(fmt):
        for b in range(3):
            m = {k: v(val[b]) for k, val in {**K, **Tm}.items()}
            fill.append(("e", fmt.format(**m)))

    sg, sig = v(vSgn), v(vSig)
    fill += nonce_items()
    f3("v_lshlrev_b32 {dt}, 16, {dt}")
    f3("v_lshlrev_b32 {Lr}, 16, {Lr}")
    f3("v_lshlrev_b32 {Li}, 16, {Li}")
    f3("v_mul_f32 {dt}, " + LOG2E + ", {dt}")
    f3("v_exp_f32 {dt}, {dt}")
    f3("v_cvt_pk_bf16_f32 {dt}, {dt}, {dt}")
    f3("v_lshlrev_b32 {dt}, 16, {dt}")
    f3("v_mul_f32 {la}, {dt}, {Lr}")
    f3("v_mul_f32 {rv}, {dt}, {Li}")
    f3("v_mul_f32 {la}, " + LOG2E + ", {la}")
    f3("v_mul_f32 {rv}, 0.15915494, {rv}")

    def powr(nop, r, i, keep=False):
        if nop is None:
            f3("v_exp_f32 {m}, {la}")
            f3("v_fract_f32 {an}, {rv}")
        else:
            f3("v_mul_f32 {m}, " + nop + ", {la}")
            f3("v_mul_f32 {an}, " + nop + ", {rv}")
            f3("v_exp_f32 {m}, {m}")
            f3("v_fract_f32 {an}, {an}")
        f3("v_cos_f32 {cs}, {an}")
        f3("v_sin_f32 {an}, {an}")
        f3("v_mul_f32 {" + r + "}, {m}, {cs}")
        if keep:
            f3("v_mul_f32 {liu}, {m}, {an}")
            f3("v_mul_f32 {" + i + "}, " + sg + ", {liu}")
        else:
            f3("v_mul_f32 {m}, " + sg + ", {m}")
            f3("v_mul_f32 {" + i + "}, {m}, {an}")

    powr(None, "lr", "li", keep=True)
    f3("v_add_f32 {cs}, -1.0, {lr}")
    f3("v_mul_f32 {m}, {Lr}, {Lr}")
    f3("v_fmac_f32 {m}, {Li}, {Li}")
    f3("v_rcp_f32 {m}, {m}")
    f3("v_mul_f32 {A}, {cs}, {Lr}")
    f3("v_fmac_f32 {A}, {liu}, {Li}")
    f3("v_mul_f32 {Bc}, {liu}, {Lr}")
    f3("v_fma_f32 {Bc}, -{cs}, {Li}, {Bc}")
    f3("v_mul_f32 {m}, -2.0, {m}")
    f3("v_mul_f32 {A}, {m}, {A}")
    f3("v_mul_f32 {Bc}, {m}, {Bc}")
    f3("v_mul_f32 {A}, " + sg + ", {A}")
    powr("0x41800000", "l16r", "l16i")
    fill.append(("e", f"v_cvt_f32_u32 {v(vT + 2)}, {sig}"))
    fill.append(("e", f"v_mul_f32 {v(vT + 2)}, 0x41800000, {v(vT + 2)}"))
    fill.append(("e", f"v_mul_f32 {v(vT + 3)}, 0x41000000, {v(vT + 2)}"))
    powr(v(vT + 2), "psr", "psi")
    powr(v(vT + 3), "qr", "qi")
    powr("0x44800000", "r8r", "r8i")
    for j in range(1, 8):
        fill.append(("e", f"v_cmp_eq_u32 {s(sMask[j - 1], 2)}, {j}, {sig}"))
    vEXr, vEXw, vSYa, vSYw, vM1, vTo = [vA + k for k in range(6)]
    fill += [("e", t) for t in (
        f"v_and_b32 {v(vT + 2)}, 31, {v(V_LANE)}",
        f"v_lshlrev_b32 {v(vT + 2)}, 5, {v(vT + 2)}",
        f"v_add_u32 {v(vEXr)}, {EX1}, {v(vT + 2)}",
        f"v_lshl_add_u32 {v(vEXw)}, {v(vSig)}, 2, {v(vEXr)}",
        f"v_mov_b32 {v(vSYa)}, {SY}",
        f"v_lshl_add_u32 {v(vSYw)}, {s(S_W)}, 2, {v(vSYa)}",
        f"v_mov_b32 {v(vM1)}, -1",
        f"s_cmp_eq_u32 {s(S_W)}, 0\n    s_cselect_b32 {s(sQ)}, 0, 0x80000000",
        f"v_lshl_add_u32 {v(vTo)}, {v(V_LANE)}, 3, {s(sQ)}",
        f"s_lshl_b32 {s(sQ + 1)}, {s(S_RB)}, 4",
        f"s_add_u32 {s(sQ + 1)}, {s(sQ + 1)}, {s(S_CS)}",
        f"s_mul_i32 {s(sQ + 1)}, {s(sQ + 1)}, 768",
        f"s_add_u32 {s(sQ + 1)}, {s(sQ + 1)}, {WS_T:#x}")]
    sF0, sF1, sF2, sF3 = S_T0, S_T1, S_T2, S_T3

    def FL(t):
        fill.append(("e", t))

    mk = [P_BRE, P_BIM, P_LRE, P_LIM]
    FL(f"s_sub_u32 {s(sF0)}, {s(S_RB)}, 1")
    FL(f"v_sub_u32 {v(vT)}, {s(sF0)}, {v(vSig)}")
    FL(f"v_and_b32 {v(vT + 1)}, 31, {v(V_LANE)}")
    FL(f"s_mul_i32 {s(sF1)}, {s(S_CS)}, 768")
    FL(f"s_add_u32 {s(sF1)}, {s(sF1)}, {WS_T:#x}")
    FL(f"v_lshl_add_u32 {v(vT + 1)}, {v(vT + 1)}, 3, {s(sF1)}")
    FL(f"v_mov_b32 {v(vT + 3)}, 0x80000000")
    FL(f"s_mov_b32 {s(sF2)}, 0xffff0000")
    FL(f"s_mov_b32 {s(sF3)}, 0xffff0000")
    for dl in range(2):
        if dl:
            FL(f"v_subrev_u32 {v(vT)}, 8, {v(vT)}")
        FL(f"v_cmp_gt_i32 {s(mk[2 * dl], 2)}, 0, {v(vT)}")
        FL(f"v_mul_i32_i24 {v(vT + 2)}, {16 * 768}, {v(vT)}")
        FL(f"v_add_u32 {v(vT + 2)}, {v(vT + 2)}, {v(vT + 1)}")
        FL(f"s_or_b64 {s(mk[2 * dl + 1], 2)}, {s(mk[2 * dl], 2)}, {s(sF2, 2)}")
        FL(f"v_cndmask_b32 {v(vC + 2 * dl)}, {v(vT + 2)}, {v(vT + 3)}, {s(mk[2 * dl], 2)}")
        FL(f"v_cndmask_b32 {v(vC + 2 * dl + 1)}, {v(vT + 2)}, {v(vT + 3)}, {s(mk[2 * dl + 1], 2)}")
    FL(f"s_mul_i32 {s(sF0)}, {s(S_W)}, {SL}")
    FL(f"s_add_u32 {s(sF0)}, {s(sF0)}, {TS0}")
    FL(f"s_cmp_eq_u32 {s(S_W)}, 3\n    s_cselect_b32 {s(sF0)}, {TS3}, {s(sF0)}")
    FL(f"v_and_b32 {v(vT)}, 31, {v(V_LANE)}")
    FL(f"v_mul_u32_u24 {v(vT)}, 80, {v(vT)}")
    FL(f"v_and_b32 {v(vT + 1)}, 32, {v(V_LANE)}")
    FL(f"v_add3_u32 {v(vTR)}, {v(vT)}, {v(vT + 1)}, {s(sF0)}")
    FL(f"v_bfe_u32 {v(vT)}, {v(V_LANE)}, 2, 2")
    FL(f"v_bfe_u32 {v(vT + 2)}, {v(V_LANE)}, 4, 1")
    FL(f"v_lshl_add_u32 {v(vT)}, {v(vT)}, 1, {v(vT + 2)}")
    FL(f"v_mul_u32_u24 {v(vT)}, 80, {v(vT)}")
    FL(f"v_and_b32 {v(vT + 3)}, 3, {v(V_LANE)}")
    FL(f"v_lshl_add_u32 {v(vT)}, {v(vT + 3)}, 3, {v(vT)}")
    FL(f"v_add3_u32 {v(vTR + 1)}, {v(vT)}, {v(vT + 1)}, {s(sF0)}")
    FL(f"v_lshrrev_b32 {v(vT)}, 5, {v(V_LANE)}")
    FL(f"v_mul_u32_u24 {v(vT)}, {RTS - 512}, {v(vT)}")
    FL(f"v_add_u32 {v(vTR + 2)}, {v(vT)}, {v(V_L16)}")
    FL(f"s_lshl_b32 {s(sH)}, {s(S_RB)}, 2")
    FL(f"s_add_u32 {s(sH)}, {s(sH)}, {s(S_W)}")
    FL(f"s_mul_i32 {s(sH)}, {s(sH)}, {2 * RTS}")
    FL(f"s_mul_i32 {s(sF1)}, {s(S_CS)}, 2560")
    FL(f"s_add_u32 {s(sH)}, {s(sH)}, {s(sF1)}")
    FL(f"s_add_u32 {s(sH)}, {s(sH)}, {WS_H + 192 * 256:#x}")
    FL(f"s_lshl4_add_u32 {s(sH + 1)}, {s(S_RB)}, {s(S_CS)}")
    FL(f"s_lshl2_add_u32 {s(sH + 1)}, {s(sH + 1)}, {s(S_W)}")
    FL(f"s_lshl_b32 {s(sH + 1)}, {s(sH + 1)}, 7")
    FL(f"s_add_u32 {s(sH + 1)}, {s(sH + 1)}, {WS_FS:#x}")
    FL(f"v_mov_b32 {v(vTR + 3)}, {s(S_NONCE)}")
    F0 = 4 * 2
    per = -(-len(fill) // (39 - F0))

    def reads(c, sidx):
        p, slot = sidx & 1, c % 3
        ra, off = slot_addr(vX + sidx, vX + 4 + sidx, slot, 0)
        out = [("lg", f"ds_read_b128 {v(fX[p], 4)}, {v(ra)} offset:{off}")]
        for b in range(3):
            base = vB if b < 2 else vB2
            ra, off = slot_addr(base + sidx, base + 4 + sidx, slot, 2048 * b if b < 2 else 0)
            out.append(("lg", f"ds_read_b128 {v(fB[p][b], 4)}, {v(ra)} offset:{off}"))
        return out

    def mfmas(c, sidx):
        p = sidx & 1
        first = (c == 0 and sidx == 0)
        return [("e", f"v_mfma_f32_32x32x16_bf16 {v(acc[b], 16)}, {v(fX[p], 4)}, {v(fB[p][b], 4)}, "
                      + ("0" if first else v(acc[b], 16))) for b in range(3)]

    for c in range(1, DIST):
        puts(st, dma_b(c))
    if OPT["pf"] == 3:
        in_prefetch()
    st.wait(vm=ids["b", 0], lg="all")
    st.e("s_barrier")
    stamp("B0", (5,))
    puts(st, reads(0, 0))

    def span(cb):
        d = dma_b(cb + DIST) if cb + DIST <= 9 else []
        out = split_vm(d, 4) if d else [[], [], [], []]
        if cb == OPT["wpf"]:
            out[3 if d else 0] += w2_prefetch()
        return out

    sp = [[]] + split_vm(dma_b(DIST), 3)
    for c in range(10):
        for sidx in range(4):
            fl = []
            if 4 * c + sidx >= F0:
                assert ids["b", F0 // 4] > par_id
                fl, fill = fill[:per], fill[per:]
            if sidx < 3:
                st.wait(lg="all")
                interleave(st, mfmas(c, sidx), reads(c, sidx + 1) + sp[sidx + 1] + fl)
            else:
                if c < 9:
                    st.wait(vm=ids["b", c + 1], lg="all")
                else:
                    st.wait(lg="all")
                st.e("s_barrier")
                sp = span(c + 1)
                sides = reads(c + 1, 0) if c < 9 else []
                interleave(st, mfmas(c, sidx), sides + sp[0] + fl)
    assert not fill
    stamp("loopend")
    if OPT["prioS"]:
        st.e(f"s_setprio {OPT['prioS']}")
    hA = [frag + b for b in range(3)]
    hB = [frag + 3 + b for b in range(3)]
    Pv = [frag + 6 + b for b in range(3)]
    Tv = [frag + 10 + 2 * b for b in range(3)]
    st.nop(6)
    for b in range(3):
        st.e(f"v_mov_b32 {v(Pv[b])}, 0")
        st.e(f"v_mov_b32 {v(Tv[b] + 1)}, {s(S_NONCE)}")
    cur = [acc[b] for b in range(3)]
    for j in range(1, 16):
        dst = hA if j & 1 else hB
        for b in range(3):
            st.e(f"v_fma_f32 {v(dst[b])}, {v(K['lr'][b])}, {v(cur[b])}, {v(acc[b] + j)}")
        for b in range(3):
            st.e(f"v_fmac_f32_dpp {v(dst[b])}, {v(cur[b])}, {v(K['li'][b])} {DPP}")
        cur = dst
    stamp("pass1", (1,))
    for b in range(3):
        st.lg(f"ds_write_b32 {v(vEXw)}, {v(cur[b])} offset:{1024 * b}")
    Ev = [big + 8 * b for b in range(3)]

    def ex_reads(base):
        return [f"ds_read_b128 {v(Ev[b] + 4 * q, 4)}, {v(vEXr)} offset:{base + 1024 * b + 16 * q}"
                for b in range(3) for q in range(2)]

    if OPT["bar1"]:
        st.wait(lg="all")
        st.e("s_barrier")
        for t in ex_reads(0):
            st.lg(t)
        st.wait(lg="all")
    else:
        st.lg(f"ds_write_b32 {v(vSYw)}, {v(vM1)}")
        lds_flag_wait(st, vSYa, 0, vT, ex_reads(0))
    stamp("sync1", (1,))
    cur = [Ev[b] for b in range(3)]
    for j in range(1, 8):
        dst = Tv if j == 7 else (hA if j & 1 else hB)
        for b in range(3):
            st.e(f"v_fma_f32 {v(dst[b])}, {v(K['l16r'][b])}, {v(cur[b])}, {v(Ev[b] + j)}")
        for b in range(3):
            st.e(f"v_fmac_f32_dpp {v(dst[b])}, {v(cur[b])}, {v(K['l16i'][b])} {DPP}")
        if j < 7:
            for b in range(3):
                st.e(f"v_cndmask_b32 {v(Pv[b])}, {v(Pv[b])}, {v(cur[b])}, {s(sMask[j - 1], 2)}")
        prev, cur = cur, dst
    st.e("s_mov_b32 exec_hi, 0")
    for b in range(3):
        st.vm(f"buffer_store_dwordx2 {v(Tv[b], 2)}, {v(vTo)}, {s(R_WS, 4)}, {s(sQ + 1)} offen offset:{256 * b} sc1")
    st.e("s_mov_b32 exec_hi, -1")
    for b in range(3):
        st.e(f"v_cndmask_b32 {v(Pv[b])}, {v(Pv[b])}, {v(prev[b])}, {s(sMask[6], 2)}")
    stamp("Tpub")
    if OPT["prioW"] != OPT["prioS"]:
        st.e(f"s_setprio {OPT['prioW']}")
    gv = big + 24
    st.e(f"v_lshlrev_b32 {v(vT)}, 6, {v(vSig)}")
    st.e(f"v_add_u32 {v(vX)}, {GS}, {v(vT)}")
    st.e("s_mov_b32 exec_lo, 0x10000")
    st.e("s_mov_b32 exec_hi, 0x10000")
    for q in range(4):
        st.lg(f"ds_write_b128 {v(vX)}, {v(acc[2] + 4 * q, 4)} offset:{16 * q}")
    st.e("s_mov_b64 exec, -1")
    st.e(f"v_and_b32 {v(vT)}, 31, {v(V_LANE)}")
    st.e(f"s_lshl_b32 {s(S_T0)}, {s(S_W)}, 7")
    st.e(f"s_add_u32 {s(S_T0)}, {s(S_T0)}, {GS}")
    st.e(f"v_lshl_add_u32 {v(vX + 1)}, {v(vT)}, 2, {s(S_T0)}")
    st.lg(f"ds_read_b32 {v(vX + 2)}, {v(vX + 1)}")
    st.wait(lg="all")
    st.e(f"v_mul_f32 {v(vX + 2)}, {NLOG2E}, {v(vX + 2)}")
    st.e(f"v_exp_f32 {v(vX + 2)}, {v(vX + 2)}")
    st.e("s_nop 0")
    st.e(f"v_add_f32 {v(vX + 2)}, 1.0, {v(vX + 2)}")
    st.e(f"v_rcp_f32 {v(vX + 2)}, {v(vX + 2)}")
    st.e("s_nop 0")
    st.lg(f"ds_write_b32 {v(vX + 1)}, {v(vX + 2)} offset:512")
    st.e(f"v_mov_b32 {v(vX + 3)}, 1")
    st.lg(f"ds_write_b32 {v(vSYw)}, {v(vX + 3)} offset:32")
    for q in range(4):
        st.lg(f"ds_read_b128 {v(gv + 4 * q, 4)}, {v(vX)} offset:{512 + 16 * q}")
    Cv = [[big + 4 * b + 2 * dl for dl in range(2)] for b in range(3)]
    tt = [frag + 16 + k for k in range(6)]

    def carry_loads():
        for dl in range(2):
            for b in range(3):
                ra = vC + 2 * dl + (1 if b == 2 else 0)
                st.e(f"buffer_load_dwordx2 {v(Cv[b][dl], 2)}, {v(ra)}, {s(R_WS, 4)}, 0 offen offset:{256 * b} sc1")

    for j in range(16):
        if j == OPT["early"]:
            carry_loads()
        for b in range(3):
            st.e(f"v_mul_f32_dpp {v(tt[3 * (j & 1) + b])}, {v(acc[b] + j)}, {v(K['Bc'][b])} {DPP}")
        for b in range(3):
            st.e(f"v_fma_f32 {v(acc[b] + j)}, {v(K['A'][b])}, {v(acc[b] + j)}, {v(tt[3 * (j & 1) + b])}")
    stamp("win")
    if OPT["prioW"] != OPT["prioS"]:
        st.e(f"s_setprio {OPT['prioS']}")
    top, done = newlabel("cp"), newlabel("cok")
    st.e(f"s_mov_b32 {s(S_SPIN)}, {OPT['spin']}")
    if OPT["early"] > 15:
        carry_loads()
    st.label(top)
    st.e(f"s_mov_b64 {s(S_T0, 2)}, -1")
    st.e("s_waitcnt vmcnt(0)")
    for dl in range(2):
        for b in range(3):
            st.e(f"v_cmp_eq_u32 vcc, {s(S_NONCE)}, {v(Cv[b][dl] + 1)}")
            st.e("s_nop 0")
            st.e(f"s_or_b64 vcc, vcc, {s(mk[2 * dl + (1 if b == 2 else 0)], 2)}")
            st.e(f"s_and_b64 {s(S_T0, 2)}, {s(S_T0, 2)}, vcc")
    st.e(f"s_cmp_eq_u64 {s(S_T0, 2)}, -1")
    st.e(f"s_cbranch_scc1 {done}")
    st.e(f"s_sleep {OPT['sleep']}")
    carry_loads()
    st.e(f"s_sub_u32 {s(S_SPIN)}, {s(S_SPIN)}, 1")
    st.e(f"s_cbranch_scc0 {top}")
    st.e("s_waitcnt vmcnt(0)")
    st.label(done)
    stamp("carry")
    for b in range(3):
        st.e(f"v_fma_f32 {v(hA[b])}, {v(K['r8r'][b])}, {v(Cv[b][1])}, {v(Cv[b][0])}")
    for b in range(3):
        st.e(f"v_fmac_f32_dpp {v(hA[b])}, {v(Cv[b][1])}, {v(K['r8i'][b])} {DPP}")
    for b in range(3):
        st.e(f"v_mul_f32 {v(hB[b])}, {v(K['qr'][b])}, {v(hA[b])}")
    for b in range(3):
        st.e(f"v_fmac_f32_dpp {v(hB[b])}, {v(hA[b])}, {v(K['qi'][b])} {DPP}")
    for b in range(3):
        st.lg(f"ds_write_b32 {v(vEXw)}, {v(hB[b])} offset:{3072 + 1024 * b}")
    st.lg(f"ds_write_b32 {v(vSYw)}, {v(vM1)} offset:16")
    lds_flag_wait(st, vSYa, 16, vT, ex_reads(3072))
    stamp("sync2", (0,))
    for q in (0, 2):
        for b in range(3):
            st.e(f"v_pk_add_f32 {v(Ev[b] + q, 2)}, {v(Ev[b] + q, 2)}, {v(Ev[b] + 4 + q, 2)}")
    for b in range(3):
        st.e(f"v_pk_add_f32 {v(Ev[b], 2)}, {v(Ev[b], 2)}, {v(Ev[b] + 2, 2)}")
    for b in range(3):
        st.e(f"v_add_f32 {v(hA[b])}, {v(Ev[b])}, {v(Ev[b] + 1)}")
    for b in range(3):
        st.e(f"v_fmac_f32 {v(Pv[b])}, {v(K['psr'][b])}, {v(hA[b])}")
    for b in range(3):
        st.e(f"v_fmac_f32_dpp {v(Pv[b])}, {v(hA[b])}, {v(K['psi'][b])} {DPP}")
    for b in range(3):
        st.e(f"v_mul_f32 {v(hB[b])}, {v(K['A'][b])}, {v(Pv[b])}")
    for b in range(3):
        st.e(f"v_fmac_f32_dpp {v(hB[b])}, {v(Pv[b])}, {v(K['Bc'][b])} {DPP}")
    pk = [big + 8 * b for b in range(3)]
    sc = [frag + 16 + 2 * b for b in range(3)]
    for j in range(16):
        prev = [hB[b] if j == 0 else acc[b] + j - 1 for b in range(3)]
        for b in range(3):
            st.e(f"v_fmac_f32 {v(acc[b] + j)}, {v(K['lr'][b])}, {v(prev[b])}")
        for b in range(3):
            st.e(f"v_fmac_f32_dpp {v(acc[b] + j)}, -{v(prev[b])}, {v(K['li'][b])} {DPP}")
        if j & 1:
            for b in range(3):
                st.e(f"v_pk_mul_f32 {v(sc[b], 2)}, {v(acc[b] + j - 1, 2)}, {v(gv + j - 1, 2)}")
            for b in range(3):
                st.e(f"v_cvt_pk_bf16_f32 {v(pk[b] + (j >> 1))}, {v(sc[b])}, {v(sc[b] + 1)}")
        if j in (7, 15):
            for b in range(3):
                st.lg(f"ds_write_b128 {v(vTR)}, {v(pk[b] + (4 if j == 15 else 0), 4)} "
                      f"offset:{2560 * b + (16 if j == 15 else 0)}")
    stamp("pass2", (1,))
    rid = []
    for k in range(5):
        for e2 in range(2):
            r = st.lg(f"ds_read_b64_tr_b16 {v(acc[0] + 4 * k + 2 * e2, 2)}, {v(vTR + 1)} offset:{k * 1280 + e2 * 640}")
        rid.append(r)
    for k in range(5):
        st.wait(lg=rid[k])
        st.vm(f"buffer_store_dwordx4 {v(acc[0] + 4 * k, 4)}, {v(vTR + 2)}, {s(R_WS, 4)}, {s(sH)} offen offset:{512 * k} sc1")
    stamp("hst")
    st.wait(vm="all")
    st.vm(one_lane_store(vTR + 3, s(sH + 1)))
    stamp("end")
    stamp.flush(vT)
    st.e("s_endpgm")
    return stamp.names


HEADER = """; gated mix of an S5 state-space branch and a squared-relu MLP branch, one persistent launch.
; @launch grid=(256,1,1) block=(512,1,1) lds={lds}
.amdgcn_target "amdgcn-amd-amdhsa--gfx950"
.text
.globl {name}_kernel
.p2align 8
.type {name}_kernel,@function
{name}_kernel:
"""
FOOTER = """.section .rodata,"a"
.p2align 6
.amdhsa_kernel {name}_kernel
  .amdhsa_next_free_vgpr 256
  .amdhsa_next_free_sgpr 102
  .amdhsa_accum_offset 256
  .amdhsa_group_segment_fixed_size 0
  .amdhsa_kernarg_size 144
  .amdhsa_user_sgpr_count 2
  .amdhsa_user_sgpr_kernarg_segment_ptr 1
  .amdhsa_system_sgpr_workgroup_id_x 1
  .amdhsa_float_denorm_mode_32 3
.end_amdhsa_kernel
"""


def main():
    c = Stream()
    gen_common(c)
    g = Stream()
    gn = gen_G(g)
    sst = Stream()
    sn = gen_S(sst)
    slow = "".join(o.text() for o in SLOW)
    text = (HEADER.format(lds=LDS_BYTES, name=NAME) + c.text() + g.text() + slow + ".p2align 6\n" + sst.text()
            + "L_end:\n    s_endpgm\n" + FOOTER.format(name=NAME))
    open(sys.argv[1], "w").write(text)
    if STAMPS:
        import json
        json.dump(dict(G=gn, S=sn), open(sys.argv[1] + ".stamps.json", "w"))


if __name__ == "__main__":
    main()
```
